```python
import torch

def _softmax(x, axis=-1):
    return torch.softmax(x, dim=axis)
def _gelu(x):
    return torch.nn.functional.gelu(x, approximate="tanh")
def _silu(x):
    return torch.nn.functional.silu(x)
def _sigmoid(x):
    return torch.sigmoid(x)
def _layernorm(x, axis=-1, eps=1e-5):
    m = x.mean(dim=axis, keepdim=True)
    v = x.var(dim=axis, keepdim=True, unbiased=False)
    return (x - m) / torch.sqrt(v + eps)
def _scatter_add(tgt, idx, src, axis=0):
    return tgt.clone().index_add_(axis, idx, src)
def _segment_sum(src, seg, n):
    out = torch.zeros((n,) + src.shape[1:], dtype=src.dtype)
    return out.index_add_(0, seg, src)
def _pad(x, pw):
    flat = tuple(v for pair in reversed(pw) for v in pair)
    return torch.nn.functional.pad(x, flat)

kernel_name = 'standalone__winograd__vision'

def setup_inputs():

    _w = (lambda a: (lambda t: t.to(torch.bfloat16) if t.is_floating_point() else t)(torch.as_tensor(a)))
    H = W = 512 // 2 * 2
    C = 192
    return {
        "x": _w((lambda *s: torch.randn(*s, dtype=torch.bfloat16) * 0.05)(1, H, W, C)),
        "w": _w((lambda *s: torch.randn(*s, dtype=torch.bfloat16) * 0.05)(3, 3, C, C)),
    }

def reference(x, w):
    N, H, W, C = x.shape
    K = w.shape[-1]
    G  = torch.as_tensor([[1.0,0.0,0.0],[0.5,0.5,0.5],[0.5,-0.5,0.5],[0.0,0.0,1.0]], dtype=x.dtype)
    Bt = torch.as_tensor([[1.0,0.0,-1.0,0.0],[0.0,1.0,1.0,0.0],[0.0,-1.0,1.0,0.0],[0.0,1.0,0.0,-1.0]], dtype=x.dtype)
    At = torch.as_tensor([[1.0,1.0,1.0,0.0],[0.0,1.0,-1.0,-1.0]], dtype=x.dtype)
    U = torch.einsum("ar,rsck,bs->abck", G, w, G)
    xp = _pad(x, ((0,0),(1,1),(1,1),(0,0)))
    nH, nW = H // 2, W // 2
    patches = []
    for i in range(4):
        for j in range(4):
            patches.append(xp[:, i:i + 2 * nH:2, j:j + 2 * nW:2, :])
    d = torch.stack(patches).reshape(4, 4, N * nH * nW, C)
    V = torch.einsum("ai,ijpc,bj->abpc", Bt, d, Bt)
    M = torch.einsum("abck,abpc->abpk", U, V)
    Y = torch.einsum("ma,abpk,nb->pmnk", At, M, At)
    Y = Y.reshape(N, nH, nW, 2, 2, K)
    Y = (lambda x, *d: x.permute(*d))(Y, 0, 1, 3, 2, 4, 5).reshape(N, H, W, K)
    return Y
```

```python
BIG = 10 ** 9


def R(f, a, n=1):
    return [(f, a + i) for i in range(n)]


class Op:
    __slots__ = ("text", "kind", "cost", "rd", "wr", "release", "target", "deadline", "after", "gap",
                 "rtag", "wtag", "lds_r", "lds_w", "name", "seq")

    def __init__(self, text, kind, rd=(), wr=(), cost=None, release=-BIG, target=None, deadline=BIG,
                 after=(), rtag=None, wtag=None, lds_r=None, lds_w=None, name=""):
        self.text = text
        self.kind = kind
        if cost is None:
            cost = {"valu": 1, "dsr": 1, "vld": 2, "salu": 0, "bar": 0, "mfma": 0}[kind]
        self.cost = cost
        self.rd = list(rd)
        self.wr = list(wr)
        self.release = release
        self.target = target
        self.deadline = deadline
        self.after = list(after)
        self.gap = None
        self.rtag = rtag or {}
        self.wtag = wtag or {}
        self.lds_r = lds_r
        self.lds_w = lds_w
        self.name = name
        self.seq = None

    @property
    def mem(self):
        return self.kind in ("dsr", "dsw", "vld", "vst")


def schedule(nm, streams, fixed, budget):
    heads = [0] * len(streams)
    gaps = []
    extra = 0.0
    late = []

    def ready(si, g):
        st = streams[si]
        if heads[si] >= len(st):
            return None
        op = st[heads[si]]
        if op.release > g:
            return None
        for a, d in op.after:
            if a.gap is None or a.gap + d > g:
                return None
        return op

    def key(op):
        return min(op.target if op.target is not None else op.deadline, op.deadline)

    for g in range(nm):
        cur = {"sc": [], "mem": [], "valu": []}
        for op in fixed.get(g, []):
            op.gap = g
            cur["sc"].append(op)
        used = max(0, len(cur["sc"]) * 2 - 1)
        extra = min(extra + budget(g) - 2.0, 4.0)

        def place(si, op, where, cost):
            nonlocal used, extra
            over = used + cost - max(2, used)
            if over > 0:
                extra -= over
            used += cost
            op.gap = g
            if op.deadline < g:
                late.append((op, g))
            heads[si] += 1
            cur[where].append(op)

        if g == nm - 1:
            while True:
                c = [(key(streams[si][heads[si]]), si) for si in range(len(streams)) if heads[si] < len(streams[si])
                     and all(a.gap is not None for a, d in streams[si][heads[si]].after)]
                if not c:
                    break
                si = min(c)[1]
                place(si, streams[si][heads[si]], "valu", 0)
            cur["used"] = used
            gaps.append(cur)
            break
        while True:
            c = [(key(op), si, op) for si in range(len(streams)) for op in [ready(si, g)] if op is not None and op.kind == "salu"]
            c.sort(key=lambda x: x[:2])
            if not c:
                break
            k, si, op = c[0]
            if not cur["sc"]:
                place(si, op, "sc", 0)
            elif op.deadline <= g:
                place(si, op, "sc", 1)
            else:
                break
        while True:
            allc = [(key(op), si, op) for si in range(len(streams)) for op in [ready(si, g)] if op is not None]
            c = sorted((x for x in allc if x[2].mem), key=lambda x: x[:2])
            have_valu = any(x[2].kind == "valu" for x in allc)
            done = False
            for k, si, op in c:
                over = used + op.cost - max(2, used)
                if over <= 0 or used == 0 or op.deadline <= g or extra >= over or (used < 2 and not have_valu):
                    place(si, op, "mem", op.cost)
                    done = True
                    break
            if not done:
                break
        while True:
            c = sorted(((key(op), si, op) for si in range(len(streams)) for op in [ready(si, g)]
                        if op is not None and (op.kind == "valu" or (op.kind == "salu" and (op.deadline <= g or used < 2)))),
                       key=lambda x: x[:2])
            done = False
            for k, si, op in c:
                over = used + 1 - max(2, used)
                if over <= 0 or op.deadline <= g or extra >= over:
                    place(si, op, "valu", 1)
                    done = True
                    break
            if not done:
                break
        cur["used"] = used
        gaps.append(cur)
    for si, st in enumerate(streams):
        assert heads[si] == len(st), ("unplaced", si, st[heads[si]].text, st[heads[si]].name)
    return gaps, late


class Emitter:
    def __init__(self):
        self.out = []
        self.vm = []
        self.lg = []
        self.vm_done = 0
        self.lg_done = 0
        self.pend = {}
        self.tags = {}
        self.nwait = 0
        self.nnop = 0
        self.est = 0
        self.epoch = 0
        self.lds = {}

    def _needs(self, ops):
        nv = nl = -1
        for op in ops:
            for r in op.rd + op.wr:
                p = self.pend.get(r)
                if p is None:
                    continue
                if p[0] == "vm" and p[1] >= self.vm_done:
                    nv = max(nv, p[1])
                if p[0] == "lg" and p[1] >= self.lg_done:
                    nl = max(nl, p[1])
            if op.kind == "bar":
                nl = max(nl, len(self.lg) - 1) if len(self.lg) > self.lg_done else nl
        return nv, nl

    def wait_for(self, ops):
        nv, nl = self._needs(ops)
        parts = []
        if nv >= 0:
            n = min(len(self.vm) - 1 - nv, 63)
            parts.append(f"vmcnt({n})")
            self.vm_done = len(self.vm) - n
        if nl >= 0:
            n = min(len(self.lg) - 1 - nl, 15)
            parts.append(f"lgkmcnt({n})")
            self.lg_done = len(self.lg) - n
        if parts:
            self.out.append(("s_waitcnt " + " ".join(parts), "salu", [], []))
            self.nwait += 1
            return True
        return False

    def _hazard(self, op):
        need = 0
        dist = 0
        rd = set(op.rd)
        wr = set(op.wr)
        for text, kind, prd, pwr in reversed(self.out[-24:]):
            req = 0
            spw = set(pwr)
            if kind == "mfma":
                d = spw
                if op.kind == "mfma":
                    ab = set(op.rd[:8])
                    if ab & d:
                        req = max(req, 8)
                    c = set(op.rd[8:])
                    if c & d and c != d:
                        req = max(req, 6)
                    if wr & d and wr != d:
                        req = max(req, 6)
                elif (rd | wr) & d:
                    req = max(req, 8)
                if op.kind == "valu" and wr & set(prd[8:]):
                    req = max(req, 3)
            elif kind == "valu":
                if op.kind == "mfma" and rd & spw:
                    req = max(req, 2)
                if any(r[0] == "s" for r in spw):
                    if op.kind in ("vld", "vst") and rd & spw:
                        req = max(req, 5)
                    if op.kind == "valu" and rd & spw:
                        req = max(req, 2)
                    if op.kind == "salu" and rd & spw:
                        req = max(req, 4)
                if "readfirstlane" in op.text and rd & spw:
                    req = max(req, 1)
            elif kind == "vst":
                if wr & set(prd):
                    req = max(req, 2)
            need = max(need, req - dist)
            n = 1
            if text.startswith("s_nop"):
                n = int(text.split()[1]) + 1
            dist += n
        return need

    def put(self, op):
        nv, nl = self._needs([op])
        if nv >= 0 or nl >= 0:
            self.wait_for([op])
        h = self._hazard(op)
        if h > 0:
            self.out.append((f"s_nop {h - 1}", "salu", [], []))
            self.nnop += 1
        for r, t in op.rtag.items():
            assert self.tags.get(r) == t, ("tag mismatch", op.text, op.name, r, t, self.tags.get(r), op.gap)
        for r in op.wr:
            self.tags[r] = op.wtag.get(r, ("junk", op.text))
            self.pend.pop(r, None)
        if op.kind in ("vld", "vst"):
            self.vm.append(op)
            for r in op.wr:
                self.pend[r] = ("vm", len(self.vm) - 1)
        if op.kind in ("dsr", "dsw"):
            self.lg.append(op)
            for r in op.wr:
                self.pend[r] = ("lg", len(self.lg) - 1)
        if op.lds_r:
            for u, t in op.lds_r:
                s = self.lds.get(u)
                assert s and s["tag"] == t and s["wepoch"] < self.epoch, ("lds read", op.text, op.name, u, t, s, self.epoch, op.gap)
                s["repoch"] = self.epoch
        if op.lds_w:
            for u, t in op.lds_w:
                s = self.lds.get(u)
                if s and s["tag"] != t:
                    assert s["repoch"] < self.epoch, ("lds WAR", op.text, op.name, u, t, s, self.epoch, op.gap)
                    s = None
                if s is None:
                    s = self.lds[u] = {"tag": t, "repoch": -1, "n": 0}
                assert s["repoch"] == -1, ("lds write after first read", op.text, op.name, u, t, s)
                s["wepoch"] = self.epoch
                s["n"] += 1
        if op.kind == "bar":
            assert self.lg_done == len(self.lg)
            self.epoch += 1
        self.out.append((op.text, op.kind, op.rd, op.wr))

    def raw(self, text, kind="salu", rd=(), wr=()):
        self.put(Op(text, kind, rd, wr, cost=0))

    def lines(self):
        return [o[0] for o in self.out]
```

```python
import sys
import struct
from sched import Op, R, schedule, Emitter, BIG

CFG = dict(D=11, E=8, LATG=30, st_gap=17.0, vlead=7, dbg=0)
for a in sys.argv[1:]:
    k, v = a.split("=")
    CFG[k] = type(CFG[k])(v) if k in CFG else v

XB = 100663296
ROWB = 196608
UNIT = 8704
NP = 2592
NPASS = 2
UWAVE = 324 * 1024
fbits = lambda x: struct.unpack("<I", struct.pack("<f", x))[0]

D, E = CFG["D"], CFG["E"]
BUF = [192, 204]
UV0 = 216
NUV = D - 8
TMP = UV0 + 4 * NUV
HAL = TMP + 13
vRaw, vHalo, vW, vHW, vRA, vRB, vU, vSt, vSt2 = range(HAL + 6, HAL + 15)
assert vSt2 <= 255, vSt2
AV0, AU0 = 192, 192 + 4 * E
NUA = (256 - AU0) // 4
assert NUA + NUV >= D
sX, sXL, sXR, sUs, sO = 8, 12, 16, 20, 24
sRaw, sHalo, sRawB, sCol, sUW = 28, 29, 30, 31, 44
sRow = 32
sM5, s8, sMask, sM125, s025 = 40, 41, 42, 43, 45
sU = 46
sY0, sWv = 49, 50
sStB = 51


def acc(p, kb, y):
    o = (kb * 8 + y) * 4
    return {1: ("a", o), 2: ("a", 96 + o), 3: ("v", o), 4: ("v", 96 + o), 0: ("v", o), 5: ("v", 96 + o)}[p]


def uslot(n):
    s = n % D
    return ("a", AU0 + 4 * s) if s < NUA else ("v", UV0 + 4 * (s - NUA))


def vslot(n):
    return ("a", AV0 + 4 * (n % E))


rr = lambda f, a, n: f"{f}[{a}:{a + n - 1}]" if n > 1 else f"{f}{a}"


def unit_of(P, c, p):
    x45 = (6, 7) if P % 2 == 0 else (0, 1)
    o0 = (0, 1) if P % 2 == 0 else (6, 7)
    if p in (0, 5):
        i = 0 if p == 0 else 1
        if c == 0:
            return o0[i]
        if c == 5:
            return 8 + i
        return 10 + 2 * (c - 1) + i
    if c % 2 == 0:
        return 2 + (p - 1)
    if c < 5:
        return (x45[0], x45[1], 8, 9)[p - 1]
    return (x45[0], x45[1], 2, 3)[p - 1]


groups = []
for P in range(NPASS):
    for c in range(5):
        for p in (1, 2, 3, 4):
            groups.append((P, c, p, (0, 1, 2)))
    for p in (1, 2, 3, 4):
        groups.append((P, 5, p, (0,)))
    for p in (1, 2, 3, 4):
        groups.append((P, 5, p, (1, 2)))
    for kb in range(3):
        for p in (0, 5):
            for c in range(6):
                groups.append((P, c, p, (kb,)))

mf = []
ufr = []
vfr = []
cnt = {}
last_w = {}
first_w = {}
for (P, c, p, kbs) in groups:
    v0 = len(vfr)
    for rho in range(10):
        vfr.append(dict(P=P, c=c, p=p, rho=rho, first=None, last=None))
    for r in range(3):
        for kb in kbs:
            un = len(ufr)
            ufr.append(dict(P=P, c=c, p=p, kb=kb, r=r, first=len(mf), last=len(mf) + 7))
            for y in range(8):
                i = len(mf)
                vn = v0 + y + r
                if vfr[vn]["first"] is None:
                    vfr[vn]["first"] = i
                vfr[vn]["last"] = i
                f, a = acc(p, kb, y)
                uf, ua = uslot(un)
                vf, va = vslot(vn)
                key = (P, p, kb, y)
                n = cnt.get(key, 0)
                cnt[key] = n + 1
                init = n == 0 and p in (1, 2, 3, 4)
                csrc = "0" if init else rr(f, a, 4)
                rd = R(uf, ua, 4) + R(vf, va, 4) + ([] if init else R(f, a, 4))
                rtag = {x: ("U", un) for x in R(uf, ua, 4)}
                rtag.update({x: ("V", vn) for x in R(vf, va, 4)})
                if not init:
                    rtag.update({x: ("M", P, p, kb, y, n) for x in R(f, a, 4)})
                mf.append(Op(f"M {rr(f, a, 4)},{rr(uf, ua, 4)},{rr(vf, va, 4)},{csrc}", "mfma", rd, R(f, a, 4),
                             rtag=rtag, wtag={x: ("M", P, p, kb, y, n + 1) for x in R(f, a, 4)}))
                last_w[key] = i
                first_w.setdefault(key, i)
NM = len(mf)
assert NM == NP * NPASS

def Bgap(P, c):
    if c < 0:
        return Bgap(P - 1, 6) if P > 0 else -1
    if c <= 4:
        return P * NP + 288 * c + 278
    if c == 5:
        return P * NP + 1728 - 6
    return P * NP + NP - 10


def Bmid(P):
    return P * NP + 288 * 4 + 129


fixed = {}
bars = {}
for P in range(NPASS):
    lst = [(c, Bgap(P, c)) for c in range(5)] + [("m", Bmid(P))]
    if P + 1 < NPASS:
        lst += [(5, Bgap(P, 5)), (6, Bgap(P, 6))]
    for c, g in lst:
        op = Op("s_barrier", "bar")
        fixed[g] = [op]
        bars[(P, c)] = op

S_U = []
pro_U = []
cur_su = {}
for n, u in enumerate(ufr):
    off = ((u["c"] * 6 + u["p"]) * 3 + u["kb"]) * 3072
    rel = ufr[n - D]["last"] if n >= D else -BIG
    dst = pro_U if n < D else S_U
    kb = u["kb"]
    if cur_su.get(kb) != off:
        cur_su[kb] = off
        dst.append(Op(f"s_add_u32 s{sU + kb},s{sUW},{off}", "salu", [("s", sUW)], [("s", sU + kb)], release=rel - 6,
                      target=rel - 6, deadline=rel + 4))
    f, a = uslot(n)
    dst.append(Op(f"buffer_load_dwordx4 {rr(f, a, 4)},v{vU},s[{sUs}:{sUs + 3}],s{sU + kb} offen offset:{u['r'] * 1024}", "vld",
                  [("v", vU), ("s", sU + kb)], R(f, a, 4), release=rel, target=rel - 100, deadline=rel + 6,
                  wtag={x: ("U", n) for x in R(f, a, 4)}))

S_V = []
pro_V = []
vbase = 0
offs = [unit_of(v["P"], v["c"], v["p"]) * UNIT + v["rho"] * 256 for v in vfr]
for n, v in enumerate(vfr):
    rel = vfr[n - E]["last"] if n >= E else -BIG
    vis = Bgap(v["P"], v["c"] - 1)
    rel = max(rel, vis)
    dst = pro_V if n < E else S_V
    dl = v["first"] - 5
    if v["p"] in (0, 5):
        if v["P"] + 1 < NPASS:
            dl = min(dl, Bgap(v["P"], 6) - 1)
    elif v["c"] == 4 and v["p"] <= 2:
        dl = min(dl, Bmid(v["P"]) - 1)
    elif v["c"] < 5 or v["P"] + 1 < NPASS:
        dl = min(dl, Bgap(v["P"], v["c"]) - 1)
    assert dl >= rel or n < E, (v, dl, rel)
    tg = max(rel, v["first"] - CFG["vlead"])
    if not (0 <= offs[n] - vbase <= 65535):
        lo = hi = offs[n]
        m = n
        while m < len(offs) and max(hi, offs[m]) - min(lo, offs[m]) <= 65535:
            lo, hi = min(lo, offs[m]), max(hi, offs[m])
            m += 1
        d = (lo - vbase) & 0xFFFFFFFF
        vbase = lo
        for reg in (vRA, vRB):
            dst.append(Op(f"v_add_u32 v{reg},{d:#x},v{reg}", "valu", [("v", reg)], [("v", reg)], release=rel - 3,
                          target=tg - 3, deadline=dl - 2))
    reg = vRA if v["rho"] in (0, 9) else vRB
    f, a = vslot(n)
    u = unit_of(v["P"], v["c"], v["p"])
    dst.append(Op(f"ds_read_b128 {rr(f, a, 4)},v{reg} offset:{offs[n] - vbase}", "dsr", [("v", reg)], R(f, a, 4),
                  release=rel, target=tg, deadline=dl, wtag={x: ("V", n) for x in R(f, a, 4)},
                  lds_r=[(u, (v["P"], v["c"], v["p"]))]))


def tv(i):
    return TMP + i


def xform(t, spare):
    L = []
    t0, t1, t2, t3, t4, t5 = t
    a = spare
    L.append((f"v_fmac_f32 v{t0},s{sM125},v{t2}", [t0, t2], [t0]))
    L.append((f"v_fmac_f32 v{t5},4.0,v{t1}", [t5, t1], [t5]))
    L.append((f"v_fma_f32 v{a},-4.0,v{t2},v{t4}", [t2, t4], [a]))
    L.append((f"v_fmac_f32 v{t0},s{s025},v{t4}", [t0, t4], [t0]))
    L.append((f"v_fmac_f32 v{t5},s{sM5},v{t3}", [t5, t3], [t5]))
    L.append((f"v_sub_f32 v{t4},v{t4},v{t2}", [t4, t2], [t4]))
    L.append((f"v_fma_f32 v{t2},-4.0,v{t1},v{t3}", [t1, t3], [t2]))
    L.append((f"v_sub_f32 v{t3},v{t3},v{t1}", [t3, t1], [t3]))
    L.append((f"v_add_f32 v{t1},v{a},v{t2}", [a, t2], [t1]))
    L.append((f"v_sub_f32 v{a},v{a},v{t2}", [a, t2], [a]))
    L.append((f"v_fma_f32 v{t2},2.0,v{t3},v{t4}", [t3, t4], [t2]))
    L.append((f"v_fmac_f32 v{t4},-2.0,v{t3}", [t3, t4], [t4]))
    return L, [t0, t1, a, t2, t4, t5], t3


def V(text, rd, wr, **kw):
    return Op(text, "valu", [("v", x) for x in rd], [("v", x) for x in wr], **kw)


def main_loads(P, c, j, buf):
    ops = [Op(f"s_add_u32 s{sRaw},s{sRawB},{(32 * P + 2 * j) * ROWB + 64 * c}", "salu", [("s", sRawB)], [("s", sRaw)])]
    lds = {}
    for jj in (0, 5, 1, 2, 3, 4):
        srd, imm = (sXL, 0) if jj == 0 else (sXR, 4 * 384) if jj == 5 else (sX, (jj - 1) * 384)
        o = Op(f"buffer_load_dwordx2 v[{buf + 2 * jj}:{buf + 2 * jj + 1}],v{vRaw},s[{srd}:{srd + 3}],s{sRaw} offen offset:{imm}",
               "vld", [("v", vRaw), ("s", sRaw)], R("v", buf + 2 * jj, 2),
               wtag={x: ("raw", P, c, j, jj) for x in R("v", buf + 2 * jj, 2)})
        ops.append(o)
        lds[jj] = o
    return ops, lds


def main_compute(P, c, j, buf):
    ops = []
    for i in range(2):
        res = []
        spare = tv(6)
        pool = [tv(k) for k in range(6)]
        for half in range(2):
            for jj in (2, 0, 1, 5, 4, 3):
                src = buf + 2 * jj + i
                txt = f"v_lshlrev_b32 v{pool[jj]},16,v{src}" if half == 0 else f"v_and_b32 v{pool[jj]},s{sMask},v{src}"
                ops.append(V(txt, [src], [pool[jj]], rtag={("v", src): ("raw", P, c, j, jj)}))
            L, vr, freed = xform(pool, spare)
            ops += [V(t, a, b) for t, a, b in L]
            res.append(vr)
            spare = freed
            pool = [tv(k) for k in range(7, 13)]
        for p in (0, 5, 1, 2, 3, 4):
            d = buf + 2 * p + i
            ops.append(V(f"v_cvt_pk_bf16_f32 v{d},v{res[0][p]},v{res[1][p]}", [res[0][p], res[1][p]], [d],
                         wtag={("v", d): ("Vp", P, c, j, p)}))
    return ops


def main_writes(P, c, j, buf, rel, rel_late, treg=None):
    ops = []
    wr = {}
    for pa, pb in ((0, 5), (1, 2), (3, 4)):
        ua, ub = unit_of(P, c, pa), unit_of(P, c, pb)
        base, sh = vW, 0
        r = rel_late if pa == 3 else rel
        if max(ua, ub) * 17 + j > 255:
            sh = min(ua, ub)
            base = treg if treg is not None else tv(0)
            ops.append(V(f"v_add_u32 v{base},{sh * UNIT},v{vW}", [vW], [base]))
        o = Op(f"ds_write2st64_b64 v{base},v[{buf + 2 * pa}:{buf + 2 * pa + 1}],v[{buf + 2 * pb}:{buf + 2 * pb + 1}] "
               f"offset0:{(ua - sh) * 17 + j} offset1:{(ub - sh) * 17 + j}", "dsw",
               [("v", base)] + R("v", buf + 2 * pa, 2) + R("v", buf + 2 * pb, 2), [], cost=5, release=r,
               rtag={**{x: ("Vp", P, c, j, pa) for x in R("v", buf + 2 * pa, 2)}, **{x: ("Vp", P, c, j, pb) for x in R("v", buf + 2 * pb, 2)}},
               lds_w=[(ua, (P, c, pa)), (ub, (P, c, pb))])
        ops.append(o)
        wr[pa] = wr[pb] = o
    return ops, wr


def halo_loads(P, c, regs):
    ops = [Op(f"s_add_u32 s{sHalo},s{sCol},{64 * c}", "salu", [("s", sCol)], [("s", sHalo)])]
    for jj in range(6):
        srd, imm = (sXL, 0) if jj == 0 else (sXR, 4 * 384) if jj == 5 else (sX, (jj - 1) * 384)
        ops.append(Op(f"buffer_load_short_d16_hi v{regs + jj},v{vHalo},s[{srd}:{srd + 3}],s{sHalo} offen offset:{imm}",
                      "vld", [("v", vHalo), ("s", sHalo)], [("v", regs + jj)], wtag={("v", regs + jj): ("hraw", P, c, jj)}))
    return ops


def halo_compute(P, c, regs, rel, rel_late):
    ops = []
    L, vr, _ = xform([regs + k for k in range(6)], tv(0))
    seen = set()
    for t, a, b in L:
        rt = {("v", x): ("hraw", P, c, x - regs) for x in a if regs <= x < regs + 6 and x not in seen}
        seen.update(b)
        ops.append(V(t, a, b, rtag=rt))
    pk = {}
    for k, (pa, pb) in enumerate(((0, 5), (1, 2), (3, 4))):
        ops.append(V(f"v_cvt_pk_bf16_f32 v{tv(1 + k)},v{vr[pa]},v{vr[pb]}", [vr[pa], vr[pb]], [tv(1 + k)]))
        pk[pa] = (tv(1 + k), "")
        pk[pb] = (tv(1 + k), "_d16_hi")
    free_raw = ops[-1]
    sh_cur = None
    for p in (0, 5, 1, 2, 3, 4):
        u = unit_of(P, c, p)
        base, off = vHW, u * UNIT
        if off > 65535:
            if sh_cur is None or not (0 <= off - sh_cur <= 65535):
                sh_cur = off
                ops.append(V(f"v_add_u32 v{tv(0)},{off},v{vHW}", [vHW], [tv(0)]))
            base, off = tv(0), off - sh_cur
        ops.append(Op(f"ds_write_b16{pk[p][1]} v{base},v{pk[p][0]} offset:{off}", "dsw", [("v", base), ("v", pk[p][0])], [], cost=2,
                      release=rel_late if p in (3, 4) else rel, lds_w=[(u, (P, c, p))]))
    return ops, free_raw


def halo_addr(P):
    t0, t1 = tv(0), tv(1)
    L = [V(f"v_lshrrev_b32 v{t0},9,v{vU}", [vU], [t0]),
         V(f"v_mul_u32_u24 v{t0},33,v{t0}", [t0], [t0]),
         Op(f"v_add_u32 v{t0},s{sY0},v{t0}", "valu", [("v", t0), ("s", sY0)], [("v", t0)]),
         V(f"v_add_u32 v{t0},{32 * P - 1},v{t0}", [t0], [t0]),
         V(f"v_mul_u32_u24 v{t1},{ROWB},v{t0}", [t0], [t1]),
         V(f"v_cmp_gt_u32 vcc,512,v{t0}", [t0], []),
         V(f"v_bfe_u32 v{t0},v{vU},3,6", [vU], [t0]),
         V(f"v_add_u32 v{t1},v{t1},v{t0}", [t0, t1], [t1]),
         V(f"v_bfrev_b32 v{t0},1", [], [t0]),
         V(f"v_cndmask_b32 v{vHalo},v{t0},v{t1},vcc", [t0, t1], [vHalo])]
    return L


def store(P, y, m, part, f, a, **kw):
    n = 4 if part == 4 else 2
    vo = vSt if part == 4 else vSt2
    return Op(f"buffer_store_dwordx{n} {rr(f, a, n)},v{vo},s[{sO}:{sO + 3}],s{sRow + y} offen offset:{m * 384}", "vst",
              R(f, a, n) + [("v", vo), ("s", sRow + y)], [], cost=2 + n, **kw)


def switch(P, kb):
    ops = []
    done = {}
    for y in range(8):
        rel = last_w[(P, 4, kb, y)] + 3
        a1, a2, m3, m4 = acc(1, kb, y)[1], acc(2, kb, y)[1], acc(3, kb, y)[1], acc(4, kb, y)[1]
        pk = [tv(0), tv(2)] if y % 2 == 0 else [tv(4), tv(6)]
        for h in range(2):
            us, t2s = [tv(8), tv(9)], [tv(10), tv(11)]
            t1 = tv(12)
            for e in range(2):
                i = 2 * h + e
                u, t2 = us[e], t2s[e]
                M3, M4 = m3 + i, m4 + i
                dl0 = first_w[(P, 0, kb, y)] - 2
                dl3 = first_w[(P, 5, kb, y)] - 2
                ops.append(Op(f"v_accvgpr_read_b32 v{t1},a{a1 + i}", "valu", [("a", a1 + i)], [("v", t1)], release=rel,
                              rtag={("a", a1 + i): ("M", P, 1, kb, y, 18)}))
                ops.append(Op(f"v_accvgpr_read_b32 v{t2},a{a2 + i}", "valu", [("a", a2 + i)], [("v", t2)],
                              rtag={("a", a2 + i): ("M", P, 2, kb, y, 18)}))
                ops.append(V(f"v_add_f32 v{u},v{t1},v{t2}", [t1, t2], [u]))
                ops.append(V(f"v_sub_f32 v{t1},v{t1},v{t2}", [t1, t2], [t1]))
                ops.append(V(f"v_add_f32 v{t2},v{M3},v{M4}", [M3, M4], [t2],
                             rtag={("v", M3): ("M", P, 3, kb, y, 18), ("v", M4): ("M", P, 4, kb, y, 18)}))
                ops.append(V(f"v_sub_f32 v{M4},v{M3},v{M4}", [M3, M4], [M4]))
                ops.append(V(f"v_add_f32 v{M3},v{u},v{t2}", [u, t2], [M3], wtag={("v", M3): ("M", P, 0, kb, y, 0)}, deadline=dl0))
                ops.append(V(f"v_fmac_f32 v{u},4.0,v{t2}", [u, t2], [u]))
                ops.append(V(f"v_fma_f32 v{t2},2.0,v{M4},v{t1}", [M4, t1], [t2]))
                ops.append(Op(f"v_fma_f32 v{M4},s{s8},v{M4},v{t1}", "valu", [("v", M4), ("v", t1)], [("v", M4)],
                              wtag={("v", M4): ("M", P, 5, kb, y, 0)}, deadline=dl3))
            for m, src in ((1, t2s), (2, us)):
                if kb < 2:
                    ops.append(V(f"v_cvt_pk_bf16_f32 v{src[0]},v{src[0]},v{src[1]}", src, [src[0]]))
                    pa = acc(m, 0, y)[1] + 2 * kb + h
                    ops.append(Op(f"v_accvgpr_write_b32 a{pa},v{src[0]}", "valu", [("v", src[0])], [("a", pa)],
                                  wtag={("a", pa): ("Y", P, y, m)}))
                else:
                    d = pk[m - 1] + h
                    ops.append(V(f"v_cvt_pk_bf16_f32 v{d},v{src[0]},v{src[1]}", src, [d], wtag={("v", d): ("Y", P, y, m)}))
        if kb == 2:
            for m in (1, 2):
                ops.append(store(P, y, m, 2, "v", pk[m - 1], rtag={x: ("Y", P, y, m) for x in R("v", pk[m - 1], 2)}))
        done[y] = ops[-1]
    return ops, done


def finals(P, kb, p):
    ops = []
    done = {}
    m = 0 if p == 0 else 3
    for y in range(8):
        a = acc(p, kb, y)[1]
        d = acc(p, 0, y)[1] + 2 if kb == 1 else a
        rel = last_w[(P, p, kb, y)] + 3
        for h in range(2):
            ops.append(V(f"v_cvt_pk_bf16_f32 v{d + h},v{a + 2 * h},v{a + 2 * h + 1}", [a + 2 * h, a + 2 * h + 1], [d + h], release=rel,
                         target=rel + 10,
                         rtag={("v", a + 2 * h + 1): ("M", P, p, kb, y, 18)}, wtag={("v", d + h): ("Y", P, y, m)}))
        done[y] = ops[-1]
    return ops, done


S_main, S_ld, S_fin, S_st = [], [], [], []
pro = []

PB = [0, 12, 24, 36]
PH = 48
pro_loads = []
for j in range(4):
    o, _ = main_loads(0, 0, j, PB[j])
    pro_loads += o
pro_loads += halo_loads(0, 0, PH)

chunks = [(P, c) for P in range(NPASS) for c in range(6)][1:]
prev_wr = {0: None, 1: None}
prev_hfree = None
ld_ops = {}


def add_loads(P, c, j):
    b = j % 2
    o, lds = main_loads(P, c, j, BUF[b])
    ld_ops[(P, c, j)] = o[-1]
    pw = prev_wr[b]
    if pw is None:
        pro_loads.extend(o)
        return
    o[0].after = [(pw[0], -1)]
    for jj, op in lds.items():
        op.after = [(pw[jj], 0)]
        op.target = -BIG
    o[0].target = -BIG
    S_ld.extend(o)


def add_halo_loads(P, c, extra_after=()):
    o = halo_loads(P, c, HAL)
    ld_ops[(P, c, "h")] = o[-1]
    if prev_hfree is None:
        pro_loads.extend(o)
        return
    for op in o:
        op.after = [(prev_hfree, 1)] + list(extra_after)
        op.target = -BIG
    S_ld.extend(o)


def add_round(P, c, j, rel, rel_late, dl, compute=True, write=True):
    b = j % 2
    if compute:
        ops = main_compute(P, c, j, BUF[b])
        if ld_ops[(P, c, j)] in S_ld:
            ops[0].after = [(ld_ops[(P, c, j)], CFG["LATG"])]
        S_main.extend(ops)
    if write:
        ops, wr = main_writes(P, c, j, BUF[b], rel, rel_late)
        ops[-1].deadline = dl
        S_main.extend(ops)
        prev_wr[b] = wr


def add_halo(P, c, rel, rel_late, dl):
    global prev_hfree
    ops, fr = halo_compute(P, c, HAL, rel, rel_late)
    if ld_ops[(P, c, "h")] in S_ld:
        ops[0].after = [(ld_ops[(P, c, "h")], CFG["LATG"])]
    ops[-1].deadline = dl
    S_main.extend(ops)
    prev_hfree = fr


def nxt(P, c):
    return (P, c + 1) if c < 5 else ((P + 1, 0) if P + 1 < NPASS else None)


add_loads(0, 1, 0)
add_loads(0, 1, 1)
add_halo_loads(0, 1)
sw_done = {}
for P in range(NPASS):
    for c in range(1, 6):
        rel = Bgap(P, c - 2)
        rel_late = Bmid(P) if c == 5 else rel
        dl = Bgap(P, c - 1) - 3
        n = nxt(P, c)
        order = [0, 1, "h", 2, 3]
        for j in order:
            if j == "h":
                add_halo(P, c, rel, rel_late, dl)
                if n:
                    if n[1] == 0:
                        ha = halo_addr(n[0])
                        S_main.extend(ha)
                        add_halo_loads(n[0], n[1], [(ha[-1], 1)])
                    else:
                        add_halo_loads(*n)
            else:
                add_round(P, c, j, rel, rel_late, dl)
                if j < 2:
                    add_loads(P, c, j + 2)
                elif n:
                    add_loads(n[0], n[1], j - 2)
    more = P + 1 < NPASS
    rel = Bgap(P, 5)
    dl = Bgap(P, 6) - 3
    if more:
        add_round(P + 1, 0, 0, rel, rel, dl, write=False)
    ops, sw_done[(P, 0)] = switch(P, 0)
    S_main.extend(ops)
    if more:
        add_round(P + 1, 0, 0, rel, rel, dl, compute=False)
        add_loads(P + 1, 0, 2)
    for kb in (1, 2):
        ops, sw_done[(P, kb)] = switch(P, kb)
        S_main.extend(ops)
    if more:
        for j in (1, "h", 2, 3):
            if j == "h":
                add_halo(P + 1, 0, rel, rel, dl)
                add_halo_loads(P + 1, 1)
            else:
                add_round(P + 1, 0, j, rel, rel, dl)
                if j < 2:
                    add_loads(P + 1, 0, j + 2)
                else:
                    add_loads(P + 1, 1, j - 2)
    fin_done = {}
    for kb in range(3):
        for p in (0, 5):
            ops, fin_done[(kb, p)] = finals(P, kb, p)
            S_fin.extend(ops)
    sts = []
    nextw = lambda p, kb, y: first_w[(P + 1, p, kb, y)] - 2 if more else BIG
    for y in range(8):
        for m in (1, 2):
            f, a = acc(m, 0, y)
            sts.append(store(P, y, m, 4, f, a, after=[(sw_done[(P, 1)][y], 1)], deadline=nextw(m, 0, y),
                             rtag={x: ("Y", P, y, m) for x in R(f, a, 4)}))
    for p, m in ((0, 0), (5, 3)):
        for y in range(8):
            f, a = acc(p, 0, y)
            sts.append(store(P, y, m, 4, f, a, after=[(fin_done[(1, p)][y], 1)], deadline=nextw(3 if p == 0 else 4, 0, y),
                             rtag={x: ("Y", P, y, m) for x in R(f, a, 4)}))
    for p, m in ((0, 0), (5, 3)):
        for y in range(8):
            f, a = acc(p, 2, y)
            sts.append(store(P, y, m, 2, f, a, after=[(fin_done[(2, p)][y], 1)], deadline=nextw(3 if p == 0 else 4, 2, y),
                             rtag={x: ("Y", P, y, m) for x in R(f, a, 2)}))
    t = P * NP + 1728 + 60.0
    for k, s in enumerate(sts):
        gap = CFG["st_gap"] * (1.0 if k < 32 else 0.5)
        if 8 <= k < 16 + 4:
            gap *= 1.5
        s.release = int(t) if more or k < 32 else -BIG
        s.target = int(t)
        t += gap
    rows = []
    for y in range(8):
        o = Op(f"s_add_u32 s{sRow + y},s{sStB},{(32 * P + y) * ROWB}", "salu", [("s", sStB)], [("s", sRow + y)],
               release=P * NP + 1000 + 3 * y, target=P * NP + 1000 + 3 * y, deadline=P * NP + 1400)
        rows.append(o)
    S_st.extend(rows + sts)


def propagate(st, rate):
    nd = BIG
    for op in reversed(st):
        if nd < BIG:
            nd -= (op.cost if op.cost else 0.0) / rate + (0.34 if op.mem else 0)
        op.deadline = min(op.deadline, nd if nd >= BIG else nd)
        nd = min(nd, op.deadline)
    for op in st:
        if op.deadline < BIG:
            op.deadline = int(op.deadline // 1)


propagate(S_main, 4.0)
propagate(S_st, 8.0)
for s in S_st:
    for a, d in s.after:
        a.deadline = min(a.deadline, s.deadline - d)
propagate(S_fin, 4.0)
propagate(S_main, 4.0)
for op in S_main:
    if op.target is None:
        op.target = op.deadline + 1000

streams = [S_U, S_V, S_ld, S_st, S_fin, S_main]
WIN = 96
bud = [2.0] * (NM // WIN + 1)
for it in range(6):
    for st in streams:
        for op in st:
            op.gap = None
    for op in pro_loads + pro_U + pro_V:
        op.gap = -BIG
    gaps, late = schedule(NM, streams, fixed, lambda g: bud[g // WIN])
    tot = [0] * (NM // 288)
    for g, cur in enumerate(gaps[:-1]):
        tot[g // 288] += max(2, cur["used"])
    est = sum(8 + 4 * max(2, c["used"]) for c in gaps[:-1])
    under = sum(max(0, 2 - c["used"]) for c in gaps[:-1])
    print(f"; iter {it}: est {est} cycles, underfill {under}, late {len(late)}, tail ops {len(gaps[-1]['valu'])}, phases {[round(t / 288, 2) for t in tot]}",
          file=sys.stderr)
    for w in range(len(bud)):
        ph = min(w * WIN // 288, len(tot) - 1)
        bud[w] = max(2.0, 0.5 * bud[w] + 0.5 * tot[ph] / 288)
for op, g in late[:20]:
    print("; late", op.text, op.deadline, g, file=sys.stderr)

em = Emitter()
S = lambda t, rd=(), wr=(): em.raw(t, "salu", [("s", x) for x in rd], [("s", x) for x in wr])
VV = lambda t, rd=(), wr=(), srd=(), swr=(): em.raw(t, "valu", [("v", x) for x in rd] + [("s", x) for x in srd],
                                                    [("v", x) for x in wr] + [("s", x) for x in swr])
S("s_cmp_ge_u32 s2,256")
S("s_cbranch_scc0 L_go\ns_endpgm\nL_go:")
S("s_load_dwordx2 s[4:5],s[0:1],0")
S("s_load_dwordx2 s[6:7],s[0:1],16")
S("s_load_dwordx2 s[52:53],s[0:1],32")
t0, t1, t2, t3, ln = 60, 61, 62, 63, 64
VV(f"v_lshrrev_b32 v{t0},6,v0", [0], [t0])
VV(f"v_and_b32 v{ln},63,v0", [0], [ln])
VV(f"v_readfirstlane_b32 s{sWv},v{t0}", [t0], [], [], [sWv])
VV(f"v_lshrrev_b32 v{t0},4,v{ln}", [ln], [t0])
VV(f"v_bfe_u32 v{t1},v{ln},3,1", [ln], [t1])
VV(f"v_lshl_add_u32 v{t1},v{t0},3,v{t1}", [t0, t1], [t1])
VV(f"v_and_b32 v{t2},7,v{ln}", [ln], [t2])
VV(f"v_mul_u32_u24 v{vRaw},{ROWB},v{t1}", [t1], [vRaw])
VV(f"v_lshl_add_u32 v{vRaw},v{t2},3,v{vRaw}", [t2, vRaw], [vRaw])
VV(f"v_lshlrev_b32 v{vU},4,v{ln}", [ln], [vU])
S("s_and_b32 s54,s2,7", [2], [54])
S("s_lshr_b32 s55,s2,3", [2], [55])
S(f"s_lshl_b32 s{sY0},s54,6", [54], [sY0])
S("s_lshl_b32 s55,s55,4", [55], [55])
S(f"s_lshl_b32 s56,s{sWv},2", [sWv], [56])
S("s_add_u32 s56,s56,s55", [55, 56], [56])
S(f"s_mul_i32 s{sCol},s56,384", [56], [sCol])
S(f"s_mul_i32 s57,s{sY0},{ROWB}", [sY0], [57])
S(f"s_add_u32 s{sRawB},s57,s{sCol}", [57, sCol], [sRawB])
S("s_waitcnt lgkmcnt(0)")
S(f"s_mov_b32 s{sX},s4"); S(f"s_and_b32 s{sX + 1},s5,0xffff"); S(f"s_mov_b32 s{sX + 2},{XB}"); S(f"s_mov_b32 s{sX + 3},0x20000")
S(f"s_sub_u32 s{sXL},s4,384"); S(f"s_subb_u32 s{sXL + 1},s{sX + 1},0")
S("s_cmp_eq_u32 s56,0"); S(f"s_cselect_b32 s{sXL + 2},0,{XB + 384}"); S(f"s_mov_b32 s{sXL + 3},0x20000")
S(f"s_mov_b32 s{sXR},s4"); S(f"s_mov_b32 s{sXR + 1},s{sX + 1}")
S("s_cmp_eq_u32 s56,508"); S(f"s_cselect_b32 s{sXR + 2},0,{XB}"); S(f"s_mov_b32 s{sXR + 3},0x20000")
for op in halo_addr(0):
    em.put(op)
for op in pro_loads[:4 * 7 + 7]:
    em.put(op)
S(f"s_mov_b32 s{sUs},s52"); S(f"s_and_b32 s{sUs + 1},s53,0xffff"); S(f"s_mov_b32 s{sUs + 2},{4 * UWAVE}"); S(f"s_mov_b32 s{sUs + 3},0x20000")
S(f"s_mul_i32 s{sUW},s{sWv},{UWAVE}", [sWv], [sUW])
for op in pro_U:
    em.put(op)
for op in pro_loads[4 * 7 + 7:]:
    em.put(op)
S(f"s_mov_b32 s{sO},s6"); S(f"s_and_b32 s{sO + 1},s7,0xffff"); S(f"s_mov_b32 s{sO + 2},{XB}"); S(f"s_mov_b32 s{sO + 3},0x20000")
S(f"s_mov_b32 s{sM5},{fbits(-5.0):#x}"); S(f"s_mov_b32 s{s8},{fbits(8.0):#x}"); S(f"s_mov_b32 s{sMask},0xffff0000")
S(f"s_mov_b32 s{sM125},{fbits(-1.25):#x}"); S(f"s_mov_b32 s{s025},{fbits(0.25):#x}")
S("s_mul_i32 s58,s55,384", [55], [58])
S(f"s_mul_i32 s59,s{sWv},96", [sWv], [59])
S(f"s_add_u32 s{sStB},s57,s58", [57, 58], [sStB])
S(f"s_add_u32 s{sStB},s{sStB},s59", [sStB, 59], [sStB])
S(f"s_lshl_b32 s59,s{sWv},6", [sWv], [59])
VV(f"v_lshlrev_b32 v{vW},8,v{t1}", [t1], [vW])
VV(f"v_and_b32 v{t3},1,v{t0}", [t0], [t3])
VV(f"v_xor_b32 v{t3},1,v{t3}", [t3], [t3])
VV(f"v_lshlrev_b32 v{t3},2,v{t3}", [t3], [t3])
VV(f"v_xor_b32 v{t3},v{t3},v{t2}", [t3, t2], [t3])
VV(f"v_lshl_add_u32 v{vW},v{t3},3,v{vW}", [t3, vW], [vW])
VV(f"v_add_u32 v{vW},s59,v{vW}", [vW], [vW], [59])
VV(f"v_add_u32 v{vW},256,v{vW}", [vW], [vW])
VV(f"v_lshrrev_b32 v{t0},5,v{ln}", [ln], [t0])
VV(f"v_mul_u32_u24 v{vHW},{33 * 256},v{t0}", [t0], [vHW])
VV(f"v_lshlrev_b32 v{t0},5,v{t0}", [t0], [t0])
VV(f"v_bfe_u32 v{t1},v{vU},3,6", [vU], [t1])
VV(f"v_xor_b32 v{t1},v{t1},v{t0}", [t0, t1], [t1])
VV(f"v_add3_u32 v{vHW},v{vHW},v{t1},s59", [vHW, t1], [vHW], [59])
VV(f"v_bfe_u32 v{t0},v{ln},2,2", [ln], [t0])
VV(f"v_and_b32 v{t1},3,v{ln}", [ln], [t1])
VV(f"v_lshrrev_b32 v{t2},4,v{ln}", [ln], [t2])
VV(f"v_lshlrev_b32 v{vRA},11,v{t0}", [t0], [vRA])
VV(f"v_lshl_add_u32 v{vRA},v{t1},6,v{vRA}", [t1, vRA], [vRA])
VV(f"v_and_b32 v{t3},1,v{t0}", [t0], [t3])
VV(f"v_lshlrev_b32 v{t3},1,v{t3}", [t3], [t3])
VV(f"v_xor_b32 v{t3},v{t3},v{t2}", [t3, t2], [t3])
VV(f"v_lshl_add_u32 v{vRA},v{t3},4,v{vRA}", [t3, vRA], [vRA])
VV(f"v_xor_b32 v{vRB},32,v{vRA}", [vRA], [vRB])
VV(f"v_mul_u32_u24 v{vSt2},{8 * ROWB},v{t0}", [t0], [vSt2])
VV(f"v_mul_u32_u24 v{t1},1536,v{t1}", [t1], [t1])
VV(f"v_add_u32 v{vSt2},v{vSt2},v{t1}", [vSt2, t1], [vSt2])
VV(f"v_lshl_add_u32 v{vSt},v{t2},4,v{vSt2}", [t2, vSt2], [vSt])
VV(f"v_lshl_add_u32 v{vSt2},v{t2},3,v{vSt2}", [t2, vSt2], [vSt2])
VV(f"v_add_u32 v{vSt2},64,v{vSt2}", [vSt2], [vSt2])
for j in range(4):
    for op in main_compute(0, 0, j, PB[j]):
        em.put(op)
    for op in main_writes(0, 0, j, PB[j], -BIG, -BIG)[0]:
        em.put(op)
for op in halo_compute(0, 0, PH, -BIG, -BIG)[0]:
    em.put(op)
em.put(Op("s_barrier", "bar"))
for op in pro_V:
    em.put(op)
nfree = 0
for g in range(NM):
    em.put(mf[g])
    cur = gaps[g]
    body = cur["sc"] + cur["mem"] + cur["valu"]
    if g < NM - 1:
        w = em.wait_for(body + [mf[g + 1]]) if not any(o.kind == "bar" for o in cur["sc"]) else False
        if w and cur["sc"]:
            nfree += 1
    for op in body:
        em.put(op)
print(f"; waits {em.nwait} nops {em.nnop} wait+scalar clashes {nfree} instrs {len(em.out)}", file=sys.stderr)
main_lines = em.lines()

U = []
A = U.append
A("s_cmp_ge_u32 s2,216\ns_cbranch_scc1 L_uend")
A("s_load_dwordx2 s[4:5],s[0:1],8\ns_load_dwordx2 s[6:7],s[0:1],32")
A("s_mul_hi_u32 s20,s2,0x55555556\ns_mul_i32 s21,s20,3\ns_sub_u32 s21,s2,s21")
A("s_mul_hi_u32 s22,s20,0x55555556\ns_mul_i32 s23,s22,3\ns_sub_u32 s23,s20,s23")
A("s_mul_hi_u32 s24,s22,0x2aaaaaab\ns_mul_i32 s25,s24,6\ns_sub_u32 s25,s22,s25")
A("v_and_b32 v1,15,v0\nv_lshrrev_b32 v2,4,v0")
A("v_lshrrev_b32 v3,2,v1\nv_and_b32 v4,3,v1\nv_lshl_add_u32 v3,v3,3,v4\ns_lshl_b32 s26,s23,2\nv_add_u32 v3,s26,v3\nv_add_u32 v4,32,v1")
A("s_cmp_eq_u32 s23,2\ns_cselect_b64 vcc,-1,0\nv_cndmask_b32 v3,v3,v4,vcc")
A("s_mul_i32 s26,s24,48\nv_add_u32 v3,s26,v3\nv_lshlrev_b32 v3,1,v3")
A("v_mul_u32_u24 v4,3072,v2\nv_add_u32 v3,v3,v4")
A("s_mul_i32 s26,s21,221184\ns_mul_i32 s27,s25,12288\ns_add_u32 s26,s26,s27\ns_add_u32 s27,s26,73728\ns_add_u32 s28,s27,73728")
A("s_waitcnt lgkmcnt(0)")
A("s_mov_b32 s8,s4\ns_and_b32 s9,s5,0xffff\ns_mov_b32 s10,663552\ns_mov_b32 s11,0x20000")
A(f"s_mov_b32 s12,s6\ns_and_b32 s13,s7,0xffff\ns_mov_b32 s14,{4 * UWAVE}\ns_mov_b32 s15,0x20000")
for s in range(3):
    for e in range(8):
        A(f"buffer_load_short_d16_hi v{8 + s * 8 + e},v3,s[8:11],s{26 + s} offen offset:{e * 384}")
A(f"s_mul_i32 s30,s24,{UWAVE}\ns_mul_i32 s31,s25,{18 * 3072}\ns_add_u32 s30,s30,s31\ns_mul_i32 s31,s23,3072\ns_add_u32 s30,s30,s31\ns_lshl_b32 s31,s21,10\ns_add_u32 s30,s30,s31")
A("v_lshlrev_b32 v5,4,v0")
A(f"s_mov_b32 s33,{fbits(-1 / 6):#x}\ns_mov_b32 s34,{fbits(1 / 24):#x}\ns_mov_b32 s35,{fbits(1 / 6):#x}\ns_mov_b32 s36,{fbits(1 / 12):#x}")
A("s_waitcnt vmcnt(0)")
for e in range(8):
    g0, g1, g2 = 8 + e, 16 + e, 24 + e
    A(f"v_add_f32 v6,v{g0},v{g2}\nv_add_f32 v{32 + e},v6,v{g1}\nv_sub_f32 v{40 + e},v6,v{g1}")
    A(f"v_mul_f32 v{32 + e},s33,v{32 + e}\nv_mul_f32 v{40 + e},s33,v{40 + e}")
    A(f"v_mul_f32 v6,s34,v{g0}\nv_fmac_f32 v6,s35,v{g2}\nv_fma_f32 v{48 + e},s36,v{g1},v6\nv_fma_f32 v{56 + e},-s36,v{g1},v6")
for p, src in ((0, 8), (1, 32), (2, 40), (3, 48), (4, 56), (5, 24)):
    for e in range(4):
        A(f"v_cvt_pk_bf16_f32 v{64 + 4 * p + e},v{src + 2 * e},v{src + 2 * e + 1}")
    A(f"s_add_u32 s31,s30,{p * 9216}")
    A(f"buffer_store_dwordx4 v[{64 + 4 * p}:{67 + 4 * p}],v5,s[12:15],s31 offen")
A("L_uend:\ns_endpgm")

KD = """.amdhsa_kernel {n}
  .amdhsa_next_free_vgpr {v}
  .amdhsa_next_free_sgpr {s}
  .amdhsa_accum_offset {a}
  .amdhsa_group_segment_fixed_size 0
  .amdhsa_kernarg_size 40
  .amdhsa_user_sgpr_count 2
  .amdhsa_user_sgpr_kernarg_segment_ptr 1
  .amdhsa_system_sgpr_workgroup_id_x 1
  .amdhsa_float_denorm_mode_32 3
.end_amdhsa_kernel"""
out = []
out.append("; @launch kernel=wtrans_kernel grid=(216,1,1) block=(64,1,1) lds=0")
out.append(f"; @launch kernel=standalone__winograd__vision_kernel grid=(256,1,1) block=(256,1,1) lds={18 * UNIT}")
out.append('.amdgcn_target "amdgcn-amd-amdhsa--gfx950"')
out.append(".macro M d,a,b,c\nv_mfma_f32_16x16x32_bf16 \\d,\\a,\\b,\\c\n.endm")
out.append(".text\n.globl wtrans_kernel\n.p2align 8\n.type wtrans_kernel,@function\nwtrans_kernel:")
out += U
out.append(".globl standalone__winograd__vision_kernel\n.p2align 8\n.type standalone__winograd__vision_kernel,@function")
out.append("standalone__winograd__vision_kernel:")
out += main_lines
out.append("s_endpgm")
out.append('.section .rodata,"a"\n.p2align 6')
out.append(KD.format(n="wtrans_kernel", v=96, s=48, a=96))
out.append(".p2align 6")
out.append(KD.format(n="standalone__winograd__vision_kernel", v=512, s=64, a=256))
print("\n".join(out))
```

```python
import sys
import struct
from sched import Op, R, schedule, Emitter, BIG

CFG = dict(D=11, E=8, LATG=30, st_gap=17.0, vlead=7, dbg=0, adj=0, stf='', fake=0, nost=0, nte=0, nto=0, uf='', ctouch=0)
for a in sys.argv[1:]:
    k, v = a.split("=")
    CFG[k] = type(CFG[k])(v) if k in CFG else v

XB = 100663296
ROWB = 196608
UNIT = 8704
NP = 2592
NPASS = 2
UWAVE = 324 * 1024
fbits = lambda x: struct.unpack("<I", struct.pack("<f", x))[0]

D, E = CFG["D"], CFG["E"]
BUF = [192, 204]
UV0 = 216
NUV = D - 8
TMP = UV0 + 4 * NUV
HAL = TMP + 13
vRaw, vHalo, vW, vHW, vRA, vRB, vU, vSt, vSt2 = range(HAL + 6, HAL + 15)
assert vSt2 <= 255, vSt2
AV0, AU0 = 192, 192 + 4 * E
NUA = (256 - AU0) // 4
assert NUA + NUV >= D
sX, sXL, sXR, sUs, sO = 8, 12, 16, 20, 24
sRaw, sHalo, sRawB, sCol, sUW = 28, 29, 30, 31, 44
sRow = 32
sM5, s8, sMask, sM125, s025 = 40, 41, 42, 43, 45
sU = 46
sY0, sWv = 49, 50
sStB = 51


def acc(p, kb, y):
    o = (kb * 8 + y) * 4
    return {1: ("a", o), 2: ("a", 96 + o), 3: ("v", o), 4: ("v", 96 + o), 0: ("v", o), 5: ("v", 96 + o)}[p]


def uslot(n):
    s = n % D
    return ("a", AU0 + 4 * s) if s < NUA else ("v", UV0 + 4 * (s - NUA))


def vslot(n):
    return ("a", AV0 + 4 * (n % E))


rr = lambda f, a, n: f"{f}[{a}:{a + n - 1}]" if n > 1 else f"{f}{a}"


def unit_of(P, c, p):
    x45 = (6, 7) if P % 2 == 0 else (0, 1)
    o0 = (0, 1) if P % 2 == 0 else (6, 7)
    if p in (0, 5):
        i = 0 if p == 0 else 1
        if c == 0:
            return o0[i]
        if c == 5:
            return 8 + i
        return 10 + 2 * (c - 1) + i
    if c % 2 == 0:
        return 2 + (p - 1)
    if c < 5:
        return (x45[0], x45[1], 8, 9)[p - 1]
    return (x45[0], x45[1], 2, 3)[p - 1]


groups = []
for P in range(NPASS):
    for c in range(5):
        for p in (1, 2, 3, 4):
            groups.append((P, c, p, (0, 1, 2)))
    for p in (1, 2, 3, 4):
        groups.append((P, 5, p, (0,)))
    for p in (1, 2, 3, 4):
        groups.append((P, 5, p, (1, 2)))
    for kb in range(3):
        for p in (0, 5):
            for c in range(6):
                groups.append((P, c, p, (kb,)))

mf = []
ufr = []
vfr = []
cnt = {}
last_w = {}
first_w = {}
for (P, c, p, kbs) in groups:
    v0 = len(vfr)
    for rho in range(10):
        vfr.append(dict(P=P, c=c, p=p, rho=rho, first=None, last=None))
    for r in range(3):
        for kb in kbs:
            un = len(ufr)
            ufr.append(dict(P=P, c=c, p=p, kb=kb, r=r, first=len(mf), last=len(mf) + 7))
            for y in range(8):
                i = len(mf)
                vn = v0 + y + r
                if vfr[vn]["first"] is None:
                    vfr[vn]["first"] = i
                vfr[vn]["last"] = i
                f, a = acc(p, kb, y)
                uf, ua = uslot(un)
                vf, va = vslot(vn)
                key = (P, p, kb, y)
                n = cnt.get(key, 0)
                cnt[key] = n + 1
                init = n == 0 and p in (1, 2, 3, 4)
                csrc = "0" if init else rr(f, a, 4)
                rd = R(uf, ua, 4) + R(vf, va, 4) + ([] if init else R(f, a, 4))
                rtag = {x: ("U", un) for x in R(uf, ua, 4)}
                rtag.update({x: ("V", vn) for x in R(vf, va, 4)})
                if not init:
                    rtag.update({x: ("M", P, p, kb, y, n) for x in R(f, a, 4)})
                mf.append(Op(f"M {rr(f, a, 4)},{rr(uf, ua, 4)},{rr(vf, va, 4)},{csrc}", "mfma", rd, R(f, a, 4),
                             rtag=rtag, wtag={x: ("M", P, p, kb, y, n + 1) for x in R(f, a, 4)}))
                last_w[key] = i
                first_w.setdefault(key, i)
NM = len(mf)
assert NM == NP * NPASS

def Bgap(P, c):
    if c < 0:
        return Bgap(P - 1, 6) if P > 0 else -1
    if c <= 4:
        return P * NP + 288 * c + 278
    if c == 5:
        return P * NP + 1728 - 6
    return P * NP + NP - 10


def Bmid(P):
    return P * NP + 288 * 4 + 129


fixed = {}
bars = {}
for P in range(NPASS):
    lst = [(c, Bgap(P, c)) for c in range(5)] + [("m", Bmid(P))]
    if P + 1 < NPASS:
        lst += [(5, Bgap(P, 5)), (6, Bgap(P, 6))]
    for c, g in lst:
        op = Op("s_barrier", "bar")
        fixed[g] = [op]
        bars[(P, c)] = op

S_U = []
pro_U = []
cur_su = {}
for n, u in enumerate(ufr):
    off = ((u["c"] * 6 + u["p"]) * 3 + u["kb"]) * 3072
    rel = ufr[n - D]["last"] if n >= D else -BIG
    dst = pro_U if n < D else S_U
    kb = u["kb"]
    if cur_su.get(kb) != off:
        cur_su[kb] = off
        dst.append(Op(f"s_add_u32 s{sU + kb},s{sUW},{off}", "salu", [("s", sUW)], [("s", sU + kb)], release=rel - 6,
                      target=rel - 6, deadline=rel + 4))
    f, a = uslot(n)
    dst.append(Op(f"buffer_load_dwordx4 {rr(f, a, 4)},v{vU},s[{sUs}:{sUs + 3}],s{sU + kb} offen offset:{u['r'] * 1024}{CFG['uf']}", "vld",
                  [("v", vU), ("s", sU + kb)], R(f, a, 4), release=rel, target=rel - 100, deadline=rel + 6,
                  wtag={x: ("U", n) for x in R(f, a, 4)}))

S_V = []
pro_V = []
vbase = 0
offs = [unit_of(v["P"], v["c"], v["p"]) * UNIT + v["rho"] * 256 for v in vfr]
for n, v in enumerate(vfr):
    rel = vfr[n - E]["last"] if n >= E else -BIG
    vis = Bgap(v["P"], v["c"] - 1)
    rel = max(rel, vis)
    dst = pro_V if n < E else S_V
    dl = v["first"] - 5
    if v["p"] in (0, 5):
        if v["P"] + 1 < NPASS:
            dl = min(dl, Bgap(v["P"], 6) - 1)
    elif v["c"] == 4 and v["p"] <= 2:
        dl = min(dl, Bmid(v["P"]) - 1)
    elif v["c"] < 5 or v["P"] + 1 < NPASS:
        dl = min(dl, Bgap(v["P"], v["c"]) - 1)
    assert dl >= rel or n < E, (v, dl, rel)
    tg = max(rel, v["first"] - CFG["vlead"])
    if not (0 <= offs[n] - vbase <= 65535):
        lo = hi = offs[n]
        m = n
        while m < len(offs) and max(hi, offs[m]) - min(lo, offs[m]) <= 65535:
            lo, hi = min(lo, offs[m]), max(hi, offs[m])
            m += 1
        d = (lo - vbase) & 0xFFFFFFFF
        vbase = lo
        for reg in (vRA, vRB):
            dst.append(Op(f"v_add_u32 v{reg},{d:#x},v{reg}", "valu", [("v", reg)], [("v", reg)], release=rel - 3,
                          target=tg - 3, deadline=dl - 2))
    reg = vRA if v["rho"] in (0, 9) else vRB
    f, a = vslot(n)
    u = unit_of(v["P"], v["c"], v["p"])
    dst.append(Op(f"ds_read_b128 {rr(f, a, 4)},v{reg} offset:{offs[n] - vbase}", "dsr", [("v", reg)], R(f, a, 4),
                  release=rel, target=tg, deadline=dl, wtag={x: ("V", n) for x in R(f, a, 4)},
                  lds_r=[(u, (v["P"], v["c"], v["p"]))]))


def tv(i):
    return TMP + i


def xform(t, spare):
    L = []
    t0, t1, t2, t3, t4, t5 = t
    a = spare
    L.append((f"v_fmac_f32 v{t0},s{sM125},v{t2}", [t0, t2], [t0]))
    L.append((f"v_fmac_f32 v{t5},4.0,v{t1}", [t5, t1], [t5]))
    L.append((f"v_fma_f32 v{a},-4.0,v{t2},v{t4}", [t2, t4], [a]))
    L.append((f"v_fmac_f32 v{t0},s{s025},v{t4}", [t0, t4], [t0]))
    L.append((f"v_fmac_f32 v{t5},s{sM5},v{t3}", [t5, t3], [t5]))
    L.append((f"v_sub_f32 v{t4},v{t4},v{t2}", [t4, t2], [t4]))
    L.append((f"v_fma_f32 v{t2},-4.0,v{t1},v{t3}", [t1, t3], [t2]))
    L.append((f"v_sub_f32 v{t3},v{t3},v{t1}", [t3, t1], [t3]))
    L.append((f"v_add_f32 v{t1},v{a},v{t2}", [a, t2], [t1]))
    L.append((f"v_sub_f32 v{a},v{a},v{t2}", [a, t2], [a]))
    L.append((f"v_fma_f32 v{t2},2.0,v{t3},v{t4}", [t3, t4], [t2]))
    L.append((f"v_fmac_f32 v{t4},-2.0,v{t3}", [t3, t4], [t4]))
    return L, [t0, t1, a, t2, t4, t5], t3


def V(text, rd, wr, **kw):
    return Op(text, "valu", [("v", x) for x in rd], [("v", x) for x in wr], **kw)


def NT(c):
    return " nt" if CFG["nto" if c % 2 else "nte"] else ""


def main_loads(P, c, j, buf):
    ops = [Op(f"s_add_u32 s{sRaw},s{sRawB},{(32 * P + 2 * j) * ROWB + 64 * c}", "salu", [("s", sRawB)], [("s", sRaw)])]
    lds = {}
    for jj in (0, 5, 1, 2, 3, 4):
        srd, imm = (sXL, 0) if jj == 0 else (sXR, 4 * 384) if jj == 5 else (sX, (jj - 1) * 384)
        o = Op(f"buffer_load_dwordx2 v[{buf + 2 * jj}:{buf + 2 * jj + 1}],v{vRaw},s[{srd}:{srd + 3}],s{sRaw} offen offset:{imm}{NT(c)}",
               "vld", [("v", vRaw), ("s", sRaw)], R("v", buf + 2 * jj, 2),
               wtag={x: ("raw", P, c, j, jj) for x in R("v", buf + 2 * jj, 2)})
        ops.append(o)
        lds[jj] = o
    return ops, lds


def main_compute(P, c, j, buf):
    ops = []
    for i in range(2):
        res = []
        spare = tv(6)
        pool = [tv(k) for k in range(6)]
        for half in range(2):
            for jj in (2, 0, 1, 5, 4, 3):
                src = buf + 2 * jj + i
                txt = f"v_lshlrev_b32 v{pool[jj]},16,v{src}" if half == 0 else f"v_and_b32 v{pool[jj]},s{sMask},v{src}"
                ops.append(V(txt, [src], [pool[jj]], rtag={("v", src): ("raw", P, c, j, jj)}))
            L, vr, freed = xform(pool, spare)
            ops += [V(t, a, b) for t, a, b in L]
            res.append(vr)
            spare = freed
            pool = [tv(k) for k in range(7, 13)]
        for p in (0, 5, 1, 2, 3, 4):
            d = buf + 2 * p + i
            ops.append(V(f"v_cvt_pk_bf16_f32 v{d},v{res[0][p]},v{res[1][p]}", [res[0][p], res[1][p]], [d],
                         wtag={("v", d): ("Vp", P, c, j, p)}))
    return ops


def main_writes(P, c, j, buf, rel, rel_late, treg=None):
    ops = []
    wr = {}
    for pa, pb in ((0, 5), (1, 2), (3, 4)):
        ua, ub = unit_of(P, c, pa), unit_of(P, c, pb)
        base, sh = vW, 0
        r = rel_late if pa == 3 else rel
        if max(ua, ub) * 17 + j > 255:
            sh = min(ua, ub)
            base = treg if treg is not None else tv(0)
            ops.append(V(f"v_add_u32 v{base},{sh * UNIT},v{vW}", [vW], [base]))
        o = Op(f"ds_write2st64_b64 v{base},v[{buf + 2 * pa}:{buf + 2 * pa + 1}],v[{buf + 2 * pb}:{buf + 2 * pb + 1}] "
               f"offset0:{(ua - sh) * 17 + j} offset1:{(ub - sh) * 17 + j}", "dsw",
               [("v", base)] + R("v", buf + 2 * pa, 2) + R("v", buf + 2 * pb, 2), [], cost=5, release=r,
               rtag={**{x: ("Vp", P, c, j, pa) for x in R("v", buf + 2 * pa, 2)}, **{x: ("Vp", P, c, j, pb) for x in R("v", buf + 2 * pb, 2)}},
               lds_w=[(ua, (P, c, pa)), (ub, (P, c, pb))])
        ops.append(o)
        wr[pa] = wr[pb] = o
    return ops, wr


def halo_loads(P, c, regs):
    ops = [Op(f"s_add_u32 s{sHalo},s{sCol},{64 * c}", "salu", [("s", sCol)], [("s", sHalo)])]
    for jj in range(6):
        srd, imm = (sXL, 0) if jj == 0 else (sXR, 4 * 384) if jj == 5 else (sX, (jj - 1) * 384)
        ops.append(Op(f"buffer_load_short_d16_hi v{regs + jj},v{vHalo},s[{srd}:{srd + 3}],s{sHalo} offen offset:{imm}{NT(c)}",
                      "vld", [("v", vHalo), ("s", sHalo)], [("v", regs + jj)], wtag={("v", regs + jj): ("hraw", P, c, jj)}))
    return ops


def halo_compute(P, c, regs, rel, rel_late):
    ops = []
    L, vr, _ = xform([regs + k for k in range(6)], tv(0))
    seen = set()
    for t, a, b in L:
        rt = {("v", x): ("hraw", P, c, x - regs) for x in a if regs <= x < regs + 6 and x not in seen}
        seen.update(b)
        ops.append(V(t, a, b, rtag=rt))
    pk = {}
    for k, (pa, pb) in enumerate(((0, 5), (1, 2), (3, 4))):
        ops.append(V(f"v_cvt_pk_bf16_f32 v{tv(1 + k)},v{vr[pa]},v{vr[pb]}", [vr[pa], vr[pb]], [tv(1 + k)]))
        pk[pa] = (tv(1 + k), "")
        pk[pb] = (tv(1 + k), "_d16_hi")
    free_raw = ops[-1]
    sh_cur = None
    for p in (0, 5, 1, 2, 3, 4):
        u = unit_of(P, c, p)
        base, off = vHW, u * UNIT
        if off > 65535:
            if sh_cur is None or not (0 <= off - sh_cur <= 65535):
                sh_cur = off
                ops.append(V(f"v_add_u32 v{tv(0)},{off},v{vHW}", [vHW], [tv(0)]))
            base, off = tv(0), off - sh_cur
        ops.append(Op(f"ds_write_b16{pk[p][1]} v{base},v{pk[p][0]} offset:{off}", "dsw", [("v", base), ("v", pk[p][0])], [], cost=2,
                      release=rel_late if p in (3, 4) else rel, lds_w=[(u, (P, c, p))]))
    return ops, free_raw


def halo_addr(P):
    t0, t1 = tv(0), tv(1)
    L = [V(f"v_lshrrev_b32 v{t0},9,v{vU}", [vU], [t0]),
         V(f"v_mul_u32_u24 v{t0},33,v{t0}", [t0], [t0]),
         Op(f"v_add_u32 v{t0},s{sY0},v{t0}", "valu", [("v", t0), ("s", sY0)], [("v", t0)]),
         V(f"v_add_u32 v{t0},{32 * P - 1},v{t0}", [t0], [t0]),
         V(f"v_mul_u32_u24 v{t1},{ROWB},v{t0}", [t0], [t1]),
         V(f"v_cmp_gt_u32 vcc,512,v{t0}", [t0], []),
         V(f"v_bfe_u32 v{t0},v{vU},3,6", [vU], [t0]),
         V(f"v_add_u32 v{t1},v{t1},v{t0}", [t0, t1], [t1]),
         V(f"v_bfrev_b32 v{t0},1", [], [t0]),
         V(f"v_cndmask_b32 v{vHalo},v{t0},v{t1},vcc", [t0, t1], [vHalo])]
    return L


def store(P, y, m, part, f, a, **kw):
    n = 4 if part == 4 else 2
    vo = vSt if part == 4 else vSt2
    if CFG["nost"]:
        return Op("v_nop", "valu", R(f, a, n), [], cost=1, **kw)
    return Op(f"buffer_store_dwordx{n} {rr(f, a, n)},v{vo},s[{sO}:{sO + 3}],s{sRow + y} offen offset:{(m * 384) if not CFG['fake'] else m * n * 256}{CFG['stf']}", "vst",
              R(f, a, n) + [("v", vo), ("s", sRow + y)], [], cost=2 + n, **kw)


def switch(P, kb):
    ops = []
    done = {}
    for y in range(8):
        rel = last_w[(P, 4, kb, y)] + 3
        a1, a2, m3, m4 = acc(1, kb, y)[1], acc(2, kb, y)[1], acc(3, kb, y)[1], acc(4, kb, y)[1]
        pk = [tv(0), tv(2)] if y % 2 == 0 else [tv(4), tv(6)]
        for h in range(2):
            us, t2s = [tv(8), tv(9)], [tv(10), tv(11)]
            t1 = tv(12)
            for e in range(2):
                i = 2 * h + e
                u, t2 = us[e], t2s[e]
                M3, M4 = m3 + i, m4 + i
                dl0 = first_w[(P, 0, kb, y)] - 2
                dl3 = first_w[(P, 5, kb, y)] - 2
                ops.append(Op(f"v_accvgpr_read_b32 v{t1},a{a1 + i}", "valu", [("a", a1 + i)], [("v", t1)], release=rel,
                              rtag={("a", a1 + i): ("M", P, 1, kb, y, 18)}))
                ops.append(Op(f"v_accvgpr_read_b32 v{t2},a{a2 + i}", "valu", [("a", a2 + i)], [("v", t2)],
                              rtag={("a", a2 + i): ("M", P, 2, kb, y, 18)}))
                ops.append(V(f"v_add_f32 v{u},v{t1},v{t2}", [t1, t2], [u]))
                ops.append(V(f"v_sub_f32 v{t1},v{t1},v{t2}", [t1, t2], [t1]))
                ops.append(V(f"v_add_f32 v{t2},v{M3},v{M4}", [M3, M4], [t2],
                             rtag={("v", M3): ("M", P, 3, kb, y, 18), ("v", M4): ("M", P, 4, kb, y, 18)}))
                ops.append(V(f"v_sub_f32 v{M4},v{M3},v{M4}", [M3, M4], [M4]))
                ops.append(V(f"v_add_f32 v{M3},v{u},v{t2}", [u, t2], [M3], wtag={("v", M3): ("M", P, 0, kb, y, 0)}, deadline=dl0))
                ops.append(V(f"v_fmac_f32 v{u},4.0,v{t2}", [u, t2], [u]))
                ops.append(V(f"v_fma_f32 v{t2},2.0,v{M4},v{t1}", [M4, t1], [t2]))
                ops.append(Op(f"v_fma_f32 v{M4},s{s8},v{M4},v{t1}", "valu", [("v", M4), ("v", t1)], [("v", M4)],
                              wtag={("v", M4): ("M", P, 5, kb, y, 0)}, deadline=dl3))
            for m, src in ((1, t2s), (2, us)):
                if kb < 2:
                    ops.append(V(f"v_cvt_pk_bf16_f32 v{src[0]},v{src[0]},v{src[1]}", src, [src[0]]))
                    pa = acc(m, 0, y)[1] + 2 * kb + h
                    ops.append(Op(f"v_accvgpr_write_b32 a{pa},v{src[0]}", "valu", [("v", src[0])], [("a", pa)],
                                  wtag={("a", pa): ("Y", P, y, m)}))
                else:
                    d = pk[m - 1] + h
                    ops.append(V(f"v_cvt_pk_bf16_f32 v{d},v{src[0]},v{src[1]}", src, [d], wtag={("v", d): ("Y", P, y, m)}))
        if kb == 2:
            for m in (1, 2):
                if CFG["adj"]:
                    f, a = acc(m, 0, y)
                    ops.append(store(P, y, m, 4, f, a, rtag={x: ("Y", P, y, m) for x in R(f, a, 4)}))
                ops.append(store(P, y, m, 2, "v", pk[m - 1], rtag={x: ("Y", P, y, m) for x in R("v", pk[m - 1], 2)}))
        done[y] = ops[-1]
    return ops, done


def finals(P, kb, p):
    ops = []
    done = {}
    m = 0 if p == 0 else 3
    for y in range(8):
        a = acc(p, kb, y)[1]
        d = acc(p, 0, y)[1] + 2 if kb == 1 else a
        rel = last_w[(P, p, kb, y)] + 3
        for h in range(2):
            ops.append(V(f"v_cvt_pk_bf16_f32 v{d + h},v{a + 2 * h},v{a + 2 * h + 1}", [a + 2 * h, a + 2 * h + 1], [d + h], release=rel,
                         target=rel + 10,
                         rtag={("v", a + 2 * h + 1): ("M", P, p, kb, y, 18)}, wtag={("v", d + h): ("Y", P, y, m)}))
        done[y] = ops[-1]
    return ops, done


S_main, S_ld, S_fin, S_st = [], [], [], []
pro = []

PB = [0, 12, 24, 36]
PH = 48
pro_loads = []
for j in range(4):
    o, _ = main_loads(0, 0, j, PB[j])
    pro_loads += o
pro_loads += halo_loads(0, 0, PH)

chunks = [(P, c) for P in range(NPASS) for c in range(6)][1:]
prev_wr = {0: None, 1: None}
prev_hfree = None
ld_ops = {}


def add_loads(P, c, j):
    b = j % 2
    o, lds = main_loads(P, c, j, BUF[b])
    ld_ops[(P, c, j)] = o[-1]
    pw = prev_wr[b]
    if pw is None:
        pro_loads.extend(o)
        return
    o[0].after = [(pw[0], -1)]
    for jj, op in lds.items():
        op.after = [(pw[jj], 0)]
        op.target = -BIG
    o[0].target = -BIG
    S_ld.extend(o)


def add_halo_loads(P, c, extra_after=()):
    o = halo_loads(P, c, HAL)
    ld_ops[(P, c, "h")] = o[-1]
    if prev_hfree is None:
        pro_loads.extend(o)
        return
    for op in o:
        op.after = [(prev_hfree, 1)] + list(extra_after)
        op.target = -BIG
    S_ld.extend(o)


def add_round(P, c, j, rel, rel_late, dl, compute=True, write=True):
    b = j % 2
    if compute:
        ops = main_compute(P, c, j, BUF[b])
        if ld_ops[(P, c, j)] in S_ld:
            ops[0].after = [(ld_ops[(P, c, j)], CFG["LATG"])]
        S_main.extend(ops)
    if write:
        ops, wr = main_writes(P, c, j, BUF[b], rel, rel_late)
        ops[-1].deadline = dl
        S_main.extend(ops)
        prev_wr[b] = wr


def add_halo(P, c, rel, rel_late, dl):
    global prev_hfree
    ops, fr = halo_compute(P, c, HAL, rel, rel_late)
    if ld_ops[(P, c, "h")] in S_ld:
        ops[0].after = [(ld_ops[(P, c, "h")], CFG["LATG"])]
    ops[-1].deadline = dl
    S_main.extend(ops)
    prev_hfree = fr


def nxt(P, c):
    return (P, c + 1) if c < 5 else ((P + 1, 0) if P + 1 < NPASS else None)


add_loads(0, 1, 0)
add_loads(0, 1, 1)
add_halo_loads(0, 1)
sw_done = {}
for P in range(NPASS):
    for c in range(1, 6):
        rel = Bgap(P, c - 2)
        rel_late = Bmid(P) if c == 5 else rel
        dl = Bgap(P, c - 1) - 3
        n = nxt(P, c)
        order = [0, 1, "h", 2, 3]
        for j in order:
            if j == "h":
                add_halo(P, c, rel, rel_late, dl)
                if n:
                    if n[1] == 0:
                        ha = halo_addr(n[0])
                        S_main.extend(ha)
                        add_halo_loads(n[0], n[1], [(ha[-1], 1)])
                    else:
                        add_halo_loads(*n)
            else:
                add_round(P, c, j, rel, rel_late, dl)
                if j < 2:
                    add_loads(P, c, j + 2)
                elif n:
                    add_loads(n[0], n[1], j - 2)
    more = P + 1 < NPASS
    rel = Bgap(P, 5)
    dl = Bgap(P, 6) - 3
    if more:
        add_round(P + 1, 0, 0, rel, rel, dl, write=False)
    ops, sw_done[(P, 0)] = switch(P, 0)
    S_main.extend(ops)
    if more:
        add_round(P + 1, 0, 0, rel, rel, dl, compute=False)
        add_loads(P + 1, 0, 2)
    for kb in (1, 2):
        ops, sw_done[(P, kb)] = switch(P, kb)
        S_main.extend(ops)
    if more:
        for j in (1, "h", 2, 3):
            if j == "h":
                add_halo(P + 1, 0, rel, rel, dl)
                add_halo_loads(P + 1, 1)
            else:
                add_round(P + 1, 0, j, rel, rel, dl)
                if j < 2:
                    add_loads(P + 1, 0, j + 2)
                else:
                    add_loads(P + 1, 1, j - 2)
    fin_done = {}
    for kb in range(3):
        for p in (0, 5):
            ops, fin_done[(kb, p)] = finals(P, kb, p)
            S_fin.extend(ops)
    sts = []
    nextw = lambda p, kb, y: first_w[(P + 1, p, kb, y)] - 2 if more else BIG
    for y in range(8):
        for m in (1, 2):
            f, a = acc(m, 0, y)
            sts.append(store(P, y, m, 4, f, a, after=[(sw_done[(P, 1)][y], 1)], deadline=nextw(m, 0, y),
                             rtag={x: ("Y", P, y, m) for x in R(f, a, 4)}))
    for p, m in ((0, 0), (5, 3)):
        for y in range(8):
            f, a = acc(p, 0, y)
            sts.append(store(P, y, m, 4, f, a, after=[(fin_done[(1, p)][y], 1)], deadline=nextw(3 if p == 0 else 4, 0, y),
                             rtag={x: ("Y", P, y, m) for x in R(f, a, 4)}))
    for p, m in ((0, 0), (5, 3)):
        for y in range(8):
            f, a = acc(p, 2, y)
            sts.append(store(P, y, m, 2, f, a, after=[(fin_done[(2, p)][y], 1)], deadline=nextw(3 if p == 0 else 4, 2, y),
                             rtag={x: ("Y", P, y, m) for x in R(f, a, 2)}))
    if CFG["adj"]:
        sts = [x for k in range(16) for x in (sts[16 + k], sts[32 + k])]
        for k in range(0, 32, 2):
            sts[k].after = list(sts[k + 1].after)
        t = P * NP + NP - 140.0
        for k, s in enumerate(sts):
            s.release = int(t) if more or k < 16 else -BIG
            s.target = int(t)
            t += CFG["st_gap"] if k % 2 else 0
    t = P * NP + 1728 + 60.0
    for k, s in enumerate(sts if not CFG["adj"] else []):
        gap = CFG["st_gap"] * (1.0 if k < 32 else 0.5)
        if 8 <= k < 16 + 4:
            gap *= 1.5
        s.release = int(t) if more or k < 32 else -BIG
        s.target = int(t)
        t += gap
    rows = []
    for y in range(8):
        o = Op(f"s_add_u32 s{sRow + y},s{sStB},{(32 * P + y) * ROWB}", "salu", [("s", sStB)], [("s", sRow + y)],
               release=P * NP + 1000 + 3 * y, target=P * NP + 1000 + 3 * y, deadline=P * NP + 1400)
        rows.append(o)
    S_st.extend(rows + sts)


def propagate(st, rate):
    nd = BIG
    for op in reversed(st):
        if nd < BIG:
            nd -= (op.cost if op.cost else 0.0) / rate + (0.34 if op.mem else 0)
        op.deadline = min(op.deadline, nd if nd >= BIG else nd)
        nd = min(nd, op.deadline)
    for op in st:
        if op.deadline < BIG:
            op.deadline = int(op.deadline // 1)


propagate(S_main, 4.0)
propagate(S_st, 8.0)
for s in S_st:
    for a, d in s.after:
        a.deadline = min(a.deadline, s.deadline - d)
propagate(S_fin, 4.0)
propagate(S_main, 4.0)
for op in S_main:
    if op.target is None:
        op.target = op.deadline + 1000

streams = [S_U, S_V, S_ld, S_st, S_fin, S_main]
WIN = 96
bud = [2.0] * (NM // WIN + 1)
for it in range(6):
    for st in streams:
        for op in st:
            op.gap = None
    for op in pro_loads + pro_U + pro_V:
        op.gap = -BIG
    gaps, late = schedule(NM, streams, fixed, lambda g: bud[g // WIN])
    tot = [0] * (NM // 288)
    for g, cur in enumerate(gaps[:-1]):
        tot[g // 288] += max(2, cur["used"])
    est = sum(8 + 4 * max(2, c["used"]) for c in gaps[:-1])
    under = sum(max(0, 2 - c["used"]) for c in gaps[:-1])
    print(f"; iter {it}: est {est} cycles, underfill {under}, late {len(late)}, tail ops {len(gaps[-1]['valu'])}, phases {[round(t / 288, 2) for t in tot]}",
          file=sys.stderr)
    for w in range(len(bud)):
        ph = min(w * WIN // 288, len(tot) - 1)
        bud[w] = max(2.0, 0.5 * bud[w] + 0.5 * tot[ph] / 288)
for op, g in late[:20]:
    print("; late", op.text, op.deadline, g, file=sys.stderr)

em = Emitter()
S = lambda t, rd=(), wr=(): em.raw(t, "salu", [("s", x) for x in rd], [("s", x) for x in wr])
VV = lambda t, rd=(), wr=(), srd=(), swr=(): em.raw(t, "valu", [("v", x) for x in rd] + [("s", x) for x in srd],
                                                    [("v", x) for x in wr] + [("s", x) for x in swr])
nst = [0]


def stamp():
    if not CFG["dbg"]:
        return
    if nst[0] > 0:
        S(f"s_mov_b32 s{63 + nst[0]},s98")
    S("s_memtime s[98:99]")
    nst[0] += 1


S("s_cmp_ge_u32 s2,256")
S("s_cbranch_scc0 L_go\ns_endpgm\nL_go:")
if CFG["dbg"]:
    S("s_memrealtime s[96:97]")
stamp()
S("s_load_dwordx2 s[4:5],s[0:1],0")
S("s_load_dwordx2 s[6:7],s[0:1],16")
S("s_load_dwordx2 s[52:53],s[0:1],32")
t0, t1, t2, t3, ln = 60, 61, 62, 63, 64
VV(f"v_lshrrev_b32 v{t0},6,v0", [0], [t0])
VV(f"v_and_b32 v{ln},63,v0", [0], [ln])
VV(f"v_readfirstlane_b32 s{sWv},v{t0}", [t0], [], [], [sWv])
VV(f"v_lshrrev_b32 v{t0},4,v{ln}", [ln], [t0])
VV(f"v_bfe_u32 v{t1},v{ln},3,1", [ln], [t1])
VV(f"v_lshl_add_u32 v{t1},v{t0},3,v{t1}", [t0, t1], [t1])
VV(f"v_and_b32 v{t2},7,v{ln}", [ln], [t2])
VV(f"v_mul_u32_u24 v{vRaw},{ROWB},v{t1}", [t1], [vRaw])
VV(f"v_lshl_add_u32 v{vRaw},v{t2},3,v{vRaw}", [t2, vRaw], [vRaw])
VV(f"v_lshlrev_b32 v{vU},4,v{ln}", [ln], [vU])
S("s_and_b32 s54,s2,7", [2], [54])
S("s_lshr_b32 s55,s2,3", [2], [55])
S(f"s_lshl_b32 s{sY0},s54,6", [54], [sY0])
S("s_lshl_b32 s55,s55,4", [55], [55])
S(f"s_lshl_b32 s56,s{sWv},2", [sWv], [56])
S("s_add_u32 s56,s56,s55", [55, 56], [56])
S(f"s_mul_i32 s{sCol},s56,384", [56], [sCol])
S(f"s_mul_i32 s57,s{sY0},{ROWB}", [sY0], [57])
S(f"s_add_u32 s{sRawB},s57,s{sCol}", [57, sCol], [sRawB])
S("s_waitcnt lgkmcnt(0)")
S(f"s_mov_b32 s{sX},s4"); S(f"s_and_b32 s{sX + 1},s5,0xffff"); S(f"s_mov_b32 s{sX + 2},{XB}"); S(f"s_mov_b32 s{sX + 3},0x20000")
S(f"s_sub_u32 s{sXL},s4,384"); S(f"s_subb_u32 s{sXL + 1},s{sX + 1},0")
S("s_cmp_eq_u32 s56,0"); S(f"s_cselect_b32 s{sXL + 2},0,{XB + 384}"); S(f"s_mov_b32 s{sXL + 3},0x20000")
S(f"s_mov_b32 s{sXR},s4"); S(f"s_mov_b32 s{sXR + 1},s{sX + 1}")
S("s_cmp_eq_u32 s56,508"); S(f"s_cselect_b32 s{sXR + 2},0,{XB}"); S(f"s_mov_b32 s{sXR + 3},0x20000")
for op in halo_addr(0):
    em.put(op)
for op in pro_loads[:4 * 7 + 7]:
    em.put(op)
if CFG["ctouch"]:
    S("s_getpc_b64 s[60:61]")
    S(f"s_lshr_b32 s62,s2,3\ns_lshl_b32 s62,s62,2\ns_add_u32 s62,s62,s{sWv}\ns_lshl_b32 s62,s62,10")
    VV(f"v_and_b32 v66,7,v{ln}", [ln], [66])
    VV(f"v_lshl_add_u32 v66,v66,7,s62", [66], [66])
    VV(f"v_min_u32 v66,L_code_end-L_go-2048,v66", [66], [66])
    em.put(Op("global_load_dword v67,v66,s[60:61]", "vld", [("v", 66)], [("v", 67)]))
S(f"s_mov_b32 s{sUs},s52"); S(f"s_and_b32 s{sUs + 1},s53,0xffff"); S(f"s_mov_b32 s{sUs + 2},{4 * UWAVE}"); S(f"s_mov_b32 s{sUs + 3},0x20000")
S(f"s_mul_i32 s{sUW},s{sWv},{UWAVE}", [sWv], [sUW])
for op in pro_U:
    em.put(op)
for op in pro_loads[4 * 7 + 7:]:
    em.put(op)
S(f"s_mov_b32 s{sO},s6"); S(f"s_and_b32 s{sO + 1},s7,0xffff"); S(f"s_mov_b32 s{sO + 2},{XB}"); S(f"s_mov_b32 s{sO + 3},0x20000")
S(f"s_mov_b32 s{sM5},{fbits(-5.0):#x}"); S(f"s_mov_b32 s{s8},{fbits(8.0):#x}"); S(f"s_mov_b32 s{sMask},0xffff0000")
S(f"s_mov_b32 s{sM125},{fbits(-1.25):#x}"); S(f"s_mov_b32 s{s025},{fbits(0.25):#x}")
S("s_mul_i32 s58,s55,384", [55], [58])
S(f"s_mul_i32 s59,s{sWv},96", [sWv], [59])
S(f"s_add_u32 s{sStB},s57,s58", [57, 58], [sStB])
S(f"s_add_u32 s{sStB},s{sStB},s59", [sStB, 59], [sStB])
S(f"s_lshl_b32 s59,s{sWv},6", [sWv], [59])
VV(f"v_lshlrev_b32 v{vW},8,v{t1}", [t1], [vW])
VV(f"v_and_b32 v{t3},1,v{t0}", [t0], [t3])
VV(f"v_xor_b32 v{t3},1,v{t3}", [t3], [t3])
VV(f"v_lshlrev_b32 v{t3},2,v{t3}", [t3], [t3])
VV(f"v_xor_b32 v{t3},v{t3},v{t2}", [t3, t2], [t3])
VV(f"v_lshl_add_u32 v{vW},v{t3},3,v{vW}", [t3, vW], [vW])
VV(f"v_add_u32 v{vW},s59,v{vW}", [vW], [vW], [59])
VV(f"v_add_u32 v{vW},256,v{vW}", [vW], [vW])
VV(f"v_lshrrev_b32 v{t0},5,v{ln}", [ln], [t0])
VV(f"v_mul_u32_u24 v{vHW},{33 * 256},v{t0}", [t0], [vHW])
VV(f"v_lshlrev_b32 v{t0},5,v{t0}", [t0], [t0])
VV(f"v_bfe_u32 v{t1},v{vU},3,6", [vU], [t1])
VV(f"v_xor_b32 v{t1},v{t1},v{t0}", [t0, t1], [t1])
VV(f"v_add3_u32 v{vHW},v{vHW},v{t1},s59", [vHW, t1], [vHW], [59])
VV(f"v_bfe_u32 v{t0},v{ln},2,2", [ln], [t0])
VV(f"v_and_b32 v{t1},3,v{ln}", [ln], [t1])
VV(f"v_lshrrev_b32 v{t2},4,v{ln}", [ln], [t2])
VV(f"v_lshlrev_b32 v{vRA},11,v{t0}", [t0], [vRA])
VV(f"v_lshl_add_u32 v{vRA},v{t1},6,v{vRA}", [t1, vRA], [vRA])
VV(f"v_and_b32 v{t3},1,v{t0}", [t0], [t3])
VV(f"v_lshlrev_b32 v{t3},1,v{t3}", [t3], [t3])
VV(f"v_xor_b32 v{t3},v{t3},v{t2}", [t3, t2], [t3])
VV(f"v_lshl_add_u32 v{vRA},v{t3},4,v{vRA}", [t3, vRA], [vRA])
VV(f"v_xor_b32 v{vRB},32,v{vRA}", [vRA], [vRB])
VV(f"v_mul_u32_u24 v{vSt2},{8 * ROWB},v{t0}", [t0], [vSt2])
VV(f"v_mul_u32_u24 v{t1},1536,v{t1}", [t1], [t1])
VV(f"v_add_u32 v{vSt2},v{vSt2},v{t1}", [vSt2, t1], [vSt2])
VV(f"v_lshl_add_u32 v{vSt},v{t2},4,v{vSt2}", [t2, vSt2], [vSt])
VV(f"v_lshl_add_u32 v{vSt2},v{t2},3,v{vSt2}", [t2, vSt2], [vSt2])
VV(f"v_add_u32 v{vSt2},64,v{vSt2}", [vSt2], [vSt2])
stamp()
if CFG["fake"]:
    S(f"s_mul_i32 s59,s{sWv},{8 * ROWB - 96}", [sWv], [59])
    VV(f"v_add_u32 v{vSt},s59,v{vU}", [vU], [vSt], [59])
    VV(f"v_lshrrev_b32 v{vSt2},1,v{vU}", [vU], [vSt2])
    VV(f"v_add_u32 v{vSt2},s59,v{vSt2}", [vSt2], [vSt2], [59])
    VV(f"v_add_u32 v{vSt2},4096,v{vSt2}", [vSt2], [vSt2])
for j in range(4):
    for k, op in enumerate(main_compute(0, 0, j, PB[j])):
        em.put(op)
        if j == 0 and k == 6:
            stamp()
    for op in main_writes(0, 0, j, PB[j], -BIG, -BIG)[0]:
        em.put(op)
for op in halo_compute(0, 0, PH, -BIG, -BIG)[0]:
    em.put(op)
stamp()
em.put(Op("s_barrier", "bar"))
for op in pro_V:
    em.put(op)
stamp()
nfree = 0
stamp_gaps = set(P * NP + 288 * k - 1 for P in range(NPASS) for k in range(1, 10))
for g in range(NM):
    em.put(mf[g])
    if g in stamp_gaps and g < NM - 1:
        stamp()
    cur = gaps[g]
    body = cur["sc"] + cur["mem"] + cur["valu"]
    if g < NM - 1:
        w = em.wait_for(body + [mf[g + 1]]) if not any(o.kind == "bar" for o in cur["sc"]) else False
        if w and cur["sc"]:
            nfree += 1
    for op in body:
        em.put(op)
if CFG["dbg"]:
    stamp()
    S("s_waitcnt vmcnt(0) lgkmcnt(0)")
    stamp()
    S("s_memrealtime s[94:95]")
    S("s_waitcnt lgkmcnt(0)")
    S(f"s_mov_b32 s{63 + nst[0]},s98")
    S(f"s_sub_u32 s{64 + nst[0]},s94,s96")
    S(f"s_mov_b32 s{65 + nst[0]},s96")
    S("s_getreg_b32 s95,hwreg(HW_REG_XCC_ID)")
    S(f"s_mov_b32 s{66 + nst[0]},s95")
    S(f"s_mov_b32 s{sUs + 2},0x1000000")
    S(f"s_lshl_b32 s54,s2,2\ns_add_u32 s54,s54,s{sWv}\ns_lshl_b32 s54,s54,7\ns_add_u32 s54,s54,0x400000")
    S("v_mov_b32 v1,0")
    for k in range(nst[0] + 3):
        S(f"v_mov_b32 v0,s{64 + k}\nbuffer_store_dword v0,v1,s[{sUs}:{sUs + 3}],s54 offen offset:{4 * k}\ns_nop 1")
    print("; stamps", nst[0], file=sys.stderr)
print(f"; waits {em.nwait} nops {em.nnop} wait+scalar clashes {nfree} instrs {len(em.out)}", file=sys.stderr)
main_lines = em.lines()

U = []
A = U.append
A("s_cmp_ge_u32 s2,216\ns_cbranch_scc1 L_uend")
A("s_load_dwordx2 s[4:5],s[0:1],8\ns_load_dwordx2 s[6:7],s[0:1],32")
A("s_mul_hi_u32 s20,s2,0x55555556\ns_mul_i32 s21,s20,3\ns_sub_u32 s21,s2,s21")
A("s_mul_hi_u32 s22,s20,0x55555556\ns_mul_i32 s23,s22,3\ns_sub_u32 s23,s20,s23")
A("s_mul_hi_u32 s24,s22,0x2aaaaaab\ns_mul_i32 s25,s24,6\ns_sub_u32 s25,s22,s25")
A("v_and_b32 v1,15,v0\nv_lshrrev_b32 v2,4,v0")
A("v_lshrrev_b32 v3,2,v1\nv_and_b32 v4,3,v1\nv_lshl_add_u32 v3,v3,3,v4\ns_lshl_b32 s26,s23,2\nv_add_u32 v3,s26,v3\nv_add_u32 v4,32,v1")
A("s_cmp_eq_u32 s23,2\ns_cselect_b64 vcc,-1,0\nv_cndmask_b32 v3,v3,v4,vcc")
A("s_mul_i32 s26,s24,48\nv_add_u32 v3,s26,v3\nv_lshlrev_b32 v3,1,v3")
A("v_mul_u32_u24 v4,3072,v2\nv_add_u32 v3,v3,v4")
A("s_mul_i32 s26,s21,221184\ns_mul_i32 s27,s25,12288\ns_add_u32 s26,s26,s27\ns_add_u32 s27,s26,73728\ns_add_u32 s28,s27,73728")
A("s_waitcnt lgkmcnt(0)")
A("s_mov_b32 s8,s4\ns_and_b32 s9,s5,0xffff\ns_mov_b32 s10,663552\ns_mov_b32 s11,0x20000")
A(f"s_mov_b32 s12,s6\ns_and_b32 s13,s7,0xffff\ns_mov_b32 s14,{4 * UWAVE}\ns_mov_b32 s15,0x20000")
for s in range(3):
    for e in range(8):
        A(f"buffer_load_short_d16_hi v{8 + s * 8 + e},v3,s[8:11],s{26 + s} offen offset:{e * 384}")
A(f"s_mul_i32 s30,s24,{UWAVE}\ns_mul_i32 s31,s25,{18 * 3072}\ns_add_u32 s30,s30,s31\ns_mul_i32 s31,s23,3072\ns_add_u32 s30,s30,s31\ns_lshl_b32 s31,s21,10\ns_add_u32 s30,s30,s31")
A("v_lshlrev_b32 v5,4,v0")
A(f"s_mov_b32 s33,{fbits(-1 / 6):#x}\ns_mov_b32 s34,{fbits(1 / 24):#x}\ns_mov_b32 s35,{fbits(1 / 6):#x}\ns_mov_b32 s36,{fbits(1 / 12):#x}")
A("s_waitcnt vmcnt(0)")
for e in range(8):
    g0, g1, g2 = 8 + e, 16 + e, 24 + e
    A(f"v_add_f32 v6,v{g0},v{g2}\nv_add_f32 v{32 + e},v6,v{g1}\nv_sub_f32 v{40 + e},v6,v{g1}")
    A(f"v_mul_f32 v{32 + e},s33,v{32 + e}\nv_mul_f32 v{40 + e},s33,v{40 + e}")
    A(f"v_mul_f32 v6,s34,v{g0}\nv_fmac_f32 v6,s35,v{g2}\nv_fma_f32 v{48 + e},s36,v{g1},v6\nv_fma_f32 v{56 + e},-s36,v{g1},v6")
for p, src in ((0, 8), (1, 32), (2, 40), (3, 48), (4, 56), (5, 24)):
    for e in range(4):
        A(f"v_cvt_pk_bf16_f32 v{64 + 4 * p + e},v{src + 2 * e},v{src + 2 * e + 1}")
    A(f"s_add_u32 s31,s30,{p * 9216}")
    A(f"buffer_store_dwordx4 v[{64 + 4 * p}:{67 + 4 * p}],v5,s[12:15],s31 offen")
A("L_uend:\ns_endpgm")

KD = """.amdhsa_kernel {n}
  .amdhsa_next_free_vgpr {v}
  .amdhsa_next_free_sgpr {s}
  .amdhsa_accum_offset {a}
  .amdhsa_group_segment_fixed_size 0
  .amdhsa_kernarg_size 40
  .amdhsa_user_sgpr_count 2
  .amdhsa_user_sgpr_kernarg_segment_ptr 1
  .amdhsa_system_sgpr_workgroup_id_x 1
  .amdhsa_float_denorm_mode_32 3
.end_amdhsa_kernel"""
out = []
out.append("; @launch kernel=wtrans_kernel grid=(216,1,1) block=(64,1,1) lds=0")
out.append(f"; @launch kernel=standalone__winograd__vision_kernel grid=(256,1,1) block=(256,1,1) lds={18 * UNIT}")
out.append('.amdgcn_target "amdgcn-amd-amdhsa--gfx950"')
out.append(".macro M d,a,b,c\nv_mfma_f32_16x16x32_bf16 \\d,\\a,\\b,\\c\n.endm")
out.append(".text\n.globl wtrans_kernel\n.p2align 8\n.type wtrans_kernel,@function\nwtrans_kernel:")
out += U
out.append(".globl standalone__winograd__vision_kernel\n.p2align 8\n.type standalone__winograd__vision_kernel,@function")
out.append("standalone__winograd__vision_kernel:")
out += main_lines
out.append("s_endpgm\nL_code_end:")
out.append('.section .rodata,"a"\n.p2align 6')
out.append(KD.format(n="wtrans_kernel", v=96, s=48, a=96))
out.append(".p2align 6")
out.append(KD.format(n="standalone__winograd__vision_kernel", v=512, s=102 if CFG["dbg"] else 64, a=256))
print("\n".join(out))
```

```python
import sys
import struct
from sched import Op, R, schedule, Emitter, BIG

CFG = dict(D=11, E=8, LATG=30, st_gap=17.0, vlead=7, dbg=0, adj=0, stf='', fake=0, nost=0, nte=0, nto=0, uf='', ctouch=0)
for a in sys.argv[1:]:
    k, v = a.split("=")
    CFG[k] = type(CFG[k])(v) if k in CFG else v

XB = 100663296
ROWB = 196608
UNIT = 8704
NP = 2592
NPASS = 2
UWAVE = 324 * 1024
fbits = lambda x: struct.unpack("<I", struct.pack("<f", x))[0]

D, E = CFG["D"], CFG["E"]
BUF = [192, 204]
UV0 = 216
NUV = D - 8
TMP = UV0 + 4 * NUV
HAL = TMP + 13
vRaw, vHalo, vW, vHW, vRA, vRB, vU, vSt, vSt2 = range(HAL + 6, HAL + 15)
assert vSt2 <= 255, vSt2
AV0, AU0 = 192, 192 + 4 * E
NUA = (256 - AU0) // 4
assert NUA + NUV >= D
sX, sXL, sXR, sUs, sO = 8, 12, 16, 20, 24
sRaw, sHalo, sRawB, sCol, sUW = 28, 29, 30, 31, 44
sRow = 32
sM5, s8, sMask, sM125, s025 = 40, 41, 42, 43, 45
sU = 46
sY0, sWv = 49, 50
sStB = 51


def acc(p, kb, y):
    o = (kb * 8 + y) * 4
    return {1: ("a", o), 2: ("a", 96 + o), 3: ("v", o), 4: ("v", 96 + o), 0: ("v", o), 5: ("v", 96 + o)}[p]


def uslot(n):
    s = n % D
    return ("a", AU0 + 4 * s) if s < NUA else ("v", UV0 + 4 * (s - NUA))


def vslot(n):
    return ("a", AV0 + 4 * (n % E))


rr = lambda f, a, n: f"{f}[{a}:{a + n - 1}]" if n > 1 else f"{f}{a}"


def unit_of(P, c, p):
    x45 = (6, 7) if P % 2 == 0 else (0, 1)
    o0 = (0, 1) if P % 2 == 0 else (6, 7)
    if p in (0, 5):
        i = 0 if p == 0 else 1
        if c == 0:
            return o0[i]
        if c == 5:
            return 8 + i
        return 10 + 2 * (c - 1) + i
    if c % 2 == 0:
        return 2 + (p - 1)
    if c < 5:
        return (x45[0], x45[1], 8, 9)[p - 1]
    return (x45[0], x45[1], 2, 3)[p - 1]


groups = []
for P in range(NPASS):
    for c in range(5):
        for p in (1, 2, 3, 4):
            groups.append((P, c, p, (0, 1, 2)))
    for p in (1, 2, 3, 4):
        groups.append((P, 5, p, (0,)))
    for p in (1, 2, 3, 4):
        groups.append((P, 5, p, (1, 2)))
    for kb in range(3):
        for p in (0, 5):
            for c in range(6):
                groups.append((P, c, p, (kb,)))

mf = []
ufr = []
vfr = []
cnt = {}
last_w = {}
first_w = {}
for (P, c, p, kbs) in groups:
    v0 = len(vfr)
    for rho in range(10):
        vfr.append(dict(P=P, c=c, p=p, rho=rho, first=None, last=None))
    for r in range(3):
        for kb in kbs:
            un = len(ufr)
            ufr.append(dict(P=P, c=c, p=p, kb=kb, r=r, first=len(mf), last=len(mf) + 7))
            for y in range(8):
                i = len(mf)
                vn = v0 + y + r
                if vfr[vn]["first"] is None:
                    vfr[vn]["first"] = i
                vfr[vn]["last"] = i
                f, a = acc(p, kb, y)
                uf, ua = uslot(un)
                vf, va = vslot(vn)
                key = (P, p, kb, y)
                n = cnt.get(key, 0)
                cnt[key] = n + 1
                init = n == 0 and p in (1, 2, 3, 4)
                csrc = "0" if init else rr(f, a, 4)
                rd = R(uf, ua, 4) + R(vf, va, 4) + ([] if init else R(f, a, 4))
                rtag = {x: ("U", un) for x in R(uf, ua, 4)}
                rtag.update({x: ("V", vn) for x in R(vf, va, 4)})
                if not init:
                    rtag.update({x: ("M", P, p, kb, y, n) for x in R(f, a, 4)})
                mf.append(Op(f"M {rr(f, a, 4)},{rr(uf, ua, 4)},{rr(vf, va, 4)},{csrc}", "mfma", rd, R(f, a, 4),
                             rtag=rtag, wtag={x: ("M", P, p, kb, y, n + 1) for x in R(f, a, 4)}))
                last_w[key] = i
                first_w.setdefault(key, i)
NM = len(mf)
assert NM == NP * NPASS

def Bgap(P, c):
    if c < 0:
        return Bgap(P - 1, 6) if P > 0 else -1
    if c <= 4:
        return P * NP + 288 * c + 278
    if c == 5:
        return P * NP + 1728 - 6
    return P * NP + NP - 10


def Bmid(P):
    return P * NP + 288 * 4 + 129


fixed = {}
bars = {}
for P in range(NPASS):
    lst = [(c, Bgap(P, c)) for c in range(5)] + [("m", Bmid(P))]
    if P + 1 < NPASS:
        lst += [(5, Bgap(P, 5)), (6, Bgap(P, 6))]
    for c, g in lst:
        op = Op("s_barrier", "bar")
        fixed[g] = [op]
        bars[(P, c)] = op

S_U = []
pro_U = []
cur_su = {}
for n, u in enumerate(ufr):
    off = ((u["c"] * 6 + u["p"]) * 3 + u["kb"]) * 3072
    rel = ufr[n - D]["last"] if n >= D else -BIG
    dst = pro_U if n < D else S_U
    kb = u["kb"]
    if cur_su.get(kb) != off:
        cur_su[kb] = off
        dst.append(Op(f"s_add_u32 s{sU + kb},s{sUW},{off}", "salu", [("s", sUW)], [("s", sU + kb)], release=rel - 6,
                      target=rel - 6, deadline=rel + 4))
    f, a = uslot(n)
    dst.append(Op(f"buffer_load_dwordx4 {rr(f, a, 4)},v{vU},s[{sUs}:{sUs + 3}],s{sU + kb} offen offset:{u['r'] * 1024}{CFG['uf']}", "vld",
                  [("v", vU), ("s", sU + kb)], R(f, a, 4), release=rel, target=rel - 100, deadline=rel + 6,
                  wtag={x: ("U", n) for x in R(f, a, 4)}))

S_V = []
pro_V = []
vbase = 0
offs = [unit_of(v["P"], v["c"], v["p"]) * UNIT + v["rho"] * 256 for v in vfr]
for n, v in enumerate(vfr):
    rel = vfr[n - E]["last"] if n >= E else -BIG
    vis = Bgap(v["P"], v["c"] - 1)
    rel = max(rel, vis)
    dst = pro_V if n < E else S_V
    dl = v["first"] - 5
    if v["p"] in (0, 5):
        if v["P"] + 1 < NPASS:
            dl = min(dl, Bgap(v["P"], 6) - 1)
    elif v["c"] == 4 and v["p"] <= 2:
        dl = min(dl, Bmid(v["P"]) - 1)
    elif v["c"] < 5 or v["P"] + 1 < NPASS:
        dl = min(dl, Bgap(v["P"], v["c"]) - 1)
    assert dl >= rel or n < E, (v, dl, rel)
    tg = max(rel, v["first"] - CFG["vlead"])
    if not (0 <= offs[n] - vbase <= 65535):
        lo = hi = offs[n]
        m = n
        while m < len(offs) and max(hi, offs[m]) - min(lo, offs[m]) <= 65535:
            lo, hi = min(lo, offs[m]), max(hi, offs[m])
            m += 1
        d = (lo - vbase) & 0xFFFFFFFF
        vbase = lo
        for reg in (vRA, vRB):
            dst.append(Op(f"v_add_u32 v{reg},{d:#x},v{reg}", "valu", [("v", reg)], [("v", reg)], release=rel - 3,
                          target=tg - 3, deadline=dl - 2))
    reg = vRA if v["rho"] in (0, 9) else vRB
    f, a = vslot(n)
    u = unit_of(v["P"], v["c"], v["p"])
    dst.append(Op(f"ds_read_b128 {rr(f, a, 4)},v{reg} offset:{offs[n] - vbase}", "dsr", [("v", reg)], R(f, a, 4),
                  release=rel, target=tg, deadline=dl, wtag={x: ("V", n) for x in R(f, a, 4)},
                  lds_r=[(u, (v["P"], v["c"], v["p"]))]))


def tv(i):
    return TMP + i


def xform(t, spare):
    L = []
    t0, t1, t2, t3, t4, t5 = t
    a = spare
    L.append((f"v_fmac_f32 v{t0},s{sM125},v{t2}", [t0, t2], [t0]))
    L.append((f"v_fmac_f32 v{t5},4.0,v{t1}", [t5, t1], [t5]))
    L.append((f"v_fma_f32 v{a},-4.0,v{t2},v{t4}", [t2, t4], [a]))
    L.append((f"v_fmac_f32 v{t0},s{s025},v{t4}", [t0, t4], [t0]))
    L.append((f"v_fmac_f32 v{t5},s{sM5},v{t3}", [t5, t3], [t5]))
    L.append((f"v_sub_f32 v{t4},v{t4},v{t2}", [t4, t2], [t4]))
    L.append((f"v_fma_f32 v{t2},-4.0,v{t1},v{t3}", [t1, t3], [t2]))
    L.append((f"v_sub_f32 v{t3},v{t3},v{t1}", [t3, t1], [t3]))
    L.append((f"v_add_f32 v{t1},v{a},v{t2}", [a, t2], [t1]))
    L.append((f"v_sub_f32 v{a},v{a},v{t2}", [a, t2], [a]))
    L.append((f"v_fma_f32 v{t2},2.0,v{t3},v{t4}", [t3, t4], [t2]))
    L.append((f"v_fmac_f32 v{t4},-2.0,v{t3}", [t3, t4], [t4]))
    return L, [t0, t1, a, t2, t4, t5], t3


def V(text, rd, wr, **kw):
    return Op(text, "valu", [("v", x) for x in rd], [("v", x) for x in wr], **kw)


def NT(c):
    return " nt" if CFG["nto" if c % 2 else "nte"] else ""


def main_loads(P, c, j, buf):
    ops = [Op(f"s_add_u32 s{sRaw},s{sRawB},{(32 * P + 2 * j) * ROWB + 64 * c}", "salu", [("s", sRawB)], [("s", sRaw)])]
    lds = {}
    for jj in (0, 5, 1, 2, 3, 4):
        srd, imm = (sXL, 0) if jj == 0 else (sXR, 4 * 384) if jj == 5 else (sX, (jj - 1) * 384)
        o = Op(f"buffer_load_dwordx2 v[{buf + 2 * jj}:{buf + 2 * jj + 1}],v{vRaw},s[{srd}:{srd + 3}],s{sRaw} offen offset:{imm}{NT(c)}",
               "vld", [("v", vRaw), ("s", sRaw)], R("v", buf + 2 * jj, 2),
               wtag={x: ("raw", P, c, j, jj) for x in R("v", buf + 2 * jj, 2)})
        ops.append(o)
        lds[jj] = o
    return ops, lds


def main_compute(P, c, j, buf):
    ops = []
    for i in range(2):
        res = []
        spare = tv(6)
        pool = [tv(k) for k in range(6)]
        for half in range(2):
            for jj in (2, 0, 1, 5, 4, 3):
                src = buf + 2 * jj + i
                txt = f"v_lshlrev_b32 v{pool[jj]},16,v{src}" if half == 0 else f"v_and_b32 v{pool[jj]},s{sMask},v{src}"
                ops.append(V(txt, [src], [pool[jj]], rtag={("v", src): ("raw", P, c, j, jj)}))
            L, vr, freed = xform(pool, spare)
            ops += [V(t, a, b) for t, a, b in L]
            res.append(vr)
            spare = freed
            pool = [tv(k) for k in range(7, 13)]
        for p in (0, 5, 1, 2, 3, 4):
            d = buf + 2 * p + i
            ops.append(V(f"v_cvt_pk_bf16_f32 v{d},v{res[0][p]},v{res[1][p]}", [res[0][p], res[1][p]], [d],
                         wtag={("v", d): ("Vp", P, c, j, p)}))
    return ops


def main_writes(P, c, j, buf, rel, rel_late, treg=None):
    ops = []
    wr = {}
    for pa, pb in ((0, 5), (1, 2), (3, 4)):
        ua, ub = unit_of(P, c, pa), unit_of(P, c, pb)
        base, sh = vW, 0
        r = rel_late if pa == 3 else rel
        if max(ua, ub) * 17 + j > 255:
            sh = min(ua, ub)
            base = treg if treg is not None else tv(0)
            ops.append(V(f"v_add_u32 v{base},{sh * UNIT},v{vW}", [vW], [base]))
        o = Op(f"ds_write2st64_b64 v{base},v[{buf + 2 * pa}:{buf + 2 * pa + 1}],v[{buf + 2 * pb}:{buf + 2 * pb + 1}] "
               f"offset0:{(ua - sh) * 17 + j} offset1:{(ub - sh) * 17 + j}", "dsw",
               [("v", base)] + R("v", buf + 2 * pa, 2) + R("v", buf + 2 * pb, 2), [], cost=5, release=r,
               rtag={**{x: ("Vp", P, c, j, pa) for x in R("v", buf + 2 * pa, 2)}, **{x: ("Vp", P, c, j, pb) for x in R("v", buf + 2 * pb, 2)}},
               lds_w=[(ua, (P, c, pa)), (ub, (P, c, pb))])
        ops.append(o)
        wr[pa] = wr[pb] = o
    return ops, wr


def halo_loads(P, c, regs):
    ops = [Op(f"s_add_u32 s{sHalo},s{sCol},{64 * c}", "salu", [("s", sCol)], [("s", sHalo)])]
    for jj in range(6):
        srd, imm = (sXL, 0) if jj == 0 else (sXR, 4 * 384) if jj == 5 else (sX, (jj - 1) * 384)
        ops.append(Op(f"buffer_load_short_d16_hi v{regs + jj},v{vHalo},s[{srd}:{srd + 3}],s{sHalo} offen offset:{imm}{NT(c)}",
                      "vld", [("v", vHalo), ("s", sHalo)], [("v", regs + jj)], wtag={("v", regs + jj): ("hraw", P, c, jj)}))
    return ops


def halo_compute(P, c, regs, rel, rel_late):
    ops = []
    L, vr, _ = xform([regs + k for k in range(6)], tv(0))
    seen = set()
    for t, a, b in L:
        rt = {("v", x): ("hraw", P, c, x - regs) for x in a if regs <= x < regs + 6 and x not in seen}
        seen.update(b)
        ops.append(V(t, a, b, rtag=rt))
    pk = {}
    for k, (pa, pb) in enumerate(((0, 5), (1, 2), (3, 4))):
        ops.append(V(f"v_cvt_pk_bf16_f32 v{tv(1 + k)},v{vr[pa]},v{vr[pb]}", [vr[pa], vr[pb]], [tv(1 + k)]))
        pk[pa] = (tv(1 + k), "")
        pk[pb] = (tv(1 + k), "_d16_hi")
    free_raw = ops[-1]
    sh_cur = None
    for p in (0, 5, 1, 2, 3, 4):
        u = unit_of(P, c, p)
        base, off = vHW, u * UNIT
        if off > 65535:
            if sh_cur is None or not (0 <= off - sh_cur <= 65535):
                sh_cur = off
                ops.append(V(f"v_add_u32 v{tv(0)},{off},v{vHW}", [vHW], [tv(0)]))
            base, off = tv(0), off - sh_cur
        ops.append(Op(f"ds_write_b16{pk[p][1]} v{base},v{pk[p][0]} offset:{off}", "dsw", [("v", base), ("v", pk[p][0])], [], cost=2,
                      release=rel_late if p in (3, 4) else rel, lds_w=[(u, (P, c, p))]))
    return ops, free_raw


def halo_addr(P):
    t0, t1 = tv(0), tv(1)
    L = [V(f"v_lshrrev_b32 v{t0},9,v{vU}", [vU], [t0]),
         V(f"v_mul_u32_u24 v{t0},33,v{t0}", [t0], [t0]),
         Op(f"v_add_u32 v{t0},s{sY0},v{t0}", "valu", [("v", t0), ("s", sY0)], [("v", t0)]),
         V(f"v_add_u32 v{t0},{32 * P - 1},v{t0}", [t0], [t0]),
         V(f"v_mul_u32_u24 v{t1},{ROWB},v{t0}", [t0], [t1]),
         V(f"v_cmp_gt_u32 vcc,512,v{t0}", [t0], []),
         V(f"v_bfe_u32 v{t0},v{vU},3,6", [vU], [t0]),
         V(f"v_add_u32 v{t1},v{t1},v{t0}", [t0, t1], [t1]),
         V(f"v_bfrev_b32 v{t0},1", [], [t0]),
         V(f"v_cndmask_b32 v{vHalo},v{t0},v{t1},vcc", [t0, t1], [vHalo])]
    return L


def store(P, y, m, part, f, a, **kw):
    n = 4 if part == 4 else 2
    vo = vSt if part == 4 else vSt2
    if CFG["nost"]:
        return Op("v_nop", "valu", R(f, a, n), [], cost=1, **kw)
    return Op(f"buffer_store_dwordx{n} {rr(f, a, n)},v{vo},s[{sO}:{sO + 3}],s{sRow + y} offen offset:{(m * 384) if not CFG['fake'] else m * n * 256}{CFG['stf']}", "vst",
              R(f, a, n) + [("v", vo), ("s", sRow + y)], [], cost=2 + n, **kw)


def switch(P, kb):
    ops = []
    done = {}
    for y in range(8):
        rel = last_w[(P, 4, kb, y)] + 3
        a1, a2, m3, m4 = acc(1, kb, y)[1], acc(2, kb, y)[1], acc(3, kb, y)[1], acc(4, kb, y)[1]
        pk = [tv(0), tv(2)] if y % 2 == 0 else [tv(4), tv(6)]
        for h in range(2):
            us, t2s = [tv(8), tv(9)], [tv(10), tv(11)]
            t1 = tv(12)
            for e in range(2):
                i = 2 * h + e
                u, t2 = us[e], t2s[e]
                M3, M4 = m3 + i, m4 + i
                dl0 = first_w[(P, 0, kb, y)] - 2
                dl3 = first_w[(P, 5, kb, y)] - 2
                ops.append(Op(f"v_accvgpr_read_b32 v{t1},a{a1 + i}", "valu", [("a", a1 + i)], [("v", t1)], release=rel,
                              rtag={("a", a1 + i): ("M", P, 1, kb, y, 18)}))
                ops.append(Op(f"v_accvgpr_read_b32 v{t2},a{a2 + i}", "valu", [("a", a2 + i)], [("v", t2)],
                              rtag={("a", a2 + i): ("M", P, 2, kb, y, 18)}))
                ops.append(V(f"v_add_f32 v{u},v{t1},v{t2}", [t1, t2], [u]))
                ops.append(V(f"v_sub_f32 v{t1},v{t1},v{t2}", [t1, t2], [t1]))
                ops.append(V(f"v_add_f32 v{t2},v{M3},v{M4}", [M3, M4], [t2],
                             rtag={("v", M3): ("M", P, 3, kb, y, 18), ("v", M4): ("M", P, 4, kb, y, 18)}))
                ops.append(V(f"v_sub_f32 v{M4},v{M3},v{M4}", [M3, M4], [M4]))
                ops.append(V(f"v_add_f32 v{M3},v{u},v{t2}", [u, t2], [M3], wtag={("v", M3): ("M", P, 0, kb, y, 0)}, deadline=dl0))
                ops.append(V(f"v_fmac_f32 v{u},4.0,v{t2}", [u, t2], [u]))
                ops.append(V(f"v_fma_f32 v{t2},2.0,v{M4},v{t1}", [M4, t1], [t2]))
                ops.append(Op(f"v_fma_f32 v{M4},s{s8},v{M4},v{t1}", "valu", [("v", M4), ("v", t1)], [("v", M4)],
                              wtag={("v", M4): ("M", P, 5, kb, y, 0)}, deadline=dl3))
            for m, src in ((1, t2s), (2, us)):
                if kb < 2:
                    ops.append(V(f"v_cvt_pk_bf16_f32 v{src[0]},v{src[0]},v{src[1]}", src, [src[0]]))
                    pa = acc(m, 0, y)[1] + 2 * kb + h
                    ops.append(Op(f"v_accvgpr_write_b32 a{pa},v{src[0]}", "valu", [("v", src[0])], [("a", pa)],
                                  wtag={("a", pa): ("Y", P, y, m)}))
                else:
                    d = pk[m - 1] + h
                    ops.append(V(f"v_cvt_pk_bf16_f32 v{d},v{src[0]},v{src[1]}", src, [d], wtag={("v", d): ("Y", P, y, m)}))
        if kb == 2:
            for m in (1, 2):
                if CFG["adj"]:
                    f, a = acc(m, 0, y)
                    ops.append(store(P, y, m, 4, f, a, rtag={x: ("Y", P, y, m) for x in R(f, a, 4)}))
                ops.append(store(P, y, m, 2, "v", pk[m - 1], rtag={x: ("Y", P, y, m) for x in R("v", pk[m - 1], 2)}))
        done[y] = ops[-1]
    return ops, done


def finals(P, kb, p):
    ops = []
    done = {}
    m = 0 if p == 0 else 3
    for y in range(8):
        a = acc(p, kb, y)[1]
        d = acc(p, 0, y)[1] + 2 if kb == 1 else a
        rel = last_w[(P, p, kb, y)] + 3
        for h in range(2):
            ops.append(V(f"v_cvt_pk_bf16_f32 v{d + h},v{a + 2 * h},v{a + 2 * h + 1}", [a + 2 * h, a + 2 * h + 1], [d + h], release=rel,
                         target=rel + 10,
                         rtag={("v", a + 2 * h + 1): ("M", P, p, kb, y, 18)}, wtag={("v", d + h): ("Y", P, y, m)}))
        done[y] = ops[-1]
    return ops, done


S_main, S_ld, S_fin, S_st = [], [], [], []
pro = []

PB = [0, 12, 24, 36]
PH = 48
pro_loads = []
for j in range(4):
    o, _ = main_loads(0, 0, j, PB[j])
    pro_loads += o
pro_loads += halo_loads(0, 0, PH)

chunks = [(P, c) for P in range(NPASS) for c in range(6)][1:]
prev_wr = {0: None, 1: None}
prev_hfree = None
ld_ops = {}


def add_loads(P, c, j):
    b = j % 2
    o, lds = main_loads(P, c, j, BUF[b])
    ld_ops[(P, c, j)] = o[-1]
    pw = prev_wr[b]
    if pw is None:
        pro_loads.extend(o)
        return
    o[0].after = [(pw[0], -1)]
    for jj, op in lds.items():
        op.after = [(pw[jj], 0)]
        op.target = -BIG
    o[0].target = -BIG
    S_ld.extend(o)


def add_halo_loads(P, c, extra_after=()):
    o = halo_loads(P, c, HAL)
    ld_ops[(P, c, "h")] = o[-1]
    if prev_hfree is None:
        pro_loads.extend(o)
        return
    for op in o:
        op.after = [(prev_hfree, 1)] + list(extra_after)
        op.target = -BIG
    S_ld.extend(o)


def add_round(P, c, j, rel, rel_late, dl, compute=True, write=True):
    b = j % 2
    if compute:
        ops = main_compute(P, c, j, BUF[b])
        if ld_ops[(P, c, j)] in S_ld:
            ops[0].after = [(ld_ops[(P, c, j)], CFG["LATG"])]
        S_main.extend(ops)
    if write:
        ops, wr = main_writes(P, c, j, BUF[b], rel, rel_late)
        ops[-1].deadline = dl
        S_main.extend(ops)
        prev_wr[b] = wr


def add_halo(P, c, rel, rel_late, dl):
    global prev_hfree
    ops, fr = halo_compute(P, c, HAL, rel, rel_late)
    if ld_ops[(P, c, "h")] in S_ld:
        ops[0].after = [(ld_ops[(P, c, "h")], CFG["LATG"])]
    ops[-1].deadline = dl
    S_main.extend(ops)
    prev_hfree = fr


def nxt(P, c):
    return (P, c + 1) if c < 5 else ((P + 1, 0) if P + 1 < NPASS else None)


add_loads(0, 1, 0)
add_loads(0, 1, 1)
add_halo_loads(0, 1)
sw_done = {}
for P in range(NPASS):
    for c in range(1, 6):
        rel = Bgap(P, c - 2)
        rel_late = Bmid(P) if c == 5 else rel
        dl = Bgap(P, c - 1) - 3
        n = nxt(P, c)
        order = [0, 1, "h", 2, 3]
        for j in order:
            if j == "h":
                add_halo(P, c, rel, rel_late, dl)
                if n:
                    if n[1] == 0:
                        ha = halo_addr(n[0])
                        S_main.extend(ha)
                        add_halo_loads(n[0], n[1], [(ha[-1], 1)])
                    else:
                        add_halo_loads(*n)
            else:
                add_round(P, c, j, rel, rel_late, dl)
                if j < 2:
                    add_loads(P, c, j + 2)
                elif n:
                    add_loads(n[0], n[1], j - 2)
    more = P + 1 < NPASS
    rel = Bgap(P, 5)
    dl = Bgap(P, 6) - 3
    if more:
        add_round(P + 1, 0, 0, rel, rel, dl, write=False)
    ops, sw_done[(P, 0)] = switch(P, 0)
    S_main.extend(ops)
    if more:
        add_round(P + 1, 0, 0, rel, rel, dl, compute=False)
        add_loads(P + 1, 0, 2)
    for kb in (1, 2):
        ops, sw_done[(P, kb)] = switch(P, kb)
        S_main.extend(ops)
    if more:
        for j in (1, "h", 2, 3):
            if j == "h":
                add_halo(P + 1, 0, rel, rel, dl)
                add_halo_loads(P + 1, 1)
            else:
                add_round(P + 1, 0, j, rel, rel, dl)
                if j < 2:
                    add_loads(P + 1, 0, j + 2)
                else:
                    add_loads(P + 1, 1, j - 2)
    fin_done = {}
    for kb in range(3):
        for p in (0, 5):
            ops, fin_done[(kb, p)] = finals(P, kb, p)
            S_fin.extend(ops)
    sts = []
    nextw = lambda p, kb, y: first_w[(P + 1, p, kb, y)] - 2 if more else BIG
    for y in range(8):
        for m in (1, 2):
            f, a = acc(m, 0, y)
            sts.append(store(P, y, m, 4, f, a, after=[(sw_done[(P, 1)][y], 1)], deadline=nextw(m, 0, y),
                             rtag={x: ("Y", P, y, m) for x in R(f, a, 4)}))
    for p, m in ((0, 0), (5, 3)):
        for y in range(8):
            f, a = acc(p, 0, y)
            sts.append(store(P, y, m, 4, f, a, after=[(fin_done[(1, p)][y], 1)], deadline=nextw(3 if p == 0 else 4, 0, y),
                             rtag={x: ("Y", P, y, m) for x in R(f, a, 4)}))
    for p, m in ((0, 0), (5, 3)):
        for y in range(8):
            f, a = acc(p, 2, y)
            sts.append(store(P, y, m, 2, f, a, after=[(fin_done[(2, p)][y], 1)], deadline=nextw(3 if p == 0 else 4, 2, y),
                             rtag={x: ("Y", P, y, m) for x in R(f, a, 2)}))
    if CFG["adj"]:
        sts = [x for k in range(16) for x in (sts[16 + k], sts[32 + k])]
        for k in range(0, 32, 2):
            sts[k].after = list(sts[k + 1].after)
        t = P * NP + NP - 140.0
        for k, s in enumerate(sts):
            s.release = int(t) if more or k < 16 else -BIG
            s.target = int(t)
            t += CFG["st_gap"] if k % 2 else 0
    t = P * NP + 1728 + 60.0
    for k, s in enumerate(sts if not CFG["adj"] else []):
        gap = CFG["st_gap"] * (1.0 if k < 32 else 0.5)
        if 8 <= k < 16 + 4:
            gap *= 1.5
        s.release = int(t) if more or k < 32 else -BIG
        s.target = int(t)
        t += gap
    rows = []
    for y in range(8):
        o = Op(f"s_add_u32 s{sRow + y},s{sStB},{(32 * P + y) * ROWB}", "salu", [("s", sStB)], [("s", sRow + y)],
               release=P * NP + 1000 + 3 * y, target=P * NP + 1000 + 3 * y, deadline=P * NP + 1400)
        rows.append(o)
    S_st.extend(rows + sts)


def propagate(st, rate):
    nd = BIG
    for op in reversed(st):
        if nd < BIG:
            nd -= (op.cost if op.cost else 0.0) / rate + (0.34 if op.mem else 0)
        op.deadline = min(op.deadline, nd if nd >= BIG else nd)
        nd = min(nd, op.deadline)
    for op in st:
        if op.deadline < BIG:
            op.deadline = int(op.deadline // 1)


propagate(S_main, 4.0)
propagate(S_st, 8.0)
for s in S_st:
    for a, d in s.after:
        a.deadline = min(a.deadline, s.deadline - d)
propagate(S_fin, 4.0)
propagate(S_main, 4.0)
for op in S_main:
    if op.target is None:
        op.target = op.deadline + 1000

streams = [S_U, S_V, S_ld, S_st, S_fin, S_main]
WIN = 96
bud = [2.0] * (NM // WIN + 1)
for it in range(6):
    for st in streams:
        for op in st:
            op.gap = None
    for op in pro_loads + pro_U + pro_V:
        op.gap = -BIG
    gaps, late = schedule(NM, streams, fixed, lambda g: bud[g // WIN])
    tot = [0] * (NM // 288)
    for g, cur in enumerate(gaps[:-1]):
        tot[g // 288] += max(2, cur["used"])
    est = sum(8 + 4 * max(2, c["used"]) for c in gaps[:-1])
    under = sum(max(0, 2 - c["used"]) for c in gaps[:-1])
    print(f"; iter {it}: est {est} cycles, underfill {under}, late {len(late)}, tail ops {len(gaps[-1]['valu'])}, phases {[round(t / 288, 2) for t in tot]}",
          file=sys.stderr)
    for w in range(len(bud)):
        ph = min(w * WIN // 288, len(tot) - 1)
        bud[w] = max(2.0, 0.5 * bud[w] + 0.5 * tot[ph] / 288)
for op, g in late[:20]:
    print("; late", op.text, op.deadline, g, file=sys.stderr)

em = Emitter()
S = lambda t, rd=(), wr=(): em.raw(t, "salu", [("s", x) for x in rd], [("s", x) for x in wr])
VV = lambda t, rd=(), wr=(), srd=(), swr=(): em.raw(t, "valu", [("v", x) for x in rd] + [("s", x) for x in srd],
                                                    [("v", x) for x in wr] + [("s", x) for x in swr])
nst = [0]


def stamp():
    if not CFG["dbg"]:
        return
    if nst[0] > 0:
        S(f"s_mov_b32 s{63 + nst[0]},s98")
    S("s_memtime s[98:99]")
    nst[0] += 1


S("s_cmp_ge_u32 s2,256")
S("s_cbranch_scc0 L_go\ns_endpgm\nL_go:")
if CFG["dbg"]:
    S("s_memrealtime s[96:97]")
stamp()
S("s_load_dwordx2 s[4:5],s[0:1],0")
S("s_load_dwordx2 s[6:7],s[0:1],16")
S("s_load_dwordx2 s[52:53],s[0:1],32")
t0, t1, t2, t3, ln = 60, 61, 62, 63, 64
VV(f"v_lshrrev_b32 v{t0},6,v0", [0], [t0])
VV(f"v_and_b32 v{ln},63,v0", [0], [ln])
VV(f"v_readfirstlane_b32 s{sWv},v{t0}", [t0], [], [], [sWv])
VV(f"v_lshrrev_b32 v{t0},4,v{ln}", [ln], [t0])
VV(f"v_bfe_u32 v{t1},v{ln},3,1", [ln], [t1])
VV(f"v_lshl_add_u32 v{t1},v{t0},3,v{t1}", [t0, t1], [t1])
VV(f"v_and_b32 v{t2},7,v{ln}", [ln], [t2])
VV(f"v_mul_u32_u24 v{vRaw},{ROWB},v{t1}", [t1], [vRaw])
VV(f"v_lshl_add_u32 v{vRaw},v{t2},3,v{vRaw}", [t2, vRaw], [vRaw])
VV(f"v_lshlrev_b32 v{vU},4,v{ln}", [ln], [vU])
S("s_and_b32 s54,s2,7", [2], [54])
S("s_lshr_b32 s55,s2,3", [2], [55])
S(f"s_lshl_b32 s{sY0},s54,6", [54], [sY0])
S("s_lshl_b32 s55,s55,4", [55], [55])
S(f"s_lshl_b32 s56,s{sWv},2", [sWv], [56])
S("s_add_u32 s56,s56,s55", [55, 56], [56])
S(f"s_mul_i32 s{sCol},s56,384", [56], [sCol])
S(f"s_mul_i32 s57,s{sY0},{ROWB}", [sY0], [57])
S(f"s_add_u32 s{sRawB},s57,s{sCol}", [57, sCol], [sRawB])
S("s_waitcnt lgkmcnt(0)")
S(f"s_mov_b32 s{sX},s4"); S(f"s_and_b32 s{sX + 1},s5,0xffff"); S(f"s_mov_b32 s{sX + 2},{XB}"); S(f"s_mov_b32 s{sX + 3},0x20000")
S(f"s_sub_u32 s{sXL},s4,384"); S(f"s_subb_u32 s{sXL + 1},s{sX + 1},0")
S("s_cmp_eq_u32 s56,0"); S(f"s_cselect_b32 s{sXL + 2},0,{XB + 384}"); S(f"s_mov_b32 s{sXL + 3},0x20000")
S(f"s_mov_b32 s{sXR},s4"); S(f"s_mov_b32 s{sXR + 1},s{sX + 1}")
S("s_cmp_eq_u32 s56,508"); S(f"s_cselect_b32 s{sXR + 2},0,{XB}"); S(f"s_mov_b32 s{sXR + 3},0x20000")
for op in halo_addr(0):
    em.put(op)
for op in pro_loads[:4 * 7 + 7]:
    em.put(op)
if CFG["ctouch"]:
    S("s_getpc_b64 s[60:61]")
    S(f"s_lshr_b32 s62,s2,3\ns_lshl_b32 s62,s62,2\ns_add_u32 s62,s62,s{sWv}\ns_lshl_b32 s62,s62,10")
    VV(f"v_and_b32 v66,7,v{ln}", [ln], [66])
    VV(f"v_lshl_add_u32 v66,v66,7,s62", [66], [66])
    VV(f"v_min_u32 v66,L_code_end-L_go-2048,v66", [66], [66])
    em.put(Op("global_load_dword v67,v66,s[60:61]", "vld", [("v", 66)], [("v", 67)]))
S(f"s_mov_b32 s{sUs},s52"); S(f"s_and_b32 s{sUs + 1},s53,0xffff"); S(f"s_mov_b32 s{sUs + 2},{4 * UWAVE}"); S(f"s_mov_b32 s{sUs + 3},0x20000")
S(f"s_mul_i32 s{sUW},s{sWv},{UWAVE}", [sWv], [sUW])
for op in pro_U:
    em.put(op)
for op in pro_loads[4 * 7 + 7:]:
    em.put(op)
S(f"s_mov_b32 s{sO},s6"); S(f"s_and_b32 s{sO + 1},s7,0xffff"); S(f"s_mov_b32 s{sO + 2},{XB}"); S(f"s_mov_b32 s{sO + 3},0x20000")
S(f"s_mov_b32 s{sM5},{fbits(-5.0):#x}"); S(f"s_mov_b32 s{s8},{fbits(8.0):#x}"); S(f"s_mov_b32 s{sMask},0xffff0000")
S(f"s_mov_b32 s{sM125},{fbits(-1.25):#x}"); S(f"s_mov_b32 s{s025},{fbits(0.25):#x}")
S("s_mul_i32 s58,s55,384", [55], [58])
S(f"s_mul_i32 s59,s{sWv},96", [sWv], [59])
S(f"s_add_u32 s{sStB},s57,s58", [57, 58], [sStB])
S(f"s_add_u32 s{sStB},s{sStB},s59", [sStB, 59], [sStB])
S(f"s_lshl_b32 s59,s{sWv},6", [sWv], [59])
VV(f"v_lshlrev_b32 v{vW},8,v{t1}", [t1], [vW])
VV(f"v_and_b32 v{t3},1,v{t0}", [t0], [t3])
VV(f"v_xor_b32 v{t3},1,v{t3}", [t3], [t3])
VV(f"v_lshlrev_b32 v{t3},2,v{t3}", [t3], [t3])
VV(f"v_xor_b32 v{t3},v{t3},v{t2}", [t3, t2], [t3])
VV(f"v_lshl_add_u32 v{vW},v{t3},3,v{vW}", [t3, vW], [vW])
VV(f"v_add_u32 v{vW},s59,v{vW}", [vW], [vW], [59])
VV(f"v_add_u32 v{vW},256,v{vW}", [vW], [vW])
VV(f"v_lshrrev_b32 v{t0},5,v{ln}", [ln], [t0])
VV(f"v_mul_u32_u24 v{vHW},{33 * 256},v{t0}", [t0], [vHW])
VV(f"v_lshlrev_b32 v{t0},5,v{t0}", [t0], [t0])
VV(f"v_bfe_u32 v{t1},v{vU},3,6", [vU], [t1])
VV(f"v_xor_b32 v{t1},v{t1},v{t0}", [t0, t1], [t1])
VV(f"v_add3_u32 v{vHW},v{vHW},v{t1},s59", [vHW, t1], [vHW], [59])
VV(f"v_bfe_u32 v{t0},v{ln},2,2", [ln], [t0])
VV(f"v_and_b32 v{t1},3,v{ln}", [ln], [t1])
VV(f"v_lshrrev_b32 v{t2},4,v{ln}", [ln], [t2])
VV(f"v_lshlrev_b32 v{vRA},11,v{t0}", [t0], [vRA])
VV(f"v_lshl_add_u32 v{vRA},v{t1},6,v{vRA}", [t1, vRA], [vRA])
VV(f"v_and_b32 v{t3},1,v{t0}", [t0], [t3])
VV(f"v_lshlrev_b32 v{t3},1,v{t3}", [t3], [t3])
VV(f"v_xor_b32 v{t3},v{t3},v{t2}", [t3, t2], [t3])
VV(f"v_lshl_add_u32 v{vRA},v{t3},4,v{vRA}", [t3, vRA], [vRA])
VV(f"v_xor_b32 v{vRB},32,v{vRA}", [vRA], [vRB])
VV(f"v_mul_u32_u24 v{vSt2},{8 * ROWB},v{t0}", [t0], [vSt2])
VV(f"v_mul_u32_u24 v{t1},1536,v{t1}", [t1], [t1])
VV(f"v_add_u32 v{vSt2},v{vSt2},v{t1}", [vSt2, t1], [vSt2])
VV(f"v_lshl_add_u32 v{vSt},v{t2},4,v{vSt2}", [t2, vSt2], [vSt])
VV(f"v_lshl_add_u32 v{vSt2},v{t2},3,v{vSt2}", [t2, vSt2], [vSt2])
VV(f"v_add_u32 v{vSt2},64,v{vSt2}", [vSt2], [vSt2])
stamp()
if CFG["fake"]:
    S(f"s_mul_i32 s59,s{sWv},{8 * ROWB - 96}", [sWv], [59])
    VV(f"v_add_u32 v{vSt},s59,v{vU}", [vU], [vSt], [59])
    VV(f"v_lshrrev_b32 v{vSt2},1,v{vU}", [vU], [vSt2])
    VV(f"v_add_u32 v{vSt2},s59,v{vSt2}", [vSt2], [vSt2], [59])
    VV(f"v_add_u32 v{vSt2},4096,v{vSt2}", [vSt2], [vSt2])
for j in range(4):
    for k, op in enumerate(main_compute(0, 0, j, PB[j])):
        em.put(op)
        if j == 0 and k == 6:
            stamp()
    for op in main_writes(0, 0, j, PB[j], -BIG, -BIG)[0]:
        em.put(op)
for op in halo_compute(0, 0, PH, -BIG, -BIG)[0]:
    em.put(op)
stamp()
em.put(Op("s_barrier", "bar"))
for op in pro_V:
    em.put(op)
stamp()
nfree = 0
stamp_gaps = set(P * NP + 288 * k - 1 for P in range(NPASS) for k in range(1, 10))
for g in range(NM):
    em.put(mf[g])
    if g in stamp_gaps and g < NM - 1:
        stamp()
    cur = gaps[g]
    body = cur["sc"] + cur["mem"] + cur["valu"]
    if g < NM - 1:
        w = em.wait_for(body + [mf[g + 1]]) if not any(o.kind == "bar" for o in cur["sc"]) else False
        if w and cur["sc"]:
            nfree += 1
    for op in body:
        em.put(op)
if CFG["dbg"]:
    stamp()
    S("s_waitcnt vmcnt(0) lgkmcnt(0)")
    stamp()
    S("s_memrealtime s[94:95]")
    S("s_waitcnt lgkmcnt(0)")
    S(f"s_mov_b32 s{63 + nst[0]},s98")
    S(f"s_sub_u32 s{64 + nst[0]},s94,s96")
    S(f"s_mov_b32 s{65 + nst[0]},s96")
    S("s_getreg_b32 s95,hwreg(HW_REG_XCC_ID)")
    S(f"s_mov_b32 s{66 + nst[0]},s95")
    S(f"s_mov_b32 s{sUs + 2},0x1000000")
    S(f"s_lshl_b32 s54,s2,2\ns_add_u32 s54,s54,s{sWv}\ns_lshl_b32 s54,s54,7\ns_add_u32 s54,s54,0x400000")
    S("v_mov_b32 v1,0")
    for k in range(nst[0] + 3):
        S(f"v_mov_b32 v0,s{64 + k}\nbuffer_store_dword v0,v1,s[{sUs}:{sUs + 3}],s54 offen offset:{4 * k}\ns_nop 1")
    if CFG["dbg"] == 2:
        S("s_add_u32 s52,s52,0x200000\ns_addc_u32 s53,s53,0\ns_load_dwordx4 s[4:7],s[52:53],0\ns_waitcnt lgkmcnt(0)\ns_load_dwordx2 s[4:5],s[0:1],24\ns_waitcnt lgkmcnt(0)")
        S("v_mov_b32 v2,s4\nv_mov_b32 v3,s5\ns_sub_u32 s94,s94,s6\ns_sub_u32 s96,s96,s6\ns_sub_u32 s97,0x7fffffff,s96")
        S("s_mov_b64 exec,1")
        for k, r in enumerate((94, 96, 97)):
            S(f"v_mov_b32 v0,s{r}\nglobal_atomic_umax v[2:3],v0,off offset:{4 * k}\ns_nop 1")
        S(f"s_lshl_b32 s54,s2,2\ns_add_u32 s54,s54,s{sWv}\ns_cmp_eq_u32 s54,400\ns_cbranch_scc0 L_nodbg")
        for k, (a, b) in enumerate(((0, 1), (1, 4), (4, 5), (5, 6), (6, 7), (7, 8), (8, 9), (9, 10), (10, 11), (11, 12), (12, 13), (13, 14), (14, 23))):
            S(f"s_sub_u32 s54,s{64 + b},s{64 + a}\nv_mov_b32 v0,s54\nglobal_store_dword v[2:3],v0,off offset:{12 + 4 * k}\ns_nop 1")
        S("L_nodbg:")
    print("; stamps", nst[0], file=sys.stderr)
print(f"; waits {em.nwait} nops {em.nnop} wait+scalar clashes {nfree} instrs {len(em.out)}", file=sys.stderr)
main_lines = em.lines()

U = []
A = U.append
A("s_cmp_ge_u32 s2,216\ns_cbranch_scc1 L_uend")
A("s_load_dwordx2 s[4:5],s[0:1],8\ns_load_dwordx2 s[6:7],s[0:1],32")
A("s_mul_hi_u32 s20,s2,0x55555556\ns_mul_i32 s21,s20,3\ns_sub_u32 s21,s2,s21")
A("s_mul_hi_u32 s22,s20,0x55555556\ns_mul_i32 s23,s22,3\ns_sub_u32 s23,s20,s23")
A("s_mul_hi_u32 s24,s22,0x2aaaaaab\ns_mul_i32 s25,s24,6\ns_sub_u32 s25,s22,s25")
if CFG["dbg"] == 2:
    A("s_memrealtime s[40:41]\ns_load_dwordx2 s[42:43],s[0:1],24")
A("v_and_b32 v1,15,v0\nv_lshrrev_b32 v2,4,v0")
A("v_lshrrev_b32 v3,2,v1\nv_and_b32 v4,3,v1\nv_lshl_add_u32 v3,v3,3,v4\ns_lshl_b32 s26,s23,2\nv_add_u32 v3,s26,v3\nv_add_u32 v4,32,v1")
A("s_cmp_eq_u32 s23,2\ns_cselect_b64 vcc,-1,0\nv_cndmask_b32 v3,v3,v4,vcc")
A("s_mul_i32 s26,s24,48\nv_add_u32 v3,s26,v3\nv_lshlrev_b32 v3,1,v3")
A("v_mul_u32_u24 v4,3072,v2\nv_add_u32 v3,v3,v4")
A("s_mul_i32 s26,s21,221184\ns_mul_i32 s27,s25,12288\ns_add_u32 s26,s26,s27\ns_add_u32 s27,s26,73728\ns_add_u32 s28,s27,73728")
A("s_waitcnt lgkmcnt(0)")
A("s_mov_b32 s8,s4\ns_and_b32 s9,s5,0xffff\ns_mov_b32 s10,663552\ns_mov_b32 s11,0x20000")
A(f"s_mov_b32 s12,s6\ns_and_b32 s13,s7,0xffff\ns_mov_b32 s14,{4 * UWAVE}\ns_mov_b32 s15,0x20000")
for s in range(3):
    for e in range(8):
        A(f"buffer_load_short_d16_hi v{8 + s * 8 + e},v3,s[8:11],s{26 + s} offen offset:{e * 384}")
A(f"s_mul_i32 s30,s24,{UWAVE}\ns_mul_i32 s31,s25,{18 * 3072}\ns_add_u32 s30,s30,s31\ns_mul_i32 s31,s23,3072\ns_add_u32 s30,s30,s31\ns_lshl_b32 s31,s21,10\ns_add_u32 s30,s30,s31")
A("v_lshlrev_b32 v5,4,v0")
A(f"s_mov_b32 s33,{fbits(-1 / 6):#x}\ns_mov_b32 s34,{fbits(1 / 24):#x}\ns_mov_b32 s35,{fbits(1 / 6):#x}\ns_mov_b32 s36,{fbits(1 / 12):#x}")
A("s_waitcnt vmcnt(0)")
for e in range(8):
    g0, g1, g2 = 8 + e, 16 + e, 24 + e
    A(f"v_add_f32 v6,v{g0},v{g2}\nv_add_f32 v{32 + e},v6,v{g1}\nv_sub_f32 v{40 + e},v6,v{g1}")
    A(f"v_mul_f32 v{32 + e},s33,v{32 + e}\nv_mul_f32 v{40 + e},s33,v{40 + e}")
    A(f"v_mul_f32 v6,s34,v{g0}\nv_fmac_f32 v6,s35,v{g2}\nv_fma_f32 v{48 + e},s36,v{g1},v6\nv_fma_f32 v{56 + e},-s36,v{g1},v6")
for p, src in ((0, 8), (1, 32), (2, 40), (3, 48), (4, 56), (5, 24)):
    for e in range(4):
        A(f"v_cvt_pk_bf16_f32 v{64 + 4 * p + e},v{src + 2 * e},v{src + 2 * e + 1}")
    A(f"s_add_u32 s31,s30,{p * 9216}")
    A(f"buffer_store_dwordx4 v[{64 + 4 * p}:{67 + 4 * p}],v5,s[12:15],s31 offen")
if CFG["dbg"] == 2:
    A("s_cmp_eq_u32 s2,0\ns_cbranch_scc0 L_uend\nv_mov_b32 v8,s42\nv_mov_b32 v9,s43\nv_mov_b32 v10,s40\nv_mov_b32 v11,s41\nv_mov_b32 v5,0x200000")
    A("global_store_dwordx4 v5,v[8:11],s[6:7]")
A("L_uend:\ns_endpgm")

KD = """.amdhsa_kernel {n}
  .amdhsa_next_free_vgpr {v}
  .amdhsa_next_free_sgpr {s}
  .amdhsa_accum_offset {a}
  .amdhsa_group_segment_fixed_size 0
  .amdhsa_kernarg_size 40
  .amdhsa_user_sgpr_count 2
  .amdhsa_user_sgpr_kernarg_segment_ptr 1
  .amdhsa_system_sgpr_workgroup_id_x 1
  .amdhsa_float_denorm_mode_32 3
.end_amdhsa_kernel"""
out = []
out.append("; @launch kernel=wtrans_kernel grid=(216,1,1) block=(64,1,1) lds=0")
out.append(f"; @launch kernel=standalone__winograd__vision_kernel grid=(256,1,1) block=(256,1,1) lds={18 * UNIT}")
out.append('.amdgcn_target "amdgcn-amd-amdhsa--gfx950"')
out.append(".macro M d,a,b,c\nv_mfma_f32_16x16x32_bf16 \\d,\\a,\\b,\\c\n.endm")
out.append(".text\n.globl wtrans_kernel\n.p2align 8\n.type wtrans_kernel,@function\nwtrans_kernel:")
out += U
out.append(".globl standalone__winograd__vision_kernel\n.p2align 8\n.type standalone__winograd__vision_kernel,@function")
out.append("standalone__winograd__vision_kernel:")
out += main_lines
out.append("s_endpgm\nL_code_end:")
out.append('.section .rodata,"a"\n.p2align 6')
out.append(KD.format(n="wtrans_kernel", v=96, s=48, a=96))
out.append(".p2align 6")
out.append(KD.format(n="standalone__winograd__vision_kernel", v=512, s=102 if CFG["dbg"] else 64, a=256))
print("\n".join(out))
```

```python
BIG = 10 ** 9


def R(f, a, n=1):
    return [(f, a + i) for i in range(n)]


class Op:
    __slots__ = ("text", "kind", "cost", "rd", "wr", "release", "target", "deadline", "after", "gap",
                 "rtag", "wtag", "lds_r", "lds_w", "name", "seq", "needs")

    def __init__(self, text, kind, rd=(), wr=(), cost=None, release=-BIG, target=None, deadline=BIG,
                 after=(), rtag=None, wtag=None, lds_r=None, lds_w=None, name="", needs=None):
        self.text = text
        self.kind = kind
        if cost is None:
            cost = {"valu": 1, "dsr": 1, "vld": 2, "salu": 0, "bar": 0, "mfma": 0}[kind]
        self.cost = cost
        self.rd = list(rd)
        self.wr = list(wr)
        self.release = release
        self.target = target
        self.deadline = deadline
        self.after = list(after)
        self.gap = None
        self.rtag = rtag or {}
        self.wtag = wtag or {}
        self.lds_r = lds_r
        self.lds_w = lds_w
        self.name = name
        self.seq = None
        self.needs = needs

    @property
    def mem(self):
        return self.kind in ("dsr", "dsw", "vld", "vst")


def schedule(nm, streams, fixed, budget):
    heads = [0] * len(streams)
    gaps = []
    extra = 0.0
    late = []

    def ready(si, g):
        st = streams[si]
        if heads[si] >= len(st):
            return None
        op = st[heads[si]]
        if op.release > g:
            return None
        for a, d in op.after:
            if a.gap is None or a.gap + d > g:
                return None
        return op

    def key(op):
        return min(op.target if op.target is not None else op.deadline, op.deadline)

    for g in range(nm):
        cur = {"sc": [], "mem": [], "valu": []}
        for op in fixed.get(g, []):
            op.gap = g
            cur["sc"].append(op)
        used = max(0, len(cur["sc"]) * 2 - 1)
        extra = min(extra + budget(g) - 2.0, 4.0)

        def place(si, op, where, cost):
            nonlocal used, extra
            over = used + cost - max(2, used)
            if over > 0:
                extra -= over
            used += cost
            op.gap = g
            if op.deadline < g:
                late.append((op, g))
            heads[si] += 1
            cur[where].append(op)

        if g == nm - 1:
            while True:
                c = [(key(streams[si][heads[si]]), si) for si in range(len(streams)) if heads[si] < len(streams[si])
                     and all(a.gap is not None for a, d in streams[si][heads[si]].after)]
                if not c:
                    break
                si = min(c)[1]
                place(si, streams[si][heads[si]], "valu", 0)
            cur["used"] = used
            gaps.append(cur)
            break
        while True:
            c = [(key(op), si, op) for si in range(len(streams)) for op in [ready(si, g)] if op is not None and op.kind in ("salu", "bar")]
            c.sort(key=lambda x: x[:2])
            if not c:
                break
            k, si, op = c[0]
            if not cur["sc"]:
                place(si, op, "sc", 1 if op.kind == "bar" else 0)
            elif op.deadline <= g:
                place(si, op, "sc", 1)
            else:
                break
        while True:
            allc = [(key(op), si, op) for si in range(len(streams)) for op in [ready(si, g)] if op is not None]
            c = sorted((x for x in allc if x[2].mem), key=lambda x: x[:2])
            have_valu = any(x[2].kind == "valu" for x in allc)
            done = False
            for k, si, op in c:
                over = used + op.cost - max(2, used)
                if over <= 0 or used == 0 or op.deadline <= g or extra >= over or (used < 2 and not have_valu):
                    place(si, op, "mem", op.cost)
                    done = True
                    break
            if not done:
                break
        while True:
            c = sorted(((key(op), si, op) for si in range(len(streams)) for op in [ready(si, g)]
                        if op is not None and (op.kind == "valu" or (op.kind == "salu" and (op.deadline <= g or used < 2)))),
                       key=lambda x: x[:2])
            done = False
            for k, si, op in c:
                over = used + 1 - max(2, used)
                if over <= 0 or op.deadline <= g or extra >= over:
                    place(si, op, "valu", 1)
                    done = True
                    break
            if not done:
                break
        cur["used"] = used
        gaps.append(cur)
    for si, st in enumerate(streams):
        assert heads[si] == len(st), ("unplaced", si, st[heads[si]].text, st[heads[si]].name)
    return gaps, late


def _unused():
    pass


class Emitter:
    def __init__(self):
        self.out = []
        self.vm = []
        self.lg = []
        self.vm_done = 0
        self.lg_done = 0
        self.pend = {}
        self.tags = {}
        self.nwait = 0
        self.nnop = 0
        self.est = 0
        self.bar_done = 0
        self.lds = {}

    def _needs(self, ops):
        nv = nl = -1
        for op in ops:
            for r in op.rd + op.wr:
                p = self.pend.get(r)
                if p is None:
                    continue
                if op.kind == "vld" and p[0] == "vm" and r not in op.rd:
                    continue
                if p[0] == "vm" and p[1] >= self.vm_done:
                    nv = max(nv, p[1])
                if p[0] == "lg" and p[1] >= self.lg_done:
                    nl = max(nl, p[1])
            if op.kind == "bar":
                if op.needs is None:
                    n = len(self.lg) - 1
                else:
                    assert all(o.seq is not None for o in op.needs), ("barrier before needed op", [o.text for o in op.needs if o.seq is None])
                    n = max([o.seq for o in op.needs], default=-1)
                if n >= self.lg_done:
                    nl = max(nl, n)
        return nv, nl

    def wait_for(self, ops):
        nv, nl = self._needs(ops)
        parts = []
        if nv >= 0:
            n = min(len(self.vm) - 1 - nv, 63)
            parts.append(f"vmcnt({n})")
            self.vm_done = len(self.vm) - n
        if nl >= 0:
            n = min(len(self.lg) - 1 - nl, 15)
            parts.append(f"lgkmcnt({n})")
            self.lg_done = len(self.lg) - n
        if parts:
            self.out.append(("s_waitcnt " + " ".join(parts), "salu", [], []))
            self.nwait += 1
            return True
        return False

    def _hazard(self, op):
        need = 0
        dist = 0
        rd = set(op.rd)
        wr = set(op.wr)
        for text, kind, prd, pwr in reversed(self.out[-24:]):
            req = 0
            spw = set(pwr)
            if kind == "mfma":
                d = spw
                if op.kind == "mfma":
                    ab = set(op.rd[:8])
                    if ab & d:
                        req = max(req, 8)
                    c = set(op.rd[8:])
                    if c & d and c != d:
                        req = max(req, 6)
                    if wr & d and wr != d:
                        req = max(req, 6)
                elif (rd | wr) & d:
                    req = max(req, 8)
                if op.kind == "valu" and wr & set(prd[8:]):
                    req = max(req, 3)
            elif kind == "valu":
                if op.kind == "mfma" and rd & spw:
                    req = max(req, 2)
                if any(r[0] == "s" for r in spw):
                    if op.kind in ("vld", "vst") and rd & spw:
                        req = max(req, 5)
                    if op.kind == "valu" and rd & spw:
                        req = max(req, 2)
                    if op.kind == "salu" and rd & spw:
                        req = max(req, 4)
                if "readfirstlane" in op.text and rd & spw:
                    req = max(req, 1)
            elif kind == "vst":
                if wr & set(prd):
                    req = max(req, 2)
            need = max(need, req - dist)
            n = 1
            if text.startswith("s_nop"):
                n = int(text.split()[1]) + 1
            dist += n
        return need

    def put(self, op):
        nv, nl = self._needs([op])
        if nv >= 0 or nl >= 0:
            self.wait_for([op])
        h = self._hazard(op)
        if h > 0:
            self.out.append((f"s_nop {h - 1}", "salu", [], []))
            self.nnop += 1
        for r, t in op.rtag.items():
            assert self.tags.get(r) == t, ("tag mismatch", op.text, op.name, r, t, self.tags.get(r), op.gap)
        for r in op.wr:
            self.tags[r] = op.wtag.get(r, ("junk", op.text))
            self.pend.pop(r, None)
        if op.kind in ("vld", "vst"):
            self.vm.append(op)
            for r in op.wr:
                self.pend[r] = ("vm", len(self.vm) - 1)
        if op.kind in ("dsr", "dsw"):
            self.lg.append(op)
            for r in op.wr:
                self.pend[r] = ("lg", len(self.lg) - 1)
        if op.kind in ("dsr", "dsw"):
            op.seq = len(self.lg) - 1
        if op.lds_r:
            for u, t in op.lds_r:
                s = self.lds.get(u)
                assert s and s["tag"] == t and s["wseq"] < self.bar_done, ("lds read", op.text, op.name, u, t, s, self.bar_done, op.gap)
                s["rseq"] = op.seq
        if op.lds_w:
            for u, t in op.lds_w:
                s = self.lds.get(u)
                if s and s["tag"] != t:
                    assert 0 <= s["rseq"] < self.bar_done, ("lds WAR", op.text, op.name, u, t, s, self.bar_done, op.gap)
                    s = None
                if s is None:
                    s = self.lds[u] = {"tag": t, "rseq": -1, "n": 0}
                assert s["rseq"] == -1, ("lds write after first read", op.text, op.name, u, t, s)
                s["wseq"] = op.seq
                s["n"] += 1
        if op.kind == "bar":
            self.bar_done = self.lg_done
        self.out.append((op.text, op.kind, op.rd, op.wr))

    def raw(self, text, kind="salu", rd=(), wr=()):
        self.put(Op(text, kind, rd, wr, cost=0))

    def lines(self):
        return [o[0] for o in self.out]
```

```python
import sys
import struct
from sched import Op, R, schedule, Emitter, BIG

CFG = dict(D=12, E=8, LATG=30, st_gap=25.0, st0=1590, vlead=7, dbg=0, stf=" nt", nost=0, touch=1, ctouch=1, ptouch=1,
           ldsp=0, prom=1, tlag=0, par=0)
for a in sys.argv[1:]:
    k, v = a.split("=")
    CFG[k] = type(CFG[k])(v)

XB = 100663296
ROWB = 196608
UNIT = 8704
NP = 2592
NPASS = 2
UWAVE = 324 * 1024
fbits = lambda x: struct.unpack("<I", struct.pack("<f", x))[0]

if CFG["dbg"]:
    CFG["D"] = min(CFG["D"], 11)
D, E = CFG["D"], CFG["E"]
BUF = [192, 204]
UV0 = 216
AV0, AU0 = 192, 192 + 4 * E
NUA = (256 - AU0) // 4
NUV = D - NUA
TMP = UV0 + 4 * NUV
HAL = TMP + 7
vRaw, vHalo, vW, vHW, vRA, vRB, vU, vSt, vXw, vT, vJ = range(HAL + 6, HAL + 17)
assert vJ <= 255, vJ
sX, sXL, sXR, sUs, sO = 8, 12, 16, 20, 24
sRaw, sHalo, sRawB, sCol = 28, 29, 30, 31
sStA, sStY, sSt, sTo = 32, 33, 34, 35
sM5, s8, sMask, sM125, sUW, s025 = 40, 41, 42, 43, 44, 45
sU = 46
sY0, sWv = 49, 50
sRawC, sColC, sUC = 64, 70, 76
STB = 82


def acc(p, kb, y):
    o = (kb * 8 + y) * 4
    return {1: ("a", o), 2: ("a", 96 + o), 3: ("v", o), 4: ("v", 96 + o), 0: ("v", o), 5: ("v", 96 + o)}[p]


def uslot(n):
    s = n % D
    return ("a", AU0 + 4 * s) if s < NUA else ("v", UV0 + 4 * (s - NUA))


def vslot(n):
    return ("a", AV0 + 4 * (n % E))


rr = lambda f, a, n: f"{f}[{a}:{a + n - 1}]" if n > 1 else f"{f}{a}"


def LK(u, tag):
    return [((u, 0), tag), ((u, 1), tag)]


def X45(P):
    return (6, 7) if P % 2 == 0 else (0, 1)


def unit_of(P, c, p):
    x45 = X45(P)
    if p in (0, 5):
        i = 0 if p == 0 else 1
        if c == 0:
            return X45(P + 1)[i]
        if c == 5:
            return 8 + i
        return 10 + 2 * (c - 1) + i
    if c % 2 == 0:
        return 2 + (p - 1)
    if c < 5:
        return (x45[0], x45[1], 8, 9)[p - 1]
    return (x45[0], x45[1], 2, 3)[p - 1]


def nxt(P, c):
    return (P, c + 1) if c < 5 else ((P + 1, 0) if P + 1 < NPASS else None)


groups = []
for P in range(NPASS):
    for c in range(5):
        for p in (1, 2, 3, 4):
            groups.append((P, c, p, (0, 1, 2)))
    for p in (1, 2, 3, 4):
        groups.append((P, 5, p, (0,)))
    for p in (1, 2, 3, 4):
        groups.append((P, 5, p, (1, 2)))
    for kb in range(3):
        for p in (0, 5):
            for c in range(6):
                groups.append((P, c, p, (kb,)))

mf = []
ufr = []
vfr = []
cnt = {}
last_w = {}
first_w = {}
for (P, c, p, kbs) in groups:
    v0 = len(vfr)
    for rho in range(10):
        vfr.append(dict(P=P, c=c, p=p, rho=rho, first=None, last=None))
    for r in range(3):
        for kb in kbs:
            un = len(ufr)
            ufr.append(dict(P=P, c=c, p=p, kb=kb, r=r, first=len(mf), last=len(mf) + 7))
            for y in range(8):
                i = len(mf)
                vn = v0 + y + r
                if vfr[vn]["first"] is None:
                    vfr[vn]["first"] = i
                vfr[vn]["last"] = i
                f, a = acc(p, kb, y)
                uf, ua = uslot(un)
                vf, va = vslot(vn)
                key = (P, p, kb, y)
                n = cnt.get(key, 0)
                cnt[key] = n + 1
                init = n == 0 and p in (1, 2, 3, 4)
                csrc = "0" if init else rr(f, a, 4)
                rd = R(uf, ua, 4) + R(vf, va, 4) + ([] if init else R(f, a, 4))
                rtag = {x: ("U", un) for x in R(uf, ua, 4)}
                rtag.update({x: ("V", vn) for x in R(vf, va, 4)})
                if not init:
                    rtag.update({x: ("M", P, p, kb, y, n) for x in R(f, a, 4)})
                mf.append(Op(f"M {rr(f, a, 4)},{rr(uf, ua, 4)},{rr(vf, va, 4)},{csrc}", "mfma", rd, R(f, a, 4),
                             rtag=rtag, wtag={x: ("M", P, p, kb, y, n + 1) for x in R(f, a, 4)}))
                last_w[key] = i
                first_w.setdefault(key, i)
NM = len(mf)
assert NM == NP * NPASS


def Bgap(P, c):
    if c < 0:
        return Bgap(P - 1, 6) if P > 0 else -1
    if c <= 4:
        return P * NP + 288 * c + 278
    if c == 5:
        return P * NP + 1728 - 6
    return P * NP + NP - 10


def Bmid(P):
    return P * NP + 288 * 4 + 129


fixed = {}
for P in range(NPASS):
    lst = [Bgap(P, c) for c in range(6)] + [Bmid(P)]
    if P + 1 < NPASS:
        lst.append(Bgap(P, 6))
    for g in lst:
        fixed[g] = [Op("s_barrier", "bar")]

S_U = []
pro_U = []
cur_su = {}
for n, u in enumerate(ufr):
    off = (u["p"] * 3 + u["kb"]) * 3072
    rel = ufr[n - D]["last"] if n >= D else -BIG
    dst = pro_U if n < D else S_U
    kb = u["kb"]
    if cur_su.get(kb) != (u["c"], off):
        cur_su[kb] = (u["c"], off)
        dst.append(Op(f"s_add_u32 s{sU + kb},s{sUC + u['c']},{off}", "salu", [("s", sUC + u["c"])], [("s", sU + kb)], release=rel - 6,
                      target=rel - 6, deadline=rel + 4))
    f, a = uslot(n)
    dst.append(Op(f"buffer_load_dwordx4 {rr(f, a, 4)},v{vU},s[{sUs}:{sUs + 3}],s{sU + kb} offen offset:{u['r'] * 1024}", "vld",
                  [("v", vU), ("s", sU + kb)], R(f, a, 4), release=rel, target=rel - 100, deadline=rel + 6,
                  wtag={x: ("U", n) for x in R(f, a, 4)}))

S_V = []
pro_V = []
v_ops = []
vbase = 0
offs = [unit_of(v["P"], v["c"], v["p"]) * UNIT + v["rho"] * 256 for v in vfr]
for n, v in enumerate(vfr):
    rel = vfr[n - E]["last"] if n >= E else -BIG
    rel = max(rel, Bgap(v["P"], v["c"] - 1))
    dst = pro_V if n < E else S_V
    dl = v["first"] - 5
    if v["p"] in (0, 5):
        if v["P"] + 1 < NPASS:
            dl = min(dl, Bgap(v["P"], 6) - 1)
    elif v["c"] == 4 and v["p"] <= 2:
        dl = min(dl, Bmid(v["P"]) - 1)
    else:
        dl = min(dl, Bgap(v["P"], v["c"]) - 1)
    assert dl >= rel or n < E, (v, dl, rel)
    tg = max(rel, v["first"] - CFG["vlead"])
    if not (0 <= offs[n] - vbase <= 65535):
        lo = hi = offs[n]
        m = n
        while m < len(offs) and max(hi, offs[m]) - min(lo, offs[m]) <= 65535:
            lo, hi = min(lo, offs[m]), max(hi, offs[m])
            m += 1
        d = (lo - vbase) & 0xFFFFFFFF
        vbase = lo
        for reg in (vRA, vRB):
            dst.append(Op(f"v_add_u32 v{reg},{d:#x},v{reg}", "valu", [("v", reg)], [("v", reg)], release=rel - 3,
                          target=tg - 3, deadline=dl - 2))
    reg = vRA if v["rho"] in (0, 9) else vRB
    f, a = vslot(n)
    u = unit_of(v["P"], v["c"], v["p"])
    dst.append(Op(f"ds_read_b128 {rr(f, a, 4)},v{reg} offset:{offs[n] - vbase}", "dsr", [("v", reg)], R(f, a, 4),
                  release=rel, target=tg, deadline=dl, wtag={x: ("V", n) for x in R(f, a, 4)},
                  lds_r=LK(u, (v["P"], v["c"], v["p"]))))
    v_ops.append((dst[-1], v))


def tv(i):
    return TMP + i


def xform(t, spare):
    L = []
    t0, t1, t2, t3, t4, t5 = t
    a = spare
    L.append((f"v_fmac_f32 v{t0},s{sM125},v{t2}", [t0, t2], [t0]))
    L.append((f"v_fmac_f32 v{t5},4.0,v{t1}", [t5, t1], [t5]))
    L.append((f"v_fma_f32 v{a},-4.0,v{t2},v{t4}", [t2, t4], [a]))
    L.append((f"v_fmac_f32 v{t0},s{s025},v{t4}", [t0, t4], [t0]))
    L.append((f"v_fmac_f32 v{t5},s{sM5},v{t3}", [t5, t3], [t5]))
    L.append((f"v_sub_f32 v{t4},v{t4},v{t2}", [t4, t2], [t4]))
    L.append((f"v_fma_f32 v{t2},-4.0,v{t1},v{t3}", [t1, t3], [t2]))
    L.append((f"v_sub_f32 v{t3},v{t3},v{t1}", [t3, t1], [t3]))
    L.append((f"v_add_f32 v{t1},v{a},v{t2}", [a, t2], [t1]))
    L.append((f"v_sub_f32 v{a},v{a},v{t2}", [a, t2], [a]))
    L.append((f"v_fma_f32 v{t2},2.0,v{t3},v{t4}", [t3, t4], [t2]))
    L.append((f"v_fmac_f32 v{t4},-2.0,v{t3}", [t3, t4], [t4]))
    return L, [t0, t1, a, t2, t4, t5], t3


def V(text, rd, wr, **kw):
    return Op(text, "valu", [("v", x) for x in rd], [("v", x) for x in wr], **kw)


def touches(P, c, j, px, prom):
    ops = [Op(f"s_add_u32 s{sTo},s{sRawC + c},{(32 * P + 2 * j) * ROWB}", "salu", [("s", sRawC + c)], [("s", sTo)])]
    for fl in (" nt", "")[:1 + prom]:
        ops.append(Op(f"buffer_load_dword v{vJ},v{vT},s[{sX}:{sX + 3}],s{sTo} offen offset:{(px - 1) * 384}{fl}",
                      "vld", [("v", vT), ("s", sTo)], [("v", vJ)], name="touch"))
    return ops


def main_loads(P, c, j, buf, first=False):
    ops = []
    dep = []
    if first and CFG["ptouch"]:
        ops += touches(P, c, j, 1, 0) + touches(P, c, j, 2, 0)[1:]
    ops.append(Op(f"s_add_u32 s{sRaw},s{sRawC + c},{(32 * P + 2 * j) * ROWB}", "salu", [("s", sRawC + c)], [("s", sRaw)]))
    for jj in (0, 5, 1, 2, 3, 4):
        srd, imm = (sXL, 0) if jj == 0 else (sXR, 4 * 384) if jj == 5 else (sX, (jj - 1) * 384)
        o = Op(f"buffer_load_dwordx2 v[{buf + 2 * jj}:{buf + 2 * jj + 1}],v{vRaw},s[{srd}:{srd + 3}],s{sRaw} offen offset:{imm}",
               "vld", [("v", vRaw), ("s", sRaw)], R("v", buf + 2 * jj, 2),
               wtag={x: ("raw", P, c, j, jj) for x in R("v", buf + 2 * jj, 2)})
        ops.append(o)
        dep.append((o, jj))
    return ops, dep


def after_touches(P, c, j):
    if not CFG["touch"]:
        return []
    ops = []
    n = nxt(P, c)
    if c % 2 == 1 and n:
        ops += touches(n[0], n[1], j, 1, 1)
    nb = (P, c, j + 1) if j < 3 else (n + (0,) if n else None)
    if nb and nb[1] % 2 == 0 and nb[:2] != (0, 0):
        ops += touches(nb[0], nb[1], nb[2], 2, CFG["prom"])
    return ops


def main_compute(P, c, j, buf):
    ops = []
    for i in range(2):
        lo = [tv(k) for k in range(6)]
        hi = [buf + 2 * k + i for k in range(6)]
        for jj in (2, 0, 1, 5, 4, 3):
            ops.append(V(f"v_lshlrev_b32 v{lo[jj]},16,v{hi[jj]}", [hi[jj]], [lo[jj]], rtag={("v", hi[jj]): ("raw", P, c, j, jj)}))
        L, vlo, freed = xform(lo, tv(6))
        ops += [V(t, a, b) for t, a, b in L]
        for jj in (2, 0, 1, 5, 4, 3):
            ops.append(V(f"v_and_b32 v{hi[jj]},s{sMask},v{hi[jj]}", [hi[jj]], [hi[jj]], rtag={("v", hi[jj]): ("raw", P, c, j, jj)}))
        L, vhi, _ = xform(hi, freed)
        ops += [V(t, a, b) for t, a, b in L]
        for p in (0, 5, 1, 3, 2, 4):
            ops.append(V(f"v_cvt_pk_bf16_f32 v{hi[p]},v{vlo[p]},v{vhi[p]}", [vlo[p], vhi[p]], [hi[p]],
                         wtag={("v", hi[p]): ("Vp", P, c, j, p)}))
    return ops


def main_writes(P, c, j, buf, rel, rel_late):
    ops = []
    wr = {}
    for pa, pb in ((0, 5), (1, 2), (3, 4)):
        ua, ub = unit_of(P, c, pa), unit_of(P, c, pb)
        base, sh = vW, 0
        r = rel_late if pa == 3 else rel
        if max(ua, ub) * 17 + j > 255:
            sh = min(ua, ub)
            base = tv(0)
            ops.append(V(f"v_add_u32 v{base},{sh * UNIT},v{vW}", [vW], [base]))
        o = Op(f"ds_write2st64_b64 v{base},v[{buf + 2 * pa}:{buf + 2 * pa + 1}],v[{buf + 2 * pb}:{buf + 2 * pb + 1}] "
               f"offset0:{(ua - sh) * 17 + j} offset1:{(ub - sh) * 17 + j}", "dsw",
               [("v", base)] + R("v", buf + 2 * pa, 2) + R("v", buf + 2 * pb, 2), [], cost=5, release=r,
               rtag={**{x: ("Vp", P, c, j, pa) for x in R("v", buf + 2 * pa, 2)},
                     **{x: ("Vp", P, c, j, pb) for x in R("v", buf + 2 * pb, 2)}},
               lds_w=LK(ua, (P, c, pa)) + LK(ub, (P, c, pb)))
        ops.append(o)
        wr[pa] = wr[pb] = o
    return ops, wr


def halo_loads(P, c, regs):
    ops = []
    sHalo = sColC + c
    for jj in range(6):
        srd, imm = (sXL, 0) if jj == 0 else (sXR, 4 * 384) if jj == 5 else (sX, (jj - 1) * 384)
        ops.append(Op(f"buffer_load_short_d16_hi v{regs + jj},v{vHalo},s[{srd}:{srd + 3}],s{sHalo} offen offset:{imm}",
                      "vld", [("v", vHalo), ("s", sHalo)], [("v", regs + jj)], wtag={("v", regs + jj): ("hraw", P, c, jj)}))
    return ops


def halo_compute(P, c, regs, rel, rel_late):
    ops = []
    L, vr, _ = xform([regs + k for k in range(6)], tv(0))
    seen = set()
    for t, a, b in L:
        rt = {("v", x): ("hraw", P, c, x - regs) for x in a if regs <= x < regs + 6 and x not in seen}
        seen.update(b)
        ops.append(V(t, a, b, rtag=rt))
    pk = {}
    for k, (pa, pb) in enumerate(((0, 5), (1, 2), (3, 4))):
        ops.append(V(f"v_cvt_pk_bf16_f32 v{tv(1 + k)},v{vr[pa]},v{vr[pb]}", [vr[pa], vr[pb]], [tv(1 + k)]))
        pk[pa] = (tv(1 + k), "")
        pk[pb] = (tv(1 + k), "_d16_hi")
    free_raw = ops[-1]
    sh_cur = None
    for p in (0, 5, 1, 2, 3, 4):
        u = unit_of(P, c, p)
        base, off = vHW, u * UNIT
        if off > 65535:
            if sh_cur is None or not (0 <= off - sh_cur <= 65535):
                sh_cur = off
                ops.append(V(f"v_add_u32 v{tv(0)},{off},v{vHW}", [vHW], [tv(0)]))
            base, off = tv(0), off - sh_cur
        ops.append(Op(f"ds_write_b16{pk[p][1]} v{base},v{pk[p][0]} offset:{off}", "dsw", [("v", base), ("v", pk[p][0])], [], cost=2,
                      release=rel_late if p in (3, 4) else rel, lds_w=LK(u, (P, c, p))))
    return ops, free_raw


def halo_addr(P):
    t0, t1 = tv(0), tv(1)
    return [V(f"v_bfe_u32 v{t0},v{vU},9,1", [vU], [t0]),
            V(f"v_mul_u32_u24 v{t0},33,v{t0}", [t0], [t0]),
            Op(f"v_add_u32 v{t0},s{sY0},v{t0}", "valu", [("v", t0), ("s", sY0)], [("v", t0)]),
            V(f"v_add_u32 v{t0},{32 * P - 1},v{t0}", [t0], [t0]),
            V(f"v_mul_u32_u24 v{t1},{ROWB},v{t0}", [t0], [t1]),
            V(f"v_cmp_gt_u32 vcc,512,v{t0}", [t0], []),
            V(f"v_bfe_u32 v{t0},v{vU},3,6", [vU], [t0]),
            V(f"v_add_u32 v{t1},v{t1},v{t0}", [t0, t1], [t1]),
            V(f"v_bfrev_b32 v{t0},1", [], [t0]),
            V(f"v_cndmask_b32 v{vHalo},v{t0},v{t1},vcc", [t0, t1], [vHalo])]


def stage_write(P, key, slot, ra, rb):
    u, h = slot
    off = u * 17 + h * 8
    assert off + 4 <= 255
    return Op(f"ds_write2st64_b64 v{vXw},v[{ra}:{ra + 1}],v[{rb}:{rb + 1}] offset0:{off} offset1:{off + 4}", "dsw",
              [("v", vXw)] + R("v", ra, 2) + R("v", rb, 2), [], cost=5,
              rtag={**{x: ("Y", P, key, 0) for x in R("v", ra, 2)}, **{x: ("Y", P, key, 1) for x in R("v", rb, 2)}},
              lds_w=[(slot, ("X", P, key))])


XT = 0
XTB = 8 * UNIT


def stage_read(P, key, slot):
    kb, kind, y = key
    if kind == "s":
        f, a = acc(1, kb, y)
        nw = (1, kb, y)
        so, imm = f"s{sStA},{(32 * P + y) * ROWB}", 384 + 128 * kb
    else:
        p = 0 if kind == 0 else 5
        if kb == 0:
            yy = y + (0 if kind == 0 else 4)
            f, a = acc(2, kb, yy)
            nw = (2, kb, yy)
        else:
            f, a = acc(p, kb, 2 * y)
            nw = (3 if p == 0 else 4, kb, 2 * y)
        so, imm = f"s{sStY},{(32 * P + 2 * y) * ROWB}", kind * 384 + 128 * kb
    off = slot[0] * UNIT + slot[1] * 4096
    base = vU
    if off > 65535:
        base, off = XT, off - XTB
    rd = Op(f"ds_read_b128 {rr(f, a, 4)},v{base} offset:{off}", "dsr", [("v", base)], R(f, a, 4),
            wtag={x: ("L", P, key) for x in R(f, a, 4)}, lds_r=[(slot, ("X", P, key))],
            rtag={("v", XT): ("XT", P)} if base == XT else None)
    dl = first_w[(P + 1,) + nw] - 2 if P + 1 < NPASS else BIG
    s = Op(f"s_add_u32 s{sSt},{so}", "salu", [], [("s", sSt)])
    if CFG["nost"]:
        st = Op("v_nop", "valu", R(f, a, 4), [], deadline=dl, after=[(rd, 5)])
    else:
        st = Op(f"buffer_store_dwordx4 {rr(f, a, 4)},v{vSt},s[{sO}:{sO + 3}],s{sSt} offen offset:{imm}{CFG['stf']}", "vst",
                R(f, a, 4) + [("v", vSt), ("s", sSt)], [], cost=6, deadline=dl, rtag={x: ("L", P, key) for x in R(f, a, 4)},
                after=[(rd, 5)])
    return rd, [s, st]


def sw_block(P, kb, y, slot):
    ops = []
    rel = last_w[(P, 4, kb, y)] + 3
    a1, a2, m3, m4 = acc(1, kb, y)[1], acc(2, kb, y)[1], acc(3, kb, y)[1], acc(4, kb, y)[1]
    pk = [tv(0), tv(2)]
    key = (kb, "s", y)
    for h in range(2):
        us, t2s = [pk[1] + h, tv(4)], [pk[0] + h, tv(5)]
        t1 = tv(6)
        for e in range(2):
            i = 2 * h + e
            u, t2 = us[e], t2s[e]
            M3, M4 = m3 + i, m4 + i
            dl0 = first_w[(P, 0, kb, y)] - 2
            dl3 = first_w[(P, 5, kb, y)] - 2
            ops.append(Op(f"v_accvgpr_read_b32 v{t1},a{a1 + i}", "valu", [("a", a1 + i)], [("v", t1)], release=rel,
                          rtag={("a", a1 + i): ("M", P, 1, kb, y, 18)}))
            ops.append(Op(f"v_accvgpr_read_b32 v{t2},a{a2 + i}", "valu", [("a", a2 + i)], [("v", t2)],
                          rtag={("a", a2 + i): ("M", P, 2, kb, y, 18)}))
            ops.append(V(f"v_add_f32 v{u},v{t1},v{t2}", [t1, t2], [u]))
            ops.append(V(f"v_sub_f32 v{t1},v{t1},v{t2}", [t1, t2], [t1]))
            ops.append(V(f"v_add_f32 v{t2},v{M3},v{M4}", [M3, M4], [t2],
                         rtag={("v", M3): ("M", P, 3, kb, y, 18), ("v", M4): ("M", P, 4, kb, y, 18)}))
            ops.append(V(f"v_sub_f32 v{M4},v{M3},v{M4}", [M3, M4], [M4]))
            ops.append(V(f"v_add_f32 v{M3},v{u},v{t2}", [u, t2], [M3], wtag={("v", M3): ("M", P, 0, kb, y, 0)}, deadline=dl0))
            ops.append(V(f"v_fmac_f32 v{u},4.0,v{t2}", [u, t2], [u]))
            ops.append(V(f"v_fma_f32 v{t2},2.0,v{M4},v{t1}", [M4, t1], [t2]))
            ops.append(Op(f"v_fma_f32 v{M4},s{s8},v{M4},v{t1}", "valu", [("v", M4), ("v", t1)], [("v", M4)],
                          wtag={("v", M4): ("M", P, 5, kb, y, 0)}, deadline=dl3))
        for m, src in ((1, t2s), (2, us)):
            d = pk[m - 1] + h
            ops.append(V(f"v_cvt_pk_bf16_f32 v{d},v{src[0]},v{src[1]}", src, [d], wtag={("v", d): ("Y", P, key, m - 1)}))
    ops.append(stage_write(P, key, slot, pk[0], pk[1]))
    return ops


def fin_block(P, kb, m, yp, slot):
    ops = []
    p = 0 if m == 0 else 5
    key = (kb, m, yp)
    for k in range(2):
        y = 2 * yp + k
        a = acc(p, kb, y)[1]
        for h in range(2):
            ops.append(V(f"v_cvt_pk_bf16_f32 v{a + h},v{a + 2 * h},v{a + 2 * h + 1}", [a + 2 * h, a + 2 * h + 1], [a + h],
                         release=last_w[(P, p, kb, y)] + 3,
                         rtag={("v", a + 2 * h + 1): ("M", P, p, kb, y, 18)}, wtag={("v", a + h): ("Y", P, key, k)}))
    ops.append(stage_write(P, key, slot, acc(p, kb, 2 * yp)[1], acc(p, kb, 2 * yp + 1)[1]))
    return ops


S_main, S_ld, S_x, S_st = [], [], [], []
pending_bars = []


def flush_bars():
    for pos, lag, b in sorted(pending_bars, key=lambda x: -x[0]):
        while lag > 0 and pos < len(S_main) and S_main[pos].kind == "valu":
            pos += 1
            lag -= 1
        S_main.insert(pos, b)
    pending_bars.clear()


PB = [0, 12, 24, 36]
PH = 48
pro_loads = []
for j in range(4):
    pro_loads += main_loads(0, 0, j, PB[j], first=True)[0]
pro_loads += halo_loads(0, 0, PH)
NPRO0 = len(pro_loads)

prev_wr = {0: None, 1: None}
prev_hfree = None
ld_ops = {}
in_ld = set()


def add_loads(P, c, j):
    b = j % 2
    o, dep = main_loads(P, c, j, BUF[b])
    ld_ops[(P, c, j)] = o[-1]
    pw = prev_wr[b]
    tch = after_touches(P, c, j)
    if pw is None:
        pro_loads.extend(o + tch)
        return
    for op in tch:
        op.target = -BIG
        op.after = [(o[-1], CFG["tlag"])]
    o[0].after = [(pw[0], -1)]
    for op, slot in dep:
        op.after = [(pw[slot], 0)]
    prev = None
    for op in o:
        op.target = -BIG
        if op.kind == "vld":
            if prev is not None and CFG["ldsp"] and not (prev.name == "touch" and "nt" in prev.text):
                op.after.append((prev, CFG["ldsp"]))
            prev = op
    S_ld.extend(o + tch)
    in_ld.add(id(o[-1]))


def add_halo_loads(P, c, extra_after=()):
    o = halo_loads(P, c, HAL)
    ld_ops[(P, c, "h")] = o[-1]
    if prev_hfree is None:
        pro_loads.extend(o)
        return
    for op in o:
        op.after = [(prev_hfree, 1)] + list(extra_after)
        op.target = -BIG
    S_ld.extend(o)
    in_ld.add(id(o[-1]))


def add_round(P, c, j, rel, rel_late, dl, compute=True, write=True):
    b = j % 2
    if compute:
        ops = main_compute(P, c, j, BUF[b])
        if id(ld_ops[(P, c, j)]) in in_ld:
            ops[0].after = [(ld_ops[(P, c, j)], CFG["LATG"])]
        S_main.extend(ops)
    if write:
        ops, wr = main_writes(P, c, j, BUF[b], rel, rel_late)
        ops[-1].deadline = dl
        S_main.extend(ops)
        prev_wr[b] = wr


def add_halo(P, c, rel, rel_late, dl):
    global prev_hfree
    ops, fr = halo_compute(P, c, HAL, rel, rel_late)
    if id(ld_ops[(P, c, "h")]) in in_ld:
        ops[0].after = [(ld_ops[(P, c, "h")], CFG["LATG"])]
    ops[-1].deadline = dl
    S_main.extend(ops)
    prev_hfree = fr


reads_prev = []
unread = []
stores = []


def unit(P, key, slot, rel=-BIG):
    ops = sw_block(P, key[0], key[2], slot) if key[1] == "s" else fin_block(P, key[0], key[1], key[2], slot)
    ops[-1].release = max(ops[-1].release, rel)
    S_main.extend(ops)
    unread.append((key, slot, ops[-1]))


def xbar(P, release=-BIG, extra_needs=(), lag=6):
    global reads_prev, unread
    b = Op("s_barrier", "bar", needs=[w for _, _, w in unread] + reads_prev + list(extra_needs), release=release,
           after=[(o, 4) for o in reads_prev + list(extra_needs)] + [(w, 3) for _, _, w in unread])
    pending_bars.append((len(S_main), lag, b))
    reads_prev = []
    for key, slot, _ in unread:
        rd, st = stage_read(P, key, slot)
        rd.after = [(b, 0)]
        rd.target = -BIG
        S_x.append(rd)
        reads_prev.append(rd)
        stores.append(st)
    unread = []
    if lag == 0:
        flush_bars()
    return b


add_loads(0, 1, 0)
add_loads(0, 1, 1)
add_halo_loads(0, 1)
for P in range(NPASS):
    for c in range(1, 6):
        rel = Bgap(P, c - 2)
        rel_late = Bmid(P) if c == 5 else rel
        dl = Bgap(P, c - 1) - 3
        n = nxt(P, c)
        for j in [0, 1, "h", 2, 3]:
            if j == "h":
                add_halo(P, c, rel, rel_late, dl)
                if n:
                    if n[1] == 0:
                        ha = halo_addr(n[0])
                        S_main.extend(ha)
                        add_halo_loads(n[0], n[1], [(ha[-1], 1)])
                    else:
                        add_halo_loads(*n)
            else:
                add_round(P, c, j, rel, rel_late, dl)
                if j < 2:
                    add_loads(P, c, j + 2)
                elif n:
                    add_loads(n[0], n[1], j - 2)
    more = P + 1 < NPASS
    dl = Bgap(P, 6) - 3
    ringA = [(4, 0), (4, 1), (5, 0), (5, 1)]
    ringB = [(u, h) for u in (2, 3) + X45(P) + (4, 5) for h in (0, 1)]
    reads_prev, stores = [], []
    if more:
        add_round(P + 1, 0, 0, None, None, dl, write=False)
    for k in range(4):
        for y in (2 * k, 2 * k + 1):
            unit(P, (0, "s", y), ringA[y % 4])
        xbar(P)
    nb = 0
    for batch in ([(1, "s", y) for y in range(4)], [(0, 0, y) for y in range(4)] + [(1, "s", 4), (1, "s", 5)],
                  [(1, "s", 6), (1, "s", 7)] + [(0, 3, y) for y in range(4)],
                  [(2, "s", y) for y in range(4)], [(1, 0, y) for y in range(4)] + [(2, "s", 4), (2, "s", 5)],
                  [(2, "s", 6), (2, "s", 7)] + [(1, 3, y) for y in range(4)]):
        for k, key in enumerate(batch):
            unit(P, key, ringB[6 * (nb % 2) + k], Bgap(P, 5))
        nb += 1
        xbar(P)
        if nb == 3 and more:
            S_x.append(V(f"v_add_u32 v{XT},{XTB},v{vU}", [vU], [XT], wtag={("v", XT): ("XT", P)}))
    if more:
        p0_reads = [op for op, v in v_ops if v["P"] == P and v["p"] == 0 and v["first"] >= P * NP + NP - 288]
        add_round(P + 1, 0, 1, None, None, dl, write=False)
        xbar(P, lag=0)
        for j in (0, 1):
            add_round(P + 1, 0, j, -BIG, -BIG, dl, compute=False)
            add_loads(P + 1, 0, j + 2)
        add_halo(P + 1, 0, -BIG, -BIG, dl)
        add_halo_loads(P + 1, 1)
        add_round(P + 1, 0, 2, -BIG, -BIG, dl)
        add_loads(P + 1, 1, 0)
        xbar(P, extra_needs=p0_reads[-1:], lag=0)
        for y in range(4):
            unit(P, (2, 0, y), [(8, 0), (8, 1), (10, 0), (10, 1)][y])
        xbar(P)
        for op in reads_prev:
            op.deadline = dl
        add_round(P + 1, 0, 3, -BIG, -BIG, dl)
        add_loads(P + 1, 1, 1)
        for y in range(4):
            unit(P, (2, 3, y), [(12, 0), (12, 1), (14, 0), (14, 1)][y])
        xbar(P)
        for op in reads_prev:
            op.deadline = Bgap(P + 1, 0) - 3
    else:
        flush_bars()
        for y in range(4):
            unit(P, (2, 0, y), ringB[y])
        xbar(P, lag=0)
        for y in range(4):
            unit(P, (2, 3, y), ringB[6 + y])
        xbar(P, lag=0)
    t = P * NP + float(CFG["st0"])
    gap = CFG["st_gap"] if more else (NP - 30 - CFG["st0"]) / 44.0
    for s, st in stores:
        s.release = st.release = int(t) if t < NM - 8 else -BIG
        s.target = st.target = int(t)
        s.after = list(st.after)
        t += gap
        S_st.extend([s, st])
flush_bars()


def propagate(st, rate):
    nd = BIG
    for op in reversed(st):
        if nd < BIG:
            nd -= (op.cost if op.cost else 0.0) / rate + (0.34 if op.mem or op.kind == "bar" else 0)
        op.deadline = min(op.deadline, nd)
        nd = min(nd, op.deadline)
    for op in st:
        if op.deadline < BIG:
            op.deadline = int(op.deadline // 1)


propagate(S_st, 8.0)
for st in (S_st, S_x):
    for s in st:
        for a, d in s.after:
            a.deadline = min(a.deadline, s.deadline - d)
    propagate(S_x, 4.0)
propagate(S_main, 4.0)
for op in S_main:
    if op.target is None:
        op.target = op.deadline + 1000

streams = [S_U, S_V, S_ld, S_x, S_st, S_main]
bud = [2.0] * (NM // 288)
best = None
for it in range(6):
    for st in streams:
        for op in st:
            op.gap = None
    for op in pro_loads + pro_U + pro_V:
        op.gap = -BIG
    gaps, late = schedule(NM, streams, fixed, lambda g: bud[g // 288])
    tot = [0] * (NM // 288)
    und = [0] * (NM // 288)
    for g, cur in enumerate(gaps[:-1]):
        tot[g // 288] += max(2, cur["used"])
        und[g // 288] += max(0, 2 - cur["used"])
    est = sum(8 + 4 * max(2, c["used"]) for c in gaps[:-1])
    print(f"; iter {it}: est {est} cycles, late {len(late)}, tail ops {len(gaps[-1]['valu'])}, phases {[round(t / 288, 2) for t in tot]} "
          f"underfill {und}", file=sys.stderr)
    for w in range(len(bud)):
        bud[w] = max(2.0, 0.5 * bud[w] + 0.5 * (tot[w] - und[w]) / 288)
for op, g in late[:20]:
    print("; late", op.text, op.deadline, g, file=sys.stderr)

em = Emitter()
S = lambda t, rd=(), wr=(): em.raw(t, "salu", [("s", x) for x in rd], [("s", x) for x in wr])
VV = lambda t, rd=(), wr=(), srd=(), swr=(): em.raw(t, "valu", [("v", x) for x in rd] + [("s", x) for x in srd],
                                                    [("v", x) for x in wr] + [("s", x) for x in swr])
nst = [0]
vDBG = vJ + 1
assert vDBG <= 255 or not CFG['dbg']


def stamp():
    if not CFG["dbg"]:
        return
    if nst[0] > 0:
        S(f"v_writelane_b32 v{vDBG},s98,{nst[0] - 1}")
    S("s_memtime s[98:99]")
    nst[0] += 1


S("s_cmp_ge_u32 s2,256")
S("s_cbranch_scc0 L_go\ns_endpgm\nL_go:")
if CFG["dbg"]:
    S("s_memrealtime s[96:97]")
stamp()
S("s_load_dwordx2 s[4:5],s[0:1],0")
S("s_load_dwordx2 s[6:7],s[0:1],16")
S("s_load_dwordx2 s[52:53],s[0:1],32")
t0, t1, t2, t3, ln = 60, 61, 62, 63, 64
VV(f"v_lshrrev_b32 v{t0},6,v0", [0], [t0])
VV(f"v_and_b32 v{ln},63,v0", [0], [ln])
VV(f"v_readfirstlane_b32 s{sWv},v{t0}", [t0], [], [], [sWv])
VV(f"v_lshrrev_b32 v{t0},4,v{ln}", [ln], [t0])
VV(f"v_bfe_u32 v{t1},v{ln},3,1", [ln], [t1])
VV(f"v_lshl_add_u32 v{t1},v{t0},3,v{t1}", [t0, t1], [t1])
VV(f"v_and_b32 v{t2},7,v{ln}", [ln], [t2])
VV(f"v_mul_u32_u24 v{vRaw},{ROWB},v{t1}", [t1], [vRaw])
VV(f"v_lshl_add_u32 v{vRaw},v{t2},3,v{vRaw}", [t2, vRaw], [vRaw])
VV(f"v_lshlrev_b32 v{vU},4,v0", [0], [vU])
VV(f"v_bfe_u32 v{t3},v{ln},2,1", [ln], [t3])
VV(f"v_mul_u32_u24 v{t3},768,v{t3}", [t3], [t3])
VV(f"v_mul_u32_u24 v{vT},{ROWB},v{t1}", [t1], [vT])
VV(f"v_add_u32 v{vT},v{vT},v{t3}", [t3, vT], [vT])
S("s_and_b32 s54,s2,7", [2], [54])
S("s_lshr_b32 s55,s2,3", [2], [55])
S(f"s_lshl_b32 s{sY0},s54,6", [54], [sY0])
S("s_lshl_b32 s55,s55,4", [55], [55])
S(f"s_lshl_b32 s56,s{sWv},2", [sWv], [56])
S("s_add_u32 s56,s56,s55", [55, 56], [56])
S(f"s_mul_i32 s{sCol},s56,384", [56], [sCol])
S(f"s_mul_i32 s57,s{sY0},{ROWB}", [sY0], [57])
S(f"s_add_u32 s{sRawB},s57,s{sCol}", [57, sCol], [sRawB])
S(f"s_mul_i32 s{sUW},s{sWv},{UWAVE - 1024}", [sWv], [sUW])
if CFG["par"]:
    S(f"s_bfe_u32 s58,s2,{0x10000 + (0 if CFG['par'] == 1 else 3)}")
else:
    S("s_mov_b32 s58,0")
for c in range(6):
    S(f"s_add_u32 s59,s58,{c}")
    if c == 5:
        S("s_cmp_eq_u32 s59,6\ns_cselect_b32 s59,0,s59")
    S(f"s_mul_i32 s60,s59,{18 * 3072}\ns_lshl_b32 s59,s59,6")
    S(f"s_add_u32 s{sRawC + c},s{sRawB},s59\ns_add_u32 s{sColC + c},s{sCol},s59\ns_add_u32 s{sUC + c},s{sUW},s60")
S("s_waitcnt lgkmcnt(0)")
S(f"s_mov_b32 s{sX},s4"); S(f"s_and_b32 s{sX + 1},s5,0xffff"); S(f"s_mov_b32 s{sX + 2},{XB}"); S(f"s_mov_b32 s{sX + 3},0x20000")
S(f"s_sub_u32 s{sXL},s4,384"); S(f"s_subb_u32 s{sXL + 1},s{sX + 1},0")
S("s_cmp_eq_u32 s56,0"); S(f"s_cselect_b32 s{sXL + 2},0,{XB + 384}"); S(f"s_mov_b32 s{sXL + 3},0x20000")
S(f"s_mov_b32 s{sXR},s4"); S(f"s_mov_b32 s{sXR + 1},s{sX + 1}")
S("s_cmp_eq_u32 s56,508"); S(f"s_cselect_b32 s{sXR + 2},0,{XB}"); S(f"s_mov_b32 s{sXR + 3},0x20000")
for op in halo_addr(0):
    em.put(op)
for op in pro_loads[:NPRO0]:
    em.put(op)
if CFG["ctouch"]:
    S("s_getpc_b64 s[60:61]")
    S(f"s_lshr_b32 s62,s2,3\ns_lshl_b32 s62,s62,2\ns_add_u32 s62,s62,s{sWv}\ns_lshl_b32 s62,s62,10")
    VV(f"v_and_b32 v66,7,v{ln}", [ln], [66])
    VV(f"v_lshl_add_u32 v66,v66,7,s62", [66], [66])
    VV(f"v_min_u32 v66,L_code_end-L_go-2048,v66", [66], [66])
    em.put(Op("global_load_dword v67,v66,s[60:61]", "vld", [("v", 66)], [("v", 67)]))
S(f"s_mov_b32 s{sUs},s52"); S(f"s_and_b32 s{sUs + 1},s53,0xffff"); S(f"s_mov_b32 s{sUs + 2},{4 * UWAVE}"); S(f"s_mov_b32 s{sUs + 3},0x20000")
for op in pro_U:
    em.put(op)
S(f"s_mov_b32 s{sO},s6"); S(f"s_and_b32 s{sO + 1},s7,0xffff"); S(f"s_mov_b32 s{sO + 2},{XB}"); S(f"s_mov_b32 s{sO + 3},0x20000")
S(f"s_mov_b32 s{sM5},{fbits(-5.0):#x}"); S(f"s_mov_b32 s{s8},{fbits(8.0):#x}"); S(f"s_mov_b32 s{sMask},0xffff0000")
S(f"s_mov_b32 s{sM125},{fbits(-1.25):#x}"); S(f"s_mov_b32 s{s025},{fbits(0.25):#x}")
S("s_mul_i32 s58,s55,384", [55], [58])
S("s_add_u32 s58,s57,s58", [57, 58], [58])
S(f"s_lshr_b32 s59,s{sWv},1", [sWv], [59])
S(f"s_mul_i32 s{sStA},s59,384", [59], [sStA])
S(f"s_mul_i32 s{sStY},s59,{ROWB}", [59], [sStY])
S(f"s_add_u32 s{sStA},s{sStA},s58", [58, sStA], [sStA])
S(f"s_add_u32 s{sStY},s{sStY},s58", [58, sStY], [sStY])
S(f"s_lshl_b32 s59,s{sWv},6", [sWv], [59])
VV(f"v_lshlrev_b32 v{vW},8,v{t1}", [t1], [vW])
VV(f"v_and_b32 v{t3},1,v{t0}", [t0], [t3])
VV(f"v_xor_b32 v{t3},1,v{t3}", [t3], [t3])
VV(f"v_lshlrev_b32 v{t3},2,v{t3}", [t3], [t3])
VV(f"v_xor_b32 v{t3},v{t3},v{t2}", [t3, t2], [t3])
VV(f"v_lshl_add_u32 v{vW},v{t3},3,v{vW}", [t3, vW], [vW])
VV(f"v_add_u32 v{vW},s59,v{vW}", [vW], [vW], [59])
VV(f"v_add_u32 v{vW},256,v{vW}", [vW], [vW])
VV(f"v_lshrrev_b32 v{t0},5,v{ln}", [ln], [t0])
VV(f"v_mul_u32_u24 v{vHW},{33 * 256},v{t0}", [t0], [vHW])
VV(f"v_lshlrev_b32 v{t0},5,v{t0}", [t0], [t0])
VV(f"v_bfe_u32 v{t1},v{vU},3,6", [vU], [t1])
VV(f"v_xor_b32 v{t1},v{t1},v{t0}", [t0, t1], [t1])
VV(f"v_add3_u32 v{vHW},v{vHW},v{t1},s59", [vHW, t1], [vHW], [59])
VV(f"v_bfe_u32 v{t0},v{ln},2,2", [ln], [t0])
VV(f"v_and_b32 v{t1},3,v{ln}", [ln], [t1])
VV(f"v_lshrrev_b32 v{t2},4,v{ln}", [ln], [t2])
VV(f"v_lshlrev_b32 v{vRA},11,v{t0}", [t0], [vRA])
VV(f"v_lshl_add_u32 v{vRA},v{t1},6,v{vRA}", [t1, vRA], [vRA])
VV(f"v_and_b32 v{t3},1,v{t0}", [t0], [t3])
VV(f"v_lshlrev_b32 v{t3},1,v{t3}", [t3], [t3])
VV(f"v_xor_b32 v{t3},v{t3},v{t2}", [t3, t2], [t3])
VV(f"v_lshl_add_u32 v{vRA},v{t3},4,v{vRA}", [t3, vRA], [vRA])
VV(f"v_xor_b32 v{vRB},32,v{vRA}", [vRA], [vRB])
VV(f"v_lshrrev_b32 v{t0},1,v{t2}", [t2], [t0])
VV(f"v_lshl_add_u32 v{t0},s{sWv},1,v{t0}", [t0], [t0], [sWv])
VV(f"v_and_b32 v{t1},7,v{ln}", [ln], [t1])
VV(f"v_xor_b32 v{t0},v{t0},v{t1}", [t0, t1], [t0])
VV(f"v_and_b32 v{t3},15,v{ln}", [ln], [t3])
VV(f"v_lshlrev_b32 v{vXw},7,v{t3}", [t3], [vXw])
VV(f"v_lshl_add_u32 v{vXw},v{t0},4,v{vXw}", [t0, vXw], [vXw])
VV(f"v_and_b32 v{t3},1,v{t2}", [t2], [t3])
VV(f"v_lshl_add_u32 v{vXw},v{t3},3,v{vXw}", [t3, vXw], [vXw])
VV(f"v_bfe_u32 v{t0},v{vU},7,4", [vU], [t0])
VV(f"v_lshrrev_b32 v{t2},2,v{t0}", [t0], [t2])
VV(f"v_mul_u32_u24 v{vSt},{8 * ROWB},v{t2}", [t2], [vSt])
VV(f"v_and_b32 v{t2},3,v{t0}", [t0], [t2])
VV(f"v_mul_u32_u24 v{t2},1536,v{t2}", [t2], [t2])
VV(f"v_and_b32 v{t0},7,v{t0}", [t0], [t0])
VV(f"v_xor_b32 v{t0},v{t0},v{t1}", [t0, t1], [t0])
VV(f"v_lshl_add_u32 v{t0},v{t0},4,v{t2}", [t0, t2], [t0])
VV(f"v_add_u32 v{vSt},v{vSt},v{t0}", [t0, vSt], [vSt])
stamp()
rest = pro_loads[NPRO0:]
for j in range(4):
    for k, op in enumerate(main_compute(0, 0, j, PB[j])):
        em.put(op)
        if j == 0 and k == 17:
            stamp()
    for op in main_writes(0, 0, j, PB[j], -BIG, -BIG)[0]:
        em.put(op)
    if j == 1:
        for op in rest:
            em.put(op)
for op in halo_compute(0, 0, PH, -BIG, -BIG)[0]:
    em.put(op)
stamp()
em.put(Op("s_barrier", "bar"))
for op in pro_V:
    em.put(op)
stamp()
nfree = 0
stamp_gaps = set(P * NP + 288 * k - 1 for P in range(NPASS) for k in range(1, 10))
probe = set()
if CFG["dbg"] == 3:
    stamp_gaps = set()
    probe = set(id(ld_ops[k]) for k in [(0, 2, 1), (0, 2, 3), (0, 3, 1), (0, 3, 3), (0, 4, 2), (1, 0, 3), (1, 2, 2), (1, 3, 2), (1, 4, 1)])
for g in range(NM):
    em.put(mf[g])
    if g in stamp_gaps and g < NM - 1:
        stamp()
    cur = gaps[g]
    body = cur["sc"] + cur["mem"] + cur["valu"]
    if g < NM - 1:
        w = em.wait_for(body + [mf[g + 1]])
        if w and cur["sc"] and cur["sc"][0].kind != "bar":
            nfree += 1
    for op in body:
        em.put(op)
        if id(op) in probe:
            S("s_waitcnt lgkmcnt(0)")
            stamp()
            S("s_waitcnt vmcnt(0) lgkmcnt(0)")
            stamp()
            S("s_waitcnt lgkmcnt(0)")
if CFG["dbg"]:
    stamp()
    S("s_waitcnt vmcnt(0) lgkmcnt(0)")
    stamp()
    S("s_memrealtime s[94:95]")
    S("s_waitcnt lgkmcnt(0)")
    S(f"v_writelane_b32 v{vDBG},s98,{nst[0] - 1}")
    S(f"s_sub_u32 s94,s94,s96\nv_writelane_b32 v{vDBG},s94,{nst[0]}\nv_writelane_b32 v{vDBG},s96,{nst[0] + 1}")
    S(f"s_getreg_b32 s95,hwreg(HW_REG_XCC_ID)\nv_writelane_b32 v{vDBG},s95,{nst[0] + 2}")
    S(f"s_mov_b32 s{sUs + 2},0x1000000")
    S(f"s_lshl_b32 s54,s2,2\ns_add_u32 s54,s54,s{sWv}\ns_lshl_b32 s54,s54,7\ns_add_u32 s54,s54,0x400000")
    S(f"v_bfe_u32 v1,v{vU},4,6\nv_lshlrev_b32 v1,2,v1\ns_mov_b64 exec,0xffffffff\ns_mov_b32 exec_hi,0")
    S(f"buffer_store_dword v{vDBG},v1,s[{sUs}:{sUs + 3}],s54 offen")
    if CFG["dbg"] == 2:
        S("s_load_dwordx2 s[4:5],s[0:1],24\ns_waitcnt lgkmcnt(0)")
        S(f"s_lshl_b32 s54,s2,2\ns_add_u32 s54,s54,s{sWv}\ns_cmp_eq_u32 s54,400\ns_cbranch_scc0 L_nodbg")
        S(f"v_mov_b32 v2,v{vDBG}\ns_nop 1\nv_sub_u32_dpp v2,v{vDBG},v{vDBG} row_shl:1 row_mask:0xf bank_mask:0xf\ns_nop 1")
        S("global_store_dword v1,v2,s[4:5]")
        S("L_nodbg:")
    print("; stamps", nst[0], file=sys.stderr)
print(f"; waits {em.nwait} nops {em.nnop} wait+scalar clashes {nfree} instrs {len(em.out)}", file=sys.stderr)
main_lines = em.lines()

U = []
A = U.append
A("s_cmp_ge_u32 s2,216\ns_cbranch_scc1 L_uend")
A("s_load_dwordx2 s[4:5],s[0:1],8\ns_load_dwordx2 s[6:7],s[0:1],32")
A("s_mul_hi_u32 s20,s2,0x55555556\ns_mul_i32 s21,s20,3\ns_sub_u32 s21,s2,s21")
A("s_mul_hi_u32 s22,s20,0x55555556\ns_mul_i32 s23,s22,3\ns_sub_u32 s23,s20,s23")
A("s_mul_hi_u32 s24,s22,0x2aaaaaab\ns_mul_i32 s25,s24,6\ns_sub_u32 s25,s22,s25")
A("v_and_b32 v1,15,v0\nv_lshrrev_b32 v2,4,v0")
A("s_lshl_b32 s26,s23,6\ns_lshl_b32 s27,s24,4\ns_add_u32 s26,s26,s27\nv_add_u32 v3,s26,v1\nv_lshlrev_b32 v3,1,v3")
A("v_mul_u32_u24 v4,3072,v2\nv_add_u32 v3,v3,v4")
A("s_mul_i32 s26,s21,221184\ns_mul_i32 s27,s25,12288\ns_add_u32 s26,s26,s27\ns_add_u32 s27,s26,73728\ns_add_u32 s28,s27,73728")
A("s_waitcnt lgkmcnt(0)")
A("s_mov_b32 s8,s4\ns_and_b32 s9,s5,0xffff\ns_mov_b32 s10,663552\ns_mov_b32 s11,0x20000")
A(f"s_mov_b32 s12,s6\ns_and_b32 s13,s7,0xffff\ns_mov_b32 s14,{4 * UWAVE}\ns_mov_b32 s15,0x20000")
for s in range(3):
    for e in range(8):
        A(f"buffer_load_short_d16_hi v{8 + s * 8 + e},v3,s[8:11],s{26 + s} offen offset:{e * 384}")
A(f"s_mul_i32 s30,s24,{UWAVE}\ns_mul_i32 s31,s25,{18 * 3072}\ns_add_u32 s30,s30,s31\ns_mul_i32 s31,s23,3072\ns_add_u32 s30,s30,s31\n"
  "s_lshl_b32 s31,s21,10\ns_add_u32 s30,s30,s31")
A("v_lshlrev_b32 v5,4,v0")
A(f"s_mov_b32 s33,{fbits(-1 / 6):#x}\ns_mov_b32 s34,{fbits(1 / 24):#x}\ns_mov_b32 s35,{fbits(1 / 6):#x}\ns_mov_b32 s36,{fbits(1 / 12):#x}")
A("s_waitcnt vmcnt(0)")
for e in range(8):
    g0, g1, g2 = 8 + e, 16 + e, 24 + e
    A(f"v_add_f32 v6,v{g0},v{g2}\nv_add_f32 v{32 + e},v6,v{g1}\nv_sub_f32 v{40 + e},v6,v{g1}")
    A(f"v_mul_f32 v{32 + e},s33,v{32 + e}\nv_mul_f32 v{40 + e},s33,v{40 + e}")
    A(f"v_mul_f32 v6,s34,v{g0}\nv_fmac_f32 v6,s35,v{g2}\nv_fma_f32 v{48 + e},s36,v{g1},v6\nv_fma_f32 v{56 + e},-s36,v{g1},v6")
for p, src in ((0, 8), (1, 32), (2, 40), (3, 48), (4, 56), (5, 24)):
    for e in range(4):
        A(f"v_cvt_pk_bf16_f32 v{64 + 4 * p + e},v{src + 2 * e},v{src + 2 * e + 1}")
    A(f"s_add_u32 s31,s30,{p * 9216}")
    A(f"buffer_store_dwordx4 v[{64 + 4 * p}:{67 + 4 * p}],v5,s[12:15],s31 offen")
A("L_uend:\ns_endpgm")

KD = """.amdhsa_kernel {n}
  .amdhsa_next_free_vgpr {v}
  .amdhsa_next_free_sgpr {s}
  .amdhsa_accum_offset {a}
  .amdhsa_group_segment_fixed_size 0
  .amdhsa_kernarg_size 40
  .amdhsa_user_sgpr_count 2
  .amdhsa_user_sgpr_kernarg_segment_ptr 1
  .amdhsa_system_sgpr_workgroup_id_x 1
  .amdhsa_float_denorm_mode_32 3
.end_amdhsa_kernel"""
out = []
out.append("; @launch kernel=wtrans_kernel grid=(216,1,1) block=(64,1,1) lds=0")
out.append(f"; @launch kernel=standalone__winograd__vision_kernel grid=(256,1,1) block=(256,1,1) lds={18 * UNIT}")
out.append('.amdgcn_target "amdgcn-amd-amdhsa--gfx950"')
out.append(".macro M d,a,b,c\nv_mfma_f32_16x16x32_bf16 \\d,\\a,\\b,\\c\n.endm")
out.append(".text\n.globl wtrans_kernel\n.p2align 8\n.type wtrans_kernel,@function\nwtrans_kernel:")
out += U
out.append(".globl standalone__winograd__vision_kernel\n.p2align 8\n.type standalone__winograd__vision_kernel,@function")
out.append("standalone__winograd__vision_kernel:")
out += main_lines
out.append("s_endpgm\nL_code_end:")
out.append('.section .rodata,"a"\n.p2align 6')
out.append(KD.format(n="wtrans_kernel", v=96, s=48, a=96))
out.append(".p2align 6")
out.append(KD.format(n="standalone__winograd__vision_kernel", v=512, s=102 if CFG["dbg"] else 84, a=256))
print("\n".join(out))
```

```python
import sys
import struct
from sched import Op, R, schedule, Emitter, BIG

CFG = dict(D=12, E=8, LATG=30, st_gap=25.0, st0=1590, vlead=7, dbg=0, stf=" nt", nost=0, touch=0, ctouch=1, ptouch=0,
           ldsp=0, prom=1, tlag=0, par=0, fuse=1, aw=1)
for a in sys.argv[1:]:
    k, v = a.split("=")
    CFG[k] = type(CFG[k])(v)

XB = 100663296
ROWB = 196608
UNIT = 8704
NP = 2592
NPASS = 2
UWAVE = 324 * 1024
fbits = lambda x: struct.unpack("<I", struct.pack("<f", x))[0]

if CFG["dbg"]:
    CFG["D"] = min(CFG["D"], 11)
D, E = CFG["D"], CFG["E"]
BUF = [192, 204]
UV0 = 216
AV0, AU0 = 192, 192 + 4 * E
NUA = (256 - AU0) // 4
NUV = D - NUA
TMP = UV0 + 4 * NUV
HAL = TMP + 7
vRaw, vHalo, vW, vHW, vRA, vRB, vU, vSt, vXw, vT, vJ = range(HAL + 6, HAL + 17)
assert vJ <= 255, vJ
sX, sXL, sXR, sUs, sO = 8, 12, 16, 20, 24
sRaw, sHalo, sRawB, sCol = 28, 29, 30, 31
sStA, sStY, sSt, sTo = 32, 33, 34, 35
sM5, s8, sMask, sM125, sUW, s025 = 40, 41, 42, 43, 44, 45
sU = 46
sY0, sWv = 49, 50
sRawC, sColC, sUC = 64, 70, 76
STB = 82


def acc(p, kb, y):
    o = (kb * 8 + y) * 4
    return {1: ("a", o), 2: ("a", 96 + o), 3: ("v", o), 4: ("v", 96 + o), 0: ("v", o), 5: ("v", 96 + o)}[p]


def uslot(n):
    s = n % D
    return ("a", AU0 + 4 * s) if s < NUA else ("v", UV0 + 4 * (s - NUA))


def vslot(n):
    return ("a", AV0 + 4 * (n % E))


rr = lambda f, a, n: f"{f}[{a}:{a + n - 1}]" if n > 1 else f"{f}{a}"


def LK(u, tag):
    return [((u, 0), tag), ((u, 1), tag)]


def X45(P):
    return (6, 7) if P % 2 == 0 else (0, 1)


def unit_of(P, c, p):
    x45 = X45(P)
    if p in (0, 5):
        i = 0 if p == 0 else 1
        if c == 0:
            return X45(P + 1)[i]
        if c == 5:
            return 8 + i
        return 10 + 2 * (c - 1) + i
    if c % 2 == 0:
        return 2 + (p - 1)
    if c < 5:
        return (x45[0], x45[1], 8, 9)[p - 1]
    return (x45[0], x45[1], 2, 3)[p - 1]


def nxt(P, c):
    return (P, c + 1) if c < 5 else ((P + 1, 0) if P + 1 < NPASS else None)


groups = []
for P in range(NPASS):
    for c in range(5):
        for p in (1, 2, 3, 4):
            groups.append((P, c, p, (0, 1, 2)))
    for p in (1, 2, 3, 4):
        groups.append((P, 5, p, (0,)))
    for p in (1, 2, 3, 4):
        groups.append((P, 5, p, (1, 2)))
    for kb in range(3):
        for p in (0, 5):
            for c in range(6):
                groups.append((P, c, p, (kb,)))

mf = []
ufr = []
vfr = []
cnt = {}
last_w = {}
first_w = {}
for (P, c, p, kbs) in groups:
    v0 = len(vfr)
    for rho in range(10):
        vfr.append(dict(P=P, c=c, p=p, rho=rho, first=None, last=None))
    for r in range(3):
        for kb in kbs:
            un = len(ufr)
            ufr.append(dict(P=P, c=c, p=p, kb=kb, r=r, first=len(mf), last=len(mf) + 7))
            for y in range(8):
                i = len(mf)
                vn = v0 + y + r
                if vfr[vn]["first"] is None:
                    vfr[vn]["first"] = i
                vfr[vn]["last"] = i
                f, a = acc(p, kb, y)
                uf, ua = uslot(un)
                vf, va = vslot(vn)
                key = (P, p, kb, y)
                n = cnt.get(key, 0)
                cnt[key] = n + 1
                init = n == 0 and p in (1, 2, 3, 4)
                csrc = "0" if init else rr(f, a, 4)
                rd = R(uf, ua, 4) + R(vf, va, 4) + ([] if init else R(f, a, 4))
                rtag = {x: ("U", un) for x in R(uf, ua, 4)}
                rtag.update({x: ("V", vn) for x in R(vf, va, 4)})
                if not init:
                    rtag.update({x: ("M", P, p, kb, y, n) for x in R(f, a, 4)})
                mf.append(Op(f"M {rr(f, a, 4)},{rr(uf, ua, 4)},{rr(vf, va, 4)},{csrc}", "mfma", rd, R(f, a, 4),
                             rtag=rtag, wtag={x: ("M", P, p, kb, y, n + 1) for x in R(f, a, 4)}))
                last_w[key] = i
                first_w.setdefault(key, i)
NM = len(mf)
assert NM == NP * NPASS


def Bgap(P, c):
    if c < 0:
        return Bgap(P - 1, 6) if P > 0 else -1
    if c <= 4:
        return P * NP + 288 * c + 278
    if c == 5:
        return P * NP + 1728 - 6
    return P * NP + NP - 10


def Bmid(P):
    return P * NP + 288 * 4 + 129


fixed = {}
for P in range(NPASS):
    lst = [Bgap(P, c) for c in range(6)] + [Bmid(P)]
    if P + 1 < NPASS:
        lst.append(Bgap(P, 6))
    for g in lst:
        fixed[g] = [Op("s_barrier", "bar")]

S_U = []
pro_U = []
cur_su = {}
for n, u in enumerate(ufr):
    off = (u["p"] * 3 + u["kb"]) * 3072
    rel = ufr[n - D]["last"] if n >= D else -BIG
    dst = pro_U if n < D else S_U
    kb = u["kb"]
    if cur_su.get(kb) != (u["c"], off):
        cur_su[kb] = (u["c"], off)
        dst.append(Op(f"s_add_u32 s{sU + kb},s{sUC + u['c']},{off}", "salu", [("s", sUC + u["c"])], [("s", sU + kb)], release=rel - 6,
                      target=rel - 6, deadline=rel + 4))
    f, a = uslot(n)
    dst.append(Op(f"buffer_load_dwordx4 {rr(f, a, 4)},v{vU},s[{sUs}:{sUs + 3}],s{sU + kb} offen offset:{u['r'] * 1024}{' sc1' if CFG['fuse'] else ''}", "vld",
                  [("v", vU), ("s", sU + kb)], R(f, a, 4), release=rel, target=rel - 100, deadline=rel + 6,
                  wtag={x: ("U", n) for x in R(f, a, 4)}))

S_V = []
pro_V = []
v_ops = []
vbase = 0
offs = [unit_of(v["P"], v["c"], v["p"]) * UNIT + v["rho"] * 256 for v in vfr]
for n, v in enumerate(vfr):
    rel = vfr[n - E]["last"] if n >= E else -BIG
    rel = max(rel, Bgap(v["P"], v["c"] - 1))
    dst = pro_V if n < E else S_V
    dl = v["first"] - 5
    if v["p"] in (0, 5):
        if v["P"] + 1 < NPASS:
            dl = min(dl, Bgap(v["P"], 6) - 1)
    elif v["c"] == 4 and v["p"] <= 2:
        dl = min(dl, Bmid(v["P"]) - 1)
    else:
        dl = min(dl, Bgap(v["P"], v["c"]) - 1)
    assert dl >= rel or n < E, (v, dl, rel)
    tg = max(rel, v["first"] - CFG["vlead"])
    if not (0 <= offs[n] - vbase <= 65535):
        lo = hi = offs[n]
        m = n
        while m < len(offs) and max(hi, offs[m]) - min(lo, offs[m]) <= 65535:
            lo, hi = min(lo, offs[m]), max(hi, offs[m])
            m += 1
        d = (lo - vbase) & 0xFFFFFFFF
        vbase = lo
        for reg in (vRA, vRB):
            dst.append(Op(f"v_add_u32 v{reg},{d:#x},v{reg}", "valu", [("v", reg)], [("v", reg)], release=rel - 3,
                          target=tg - 3, deadline=dl - 2))
    reg = vRA if v["rho"] in (0, 9) else vRB
    f, a = vslot(n)
    u = unit_of(v["P"], v["c"], v["p"])
    dst.append(Op(f"ds_read_b128 {rr(f, a, 4)},v{reg} offset:{offs[n] - vbase}", "dsr", [("v", reg)], R(f, a, 4),
                  release=rel, target=tg, deadline=dl, wtag={x: ("V", n) for x in R(f, a, 4)},
                  lds_r=LK(u, (v["P"], v["c"], v["p"]))))
    v_ops.append((dst[-1], v))


def tv(i):
    return TMP + i


def xform(t, spare):
    L = []
    t0, t1, t2, t3, t4, t5 = t
    a = spare
    L.append((f"v_fmac_f32 v{t0},s{sM125},v{t2}", [t0, t2], [t0]))
    L.append((f"v_fmac_f32 v{t5},4.0,v{t1}", [t5, t1], [t5]))
    L.append((f"v_fma_f32 v{a},-4.0,v{t2},v{t4}", [t2, t4], [a]))
    L.append((f"v_fmac_f32 v{t0},s{s025},v{t4}", [t0, t4], [t0]))
    L.append((f"v_fmac_f32 v{t5},s{sM5},v{t3}", [t5, t3], [t5]))
    L.append((f"v_sub_f32 v{t4},v{t4},v{t2}", [t4, t2], [t4]))
    L.append((f"v_fma_f32 v{t2},-4.0,v{t1},v{t3}", [t1, t3], [t2]))
    L.append((f"v_sub_f32 v{t3},v{t3},v{t1}", [t3, t1], [t3]))
    L.append((f"v_add_f32 v{t1},v{a},v{t2}", [a, t2], [t1]))
    L.append((f"v_sub_f32 v{a},v{a},v{t2}", [a, t2], [a]))
    L.append((f"v_fma_f32 v{t2},2.0,v{t3},v{t4}", [t3, t4], [t2]))
    L.append((f"v_fmac_f32 v{t4},-2.0,v{t3}", [t3, t4], [t4]))
    return L, [t0, t1, a, t2, t4, t5], t3


def V(text, rd, wr, **kw):
    return Op(text, "valu", [("v", x) for x in rd], [("v", x) for x in wr], **kw)


def touches(P, c, j, px, prom):
    ops = [Op(f"s_add_u32 s{sTo},s{sRawC + c},{(32 * P + 2 * j) * ROWB}", "salu", [("s", sRawC + c)], [("s", sTo)])]
    for fl in (" nt", "")[:1 + prom]:
        ops.append(Op(f"buffer_load_dword v{vJ},v{vT},s[{sX}:{sX + 3}],s{sTo} offen offset:{(px - 1) * 384}{fl}",
                      "vld", [("v", vT), ("s", sTo)], [("v", vJ)], name="touch"))
    return ops


def main_loads(P, c, j, buf, first=False):
    ops = []
    dep = []
    if first and CFG["ptouch"]:
        ops += touches(P, c, j, 1, 0) + touches(P, c, j, 2, 0)[1:]
    ops.append(Op(f"s_add_u32 s{sRaw},s{sRawC + c},{(32 * P + 2 * j) * ROWB}", "salu", [("s", sRawC + c)], [("s", sRaw)]))
    for jj in (0, 5, 1, 2, 3, 4):
        srd, imm = (sXL, 0) if jj == 0 else (sXR, 4 * 384) if jj == 5 else (sX, (jj - 1) * 384)
        o = Op(f"buffer_load_dwordx2 v[{buf + 2 * jj}:{buf + 2 * jj + 1}],v{vRaw},s[{srd}:{srd + 3}],s{sRaw} offen offset:{imm}",
               "vld", [("v", vRaw), ("s", sRaw)], R("v", buf + 2 * jj, 2),
               wtag={x: ("raw", P, c, j, jj) for x in R("v", buf + 2 * jj, 2)})
        ops.append(o)
        dep.append((o, jj))
    return ops, dep


def after_touches(P, c, j):
    if not CFG["touch"]:
        return []
    ops = []
    n = nxt(P, c)
    if c % 2 == 1 and n:
        ops += touches(n[0], n[1], j, 1, 1)
    nb = (P, c, j + 1) if j < 3 else (n + (0,) if n else None)
    if nb and nb[1] % 2 == 0 and nb[:2] != (0, 0):
        ops += touches(nb[0], nb[1], nb[2], 2, CFG["prom"])
    return ops


def main_compute(P, c, j, buf):
    ops = []
    for i in range(2):
        lo = [tv(k) for k in range(6)]
        hi = [buf + 2 * k + i for k in range(6)]
        for jj in (2, 0, 1, 5, 4, 3):
            ops.append(V(f"v_lshlrev_b32 v{lo[jj]},16,v{hi[jj]}", [hi[jj]], [lo[jj]], rtag={("v", hi[jj]): ("raw", P, c, j, jj)}))
        L, vlo, freed = xform(lo, tv(6))
        ops += [V(t, a, b) for t, a, b in L]
        for jj in (2, 0, 1, 5, 4, 3):
            ops.append(V(f"v_and_b32 v{hi[jj]},s{sMask},v{hi[jj]}", [hi[jj]], [hi[jj]], rtag={("v", hi[jj]): ("raw", P, c, j, jj)}))
        L, vhi, _ = xform(hi, freed)
        ops += [V(t, a, b) for t, a, b in L]
        for p in (0, 5, 1, 3, 2, 4):
            ops.append(V(f"v_cvt_pk_bf16_f32 v{hi[p]},v{vlo[p]},v{vhi[p]}", [vlo[p], vhi[p]], [hi[p]],
                         wtag={("v", hi[p]): ("Vp", P, c, j, p)}))
    return ops


def main_writes(P, c, j, buf, rel, rel_late):
    ops = []
    wr = {}
    for pa, pb in ((0, 5), (1, 2), (3, 4)):
        ua, ub = unit_of(P, c, pa), unit_of(P, c, pb)
        base, sh = vW, 0
        r = rel_late if pa == 3 else rel
        if max(ua, ub) * 17 + j > 255:
            sh = min(ua, ub)
            base = tv(0)
            ops.append(V(f"v_add_u32 v{base},{sh * UNIT},v{vW}", [vW], [base]))
        o = Op(f"ds_write2st64_b64 v{base},v[{buf + 2 * pa}:{buf + 2 * pa + 1}],v[{buf + 2 * pb}:{buf + 2 * pb + 1}] "
               f"offset0:{(ua - sh) * 17 + j} offset1:{(ub - sh) * 17 + j}", "dsw",
               [("v", base)] + R("v", buf + 2 * pa, 2) + R("v", buf + 2 * pb, 2), [], cost=5, release=r,
               rtag={**{x: ("Vp", P, c, j, pa) for x in R("v", buf + 2 * pa, 2)},
                     **{x: ("Vp", P, c, j, pb) for x in R("v", buf + 2 * pb, 2)}},
               lds_w=LK(ua, (P, c, pa)) + LK(ub, (P, c, pb)))
        ops.append(o)
        wr[pa] = wr[pb] = o
    return ops, wr


def halo_loads(P, c, regs):
    ops = []
    sHalo = sColC + c
    for jj in range(6):
        srd, imm = (sXL, 0) if jj == 0 else (sXR, 4 * 384) if jj == 5 else (sX, (jj - 1) * 384)
        ops.append(Op(f"buffer_load_short_d16_hi v{regs + jj},v{vHalo},s[{srd}:{srd + 3}],s{sHalo} offen offset:{imm}",
                      "vld", [("v", vHalo), ("s", sHalo)], [("v", regs + jj)], wtag={("v", regs + jj): ("hraw", P, c, jj)}))
    return ops


def halo_compute(P, c, regs, rel, rel_late):
    ops = []
    L, vr, _ = xform([regs + k for k in range(6)], tv(0))
    seen = set()
    for t, a, b in L:
        rt = {("v", x): ("hraw", P, c, x - regs) for x in a if regs <= x < regs + 6 and x not in seen}
        seen.update(b)
        ops.append(V(t, a, b, rtag=rt))
    pk = {}
    for k, (pa, pb) in enumerate(((0, 5), (1, 2), (3, 4))):
        ops.append(V(f"v_cvt_pk_bf16_f32 v{tv(1 + k)},v{vr[pa]},v{vr[pb]}", [vr[pa], vr[pb]], [tv(1 + k)]))
        pk[pa] = (tv(1 + k), "")
        pk[pb] = (tv(1 + k), "_d16_hi")
    free_raw = ops[-1]
    sh_cur = None
    for p in (0, 5, 1, 2, 3, 4):
        u = unit_of(P, c, p)
        base, off = vHW, u * UNIT
        if off > 65535:
            if sh_cur is None or not (0 <= off - sh_cur <= 65535):
                sh_cur = off
                ops.append(V(f"v_add_u32 v{tv(0)},{off},v{vHW}", [vHW], [tv(0)]))
            base, off = tv(0), off - sh_cur
        ops.append(Op(f"ds_write_b16{pk[p][1]} v{base},v{pk[p][0]} offset:{off}", "dsw", [("v", base), ("v", pk[p][0])], [], cost=2,
                      release=rel_late if p in (3, 4) else rel, lds_w=LK(u, (P, c, p))))
    return ops, free_raw


def halo_addr(P):
    t0, t1 = tv(0), tv(1)
    return [V(f"v_bfe_u32 v{t0},v{vU},9,1", [vU], [t0]),
            V(f"v_mul_u32_u24 v{t0},33,v{t0}", [t0], [t0]),
            Op(f"v_add_u32 v{t0},s{sY0},v{t0}", "valu", [("v", t0), ("s", sY0)], [("v", t0)]),
            V(f"v_add_u32 v{t0},{32 * P - 1},v{t0}", [t0], [t0]),
            V(f"v_mul_u32_u24 v{t1},{ROWB},v{t0}", [t0], [t1]),
            V(f"v_cmp_gt_u32 vcc,512,v{t0}", [t0], []),
            V(f"v_bfe_u32 v{t0},v{vU},3,6", [vU], [t0]),
            V(f"v_add_u32 v{t1},v{t1},v{t0}", [t0, t1], [t1]),
            V(f"v_bfrev_b32 v{t0},1", [], [t0]),
            V(f"v_cndmask_b32 v{vHalo},v{t0},v{t1},vcc", [t0, t1], [vHalo])]


def stage_write(P, key, slot, ra, rb):
    u, h = slot
    off = u * 17 + h * 8
    assert off + 4 <= 255
    return Op(f"ds_write2st64_b64 v{vXw},v[{ra}:{ra + 1}],v[{rb}:{rb + 1}] offset0:{off} offset1:{off + 4}", "dsw",
              [("v", vXw)] + R("v", ra, 2) + R("v", rb, 2), [], cost=5,
              rtag={**{x: ("Y", P, key, 0) for x in R("v", ra, 2)}, **{x: ("Y", P, key, 1) for x in R("v", rb, 2)}},
              lds_w=[(slot, ("X", P, key))])


XT = 0
XTB = 8 * UNIT


def stage_read(P, key, slot):
    kb, kind, y = key
    if kind == "s":
        f, a = acc(1, kb, y)
        nw = (1, kb, y)
        so, imm = f"s{sStA},{(32 * P + y) * ROWB}", 384 + 128 * kb
    else:
        p = 0 if kind == 0 else 5
        if kb == 0:
            yy = y + (0 if kind == 0 else 4)
            f, a = acc(2, kb, yy)
            nw = (2, kb, yy)
        else:
            f, a = acc(p, kb, 2 * y)
            nw = (3 if p == 0 else 4, kb, 2 * y)
        so, imm = f"s{sStY},{(32 * P + 2 * y) * ROWB}", kind * 384 + 128 * kb
    off = slot[0] * UNIT + slot[1] * 4096
    base = vU
    if off > 65535:
        base, off = XT, off - XTB
    rd = Op(f"ds_read_b128 {rr(f, a, 4)},v{base} offset:{off}", "dsr", [("v", base)], R(f, a, 4),
            wtag={x: ("L", P, key) for x in R(f, a, 4)}, lds_r=[(slot, ("X", P, key))],
            rtag={("v", XT): ("XT", P)} if base == XT else None)
    dl = first_w[(P + 1,) + nw] - 2 if P + 1 < NPASS else BIG
    s = Op(f"s_add_u32 s{sSt},{so}", "salu", [], [("s", sSt)])
    if CFG["nost"]:
        st = Op("v_nop", "valu", R(f, a, 4), [], deadline=dl, after=[(rd, 5)])
    else:
        st = Op(f"buffer_store_dwordx4 {rr(f, a, 4)},v{vSt},s[{sO}:{sO + 3}],s{sSt} offen offset:{imm}{CFG['stf']}", "vst",
                R(f, a, 4) + [("v", vSt), ("s", sSt)], [], cost=6, deadline=dl, rtag={x: ("L", P, key) for x in R(f, a, 4)},
                after=[(rd, 5)])
    return rd, [s, st]


def sw_block(P, kb, y, slot):
    ops = []
    rel = last_w[(P, 4, kb, y)] + 3
    a1, a2, m3, m4 = acc(1, kb, y)[1], acc(2, kb, y)[1], acc(3, kb, y)[1], acc(4, kb, y)[1]
    pk = [tv(0), tv(2)]
    key = (kb, "s", y)
    for h in range(2):
        us, t2s = [pk[1] + h, tv(4)], [pk[0] + h, tv(5)]
        t1 = tv(6)
        for e in range(2):
            i = 2 * h + e
            u, t2 = us[e], t2s[e]
            M3, M4 = m3 + i, m4 + i
            dl0 = first_w[(P, 0, kb, y)] - 2
            dl3 = first_w[(P, 5, kb, y)] - 2
            ops.append(Op(f"v_accvgpr_read_b32 v{t1},a{a1 + i}", "valu", [("a", a1 + i)], [("v", t1)], release=rel,
                          rtag={("a", a1 + i): ("M", P, 1, kb, y, 18)}))
            ops.append(Op(f"v_accvgpr_read_b32 v{t2},a{a2 + i}", "valu", [("a", a2 + i)], [("v", t2)],
                          rtag={("a", a2 + i): ("M", P, 2, kb, y, 18)}))
            ops.append(V(f"v_add_f32 v{u},v{t1},v{t2}", [t1, t2], [u]))
            ops.append(V(f"v_sub_f32 v{t1},v{t1},v{t2}", [t1, t2], [t1]))
            ops.append(V(f"v_add_f32 v{t2},v{M3},v{M4}", [M3, M4], [t2],
                         rtag={("v", M3): ("M", P, 3, kb, y, 18), ("v", M4): ("M", P, 4, kb, y, 18)}))
            ops.append(V(f"v_sub_f32 v{M4},v{M3},v{M4}", [M3, M4], [M4]))
            ops.append(V(f"v_add_f32 v{M3},v{u},v{t2}", [u, t2], [M3], wtag={("v", M3): ("M", P, 0, kb, y, 0)}, deadline=dl0))
            ops.append(V(f"v_fmac_f32 v{u},4.0,v{t2}", [u, t2], [u]))
            ops.append(V(f"v_fma_f32 v{t2},2.0,v{M4},v{t1}", [M4, t1], [t2]))
            ops.append(Op(f"v_fma_f32 v{M4},s{s8},v{M4},v{t1}", "valu", [("v", M4), ("v", t1)], [("v", M4)],
                          wtag={("v", M4): ("M", P, 5, kb, y, 0)}, deadline=dl3))
        for m, src in ((1, t2s), (2, us)):
            d = pk[m - 1] + h
            ops.append(V(f"v_cvt_pk_bf16_f32 v{d},v{src[0]},v{src[1]}", src, [d], wtag={("v", d): ("Y", P, key, m - 1)}))
    ops.append(stage_write(P, key, slot, pk[0], pk[1]))
    return ops


def fin_block(P, kb, m, yp, slot):
    ops = []
    p = 0 if m == 0 else 5
    key = (kb, m, yp)
    for k in range(2):
        y = 2 * yp + k
        a = acc(p, kb, y)[1]
        for h in range(2):
            ops.append(V(f"v_cvt_pk_bf16_f32 v{a + h},v{a + 2 * h},v{a + 2 * h + 1}", [a + 2 * h, a + 2 * h + 1], [a + h],
                         release=last_w[(P, p, kb, y)] + 3,
                         rtag={("v", a + 2 * h + 1): ("M", P, p, kb, y, 18)}, wtag={("v", a + h): ("Y", P, key, k)}))
    ops.append(stage_write(P, key, slot, acc(p, kb, 2 * yp)[1], acc(p, kb, 2 * yp + 1)[1]))
    return ops


S_main, S_ld, S_x, S_st = [], [], [], []
pending_bars = []


def flush_bars():
    for pos, lag, b in sorted(pending_bars, key=lambda x: -x[0]):
        while lag > 0 and pos < len(S_main) and S_main[pos].kind == "valu":
            pos += 1
            lag -= 1
        S_main.insert(pos, b)
    pending_bars.clear()


PB = [0, 12, 24, 36]
PH = 48
pro_loads = []
for j in range(4):
    pro_loads += main_loads(0, 0, j, PB[j], first=True)[0]
pro_loads += halo_loads(0, 0, PH)
NPRO0 = len(pro_loads)

prev_wr = {0: None, 1: None}
prev_hfree = None
ld_ops = {}
in_ld = set()


def add_loads(P, c, j):
    b = j % 2
    o, dep = main_loads(P, c, j, BUF[b])
    ld_ops[(P, c, j)] = o[-1]
    pw = prev_wr[b]
    tch = after_touches(P, c, j)
    if pw is None:
        pro_loads.extend(o + tch)
        return
    for op in tch:
        op.target = -BIG
        op.after = [(o[-1], CFG["tlag"])]
    o[0].after = [(pw[0], -1)]
    for op, slot in dep:
        op.after = [(pw[slot], 0)]
    prev = None
    for op in o:
        op.target = -BIG
        if op.kind == "vld":
            if prev is not None and CFG["ldsp"] and not (prev.name == "touch" and "nt" in prev.text):
                op.after.append((prev, CFG["ldsp"]))
            prev = op
    S_ld.extend(o + tch)
    in_ld.add(id(o[-1]))


def add_halo_loads(P, c, extra_after=()):
    o = halo_loads(P, c, HAL)
    ld_ops[(P, c, "h")] = o[-1]
    if prev_hfree is None:
        pro_loads.extend(o)
        return
    for op in o:
        op.after = [(prev_hfree, 1)] + list(extra_after)
        op.target = -BIG
    S_ld.extend(o)
    in_ld.add(id(o[-1]))


def add_round(P, c, j, rel, rel_late, dl, compute=True, write=True):
    b = j % 2
    if compute:
        ops = main_compute(P, c, j, BUF[b])
        if id(ld_ops[(P, c, j)]) in in_ld:
            ops[0].after = [(ld_ops[(P, c, j)], CFG["LATG"])]
        S_main.extend(ops)
    if write:
        ops, wr = main_writes(P, c, j, BUF[b], rel, rel_late)
        ops[-1].deadline = dl
        S_main.extend(ops)
        prev_wr[b] = wr


def add_halo(P, c, rel, rel_late, dl):
    global prev_hfree
    ops, fr = halo_compute(P, c, HAL, rel, rel_late)
    if id(ld_ops[(P, c, "h")]) in in_ld:
        ops[0].after = [(ld_ops[(P, c, "h")], CFG["LATG"])]
    ops[-1].deadline = dl
    S_main.extend(ops)
    prev_hfree = fr


reads_prev = []
unread = []
stores = []


def unit(P, key, slot, rel=-BIG):
    ops = sw_block(P, key[0], key[2], slot) if key[1] == "s" else fin_block(P, key[0], key[1], key[2], slot)
    ops[-1].release = max(ops[-1].release, rel)
    S_main.extend(ops)
    unread.append((key, slot, ops[-1]))


def xbar(P, release=-BIG, extra_needs=(), lag=6):
    global reads_prev, unread
    b = Op("s_barrier", "bar", needs=[w for _, _, w in unread] + reads_prev + list(extra_needs), release=release,
           after=[(o, 4) for o in reads_prev + list(extra_needs)] + [(w, 3) for _, _, w in unread])
    pending_bars.append((len(S_main), lag, b))
    reads_prev = []
    for key, slot, _ in unread:
        rd, st = stage_read(P, key, slot)
        rd.after = [(b, 0)]
        rd.target = -BIG
        S_x.append(rd)
        reads_prev.append(rd)
        stores.append(st)
    unread = []
    if lag == 0:
        flush_bars()
    return b


add_loads(0, 1, 0)
add_loads(0, 1, 1)
add_halo_loads(0, 1)
for P in range(NPASS):
    for c in range(1, 6):
        rel = Bgap(P, c - 2)
        rel_late = Bmid(P) if c == 5 else rel
        dl = Bgap(P, c - 1) - 3
        n = nxt(P, c)
        for j in [0, 1, "h", 2, 3]:
            if j == "h":
                add_halo(P, c, rel, rel_late, dl)
                if n:
                    if n[1] == 0:
                        ha = halo_addr(n[0])
                        S_main.extend(ha)
                        add_halo_loads(n[0], n[1], [(ha[-1], 1)])
                    else:
                        add_halo_loads(*n)
            else:
                add_round(P, c, j, rel, rel_late, dl)
                if j < 2:
                    add_loads(P, c, j + 2)
                elif n:
                    add_loads(n[0], n[1], j - 2)
    more = P + 1 < NPASS
    dl = Bgap(P, 6) - 3
    ringA = [(4, 0), (4, 1), (5, 0), (5, 1)]
    ringB = [(u, h) for u in (2, 3) + X45(P) + (4, 5) for h in (0, 1)]
    reads_prev, stores = [], []
    if more:
        add_round(P + 1, 0, 0, None, None, dl, write=False)
    for k in range(4):
        for y in (2 * k, 2 * k + 1):
            unit(P, (0, "s", y), ringA[y % 4])
        xbar(P)
    nb = 0
    for batch in ([(1, "s", y) for y in range(4)], [(0, 0, y) for y in range(4)] + [(1, "s", 4), (1, "s", 5)],
                  [(1, "s", 6), (1, "s", 7)] + [(0, 3, y) for y in range(4)],
                  [(2, "s", y) for y in range(4)], [(1, 0, y) for y in range(4)] + [(2, "s", 4), (2, "s", 5)],
                  [(2, "s", 6), (2, "s", 7)] + [(1, 3, y) for y in range(4)]):
        for k, key in enumerate(batch):
            unit(P, key, ringB[6 * (nb % 2) + k], Bgap(P, 5))
        nb += 1
        xbar(P)
        if nb == 3 and more:
            S_x.append(V(f"v_add_u32 v{XT},{XTB},v{vU}", [vU], [XT], wtag={("v", XT): ("XT", P)}))
    if more:
        p0_reads = [op for op, v in v_ops if v["P"] == P and v["p"] == 0 and v["first"] >= P * NP + NP - 288]
        add_round(P + 1, 0, 1, None, None, dl, write=False)
        xbar(P, lag=0)
        for j in (0, 1):
            add_round(P + 1, 0, j, -BIG, -BIG, dl, compute=False)
            add_loads(P + 1, 0, j + 2)
        add_halo(P + 1, 0, -BIG, -BIG, dl)
        add_halo_loads(P + 1, 1)
        add_round(P + 1, 0, 2, -BIG, -BIG, dl)
        add_loads(P + 1, 1, 0)
        xbar(P, extra_needs=p0_reads[-1:], lag=0)
        for y in range(4):
            unit(P, (2, 0, y), [(8, 0), (8, 1), (10, 0), (10, 1)][y])
        xbar(P)
        for op in reads_prev:
            op.deadline = dl
        add_round(P + 1, 0, 3, -BIG, -BIG, dl)
        add_loads(P + 1, 1, 1)
        for y in range(4):
            unit(P, (2, 3, y), [(12, 0), (12, 1), (14, 0), (14, 1)][y])
        xbar(P)
        for op in reads_prev:
            op.deadline = Bgap(P + 1, 0) - 3
    else:
        flush_bars()
        for y in range(4):
            unit(P, (2, 0, y), ringB[y])
        xbar(P, lag=0)
        for y in range(4):
            unit(P, (2, 3, y), ringB[6 + y])
        xbar(P, lag=0)
    t = P * NP + float(CFG["st0"])
    gap = CFG["st_gap"] if more else (NP - 30 - CFG["st0"]) / 44.0
    for s, st in stores:
        s.release = st.release = int(t) if t < NM - 8 else -BIG
        s.target = st.target = int(t)
        s.after = list(st.after)
        t += gap
        S_st.extend([s, st])
flush_bars()


def propagate(st, rate):
    nd = BIG
    for op in reversed(st):
        if nd < BIG:
            nd -= (op.cost if op.cost else 0.0) / rate + (0.34 if op.mem or op.kind == "bar" else 0)
        op.deadline = min(op.deadline, nd)
        nd = min(nd, op.deadline)
    for op in st:
        if op.deadline < BIG:
            op.deadline = int(op.deadline // 1)


propagate(S_st, 8.0)
for st in (S_st, S_x):
    for s in st:
        for a, d in s.after:
            a.deadline = min(a.deadline, s.deadline - d)
    propagate(S_x, 4.0)
propagate(S_main, 4.0)
for op in S_main:
    if op.target is None:
        op.target = op.deadline + 1000

streams = [S_U, S_V, S_ld, S_x, S_st, S_main]
bud = [2.0] * (NM // 288)
best = None
for it in range(6):
    for st in streams:
        for op in st:
            op.gap = None
    for op in pro_loads + pro_U + pro_V:
        op.gap = -BIG
    gaps, late = schedule(NM, streams, fixed, lambda g: bud[g // 288])
    tot = [0] * (NM // 288)
    und = [0] * (NM // 288)
    for g, cur in enumerate(gaps[:-1]):
        tot[g // 288] += max(2, cur["used"])
        und[g // 288] += max(0, 2 - cur["used"])
    est = sum(8 + 4 * max(2, c["used"]) for c in gaps[:-1])
    print(f"; iter {it}: est {est} cycles, late {len(late)}, tail ops {len(gaps[-1]['valu'])}, phases {[round(t / 288, 2) for t in tot]} "
          f"underfill {und}", file=sys.stderr)
    for w in range(len(bud)):
        bud[w] = max(2.0, 0.5 * bud[w] + 0.5 * (tot[w] - und[w]) / 288)
for op, g in late[:20]:
    print("; late", op.text, op.deadline, g, file=sys.stderr)

em = Emitter()
S = lambda t, rd=(), wr=(): em.raw(t, "salu", [("s", x) for x in rd], [("s", x) for x in wr])
VV = lambda t, rd=(), wr=(), srd=(), swr=(): em.raw(t, "valu", [("v", x) for x in rd] + [("s", x) for x in srd],
                                                    [("v", x) for x in wr] + [("s", x) for x in swr])
nst = [0]
vDBG = vJ + 1
assert vDBG <= 255 or not CFG['dbg']


def stamp():
    if not CFG["dbg"]:
        return
    if nst[0] > 0:
        S(f"v_writelane_b32 v{vDBG},s98,{nst[0] - 1}")
    S("s_memtime s[98:99]")
    nst[0] += 1


def u_item(tag, loop):
    L = [f"L_item{tag}:"]
    A = L.append
    A("s_and_b32 s85,s84,3\ns_lshr_b32 s86,s84,2")
    A("s_mul_hi_u32 s87,s86,0x55555556\ns_mul_i32 s88,s87,3\ns_sub_u32 s86,s86,s88")
    A("s_mul_hi_u32 s88,s87,0x2aaaaaab\ns_mul_i32 s89,s88,6\ns_sub_u32 s87,s87,s89")
    A("s_mul_i32 s89,s86,221184\ns_mul_i32 s90,s87,12288\ns_add_u32 s89,s89,s90\ns_mul_i32 s90,s85,3072\ns_add_u32 s89,s89,s90")
    A("s_lshl_b32 s90,s88,7\ns_add_u32 s89,s89,s90\ns_add_u32 s90,s89,73728\ns_add_u32 s91,s90,73728")
    A(f"v_lshlrev_b32 v149,1,v{ln}")
    for s in range(3):
        for e in range(8):
            A(f"buffer_load_short_d16_hi v{68 + s * 8 + e},v149,s[36:39],s{89 + s} offen offset:{e * 384}")
    A(f"v_lshrrev_b32 v150,4,v{ln}\nv_mul_u32_u24 v150,{UWAVE},v150\nv_and_b32 v148,15,v{ln}\nv_lshl_add_u32 v150,v148,4,v150")
    A(f"s_mul_i32 s87,s87,{18 * 3072}\ns_mul_i32 s88,s88,3072\ns_add_u32 s87,s87,s88\ns_lshl_b32 s86,s86,10\ns_add_u32 s87,s87,s86")
    A("s_lshl_b32 s85,s85,8\ns_add_u32 s87,s87,s85")
    A(f"s_mov_b32 s85,{fbits(-1 / 6):#x}\ns_mov_b32 s86,{fbits(1 / 24):#x}\ns_mov_b32 s88,{fbits(1 / 6):#x}\ns_mov_b32 s92,{fbits(1 / 12):#x}")
    A("s_waitcnt vmcnt(0)")
    for e in range(8):
        g0, g1, g2 = 68 + e, 76 + e, 84 + e
        A(f"v_add_f32 v148,v{g0},v{g2}\nv_add_f32 v{92 + e},v148,v{g1}\nv_sub_f32 v{100 + e},v148,v{g1}")
        A(f"v_mul_f32 v{92 + e},s85,v{92 + e}\nv_mul_f32 v{100 + e},s85,v{100 + e}")
        A(f"v_mul_f32 v148,s86,v{g0}\nv_fmac_f32 v148,s88,v{g2}\nv_fma_f32 v{108 + e},s92,v{g1},v148\nv_fma_f32 v{116 + e},-s92,v{g1},v148")
    for p, src in ((0, 68), (5, 84), (1, 92), (2, 100), (3, 108), (4, 116)):
        for e in range(4):
            A(f"v_cvt_pk_bf16_f32 v{124 + 4 * p + e},v{src + 2 * e},v{src + 2 * e + 1}")
        A(f"s_add_u32 s89,s87,{p * 9216}")
        A(f"buffer_store_dwordx4 v[{124 + 4 * p}:{127 + 4 * p}],v150,s[{sUs}:{sUs + 3}],s89 offen sc1")
    if loop:
        A(f"s_waitcnt vmcnt(0)\ns_add_u32 s84,s84,1\ns_cmp_lt_u32 s84,216\ns_cbranch_scc1 L_item{tag}")
    return "\n".join(L)


t0, t1, t2, t3, ln = 60, 61, 62, 63, 64
S("s_cmp_ge_u32 s2,256")
S("s_cbranch_scc0 L_go\ns_endpgm")
if CFG["fuse"]:
    S("L_fallback:\ns_mov_b32 s84,0\n" + u_item("F", True) + "\ns_branch L_uready")
S("L_go:")
if CFG["dbg"]:
    S("s_memrealtime s[96:97]")
stamp()
S("s_load_dwordx4 s[4:7],s[0:1],0")
S(f"s_load_dwordx4 s[{sO}:{sO + 3}],s[0:1],16")
S("s_load_dwordx2 s[52:53],s[0:1],32")
VV(f"v_lshrrev_b32 v{t0},6,v0", [0], [t0])
VV(f"v_and_b32 v{ln},63,v0", [0], [ln])
VV(f"v_readfirstlane_b32 s{sWv},v{t0}", [t0], [], [], [sWv])
VV(f"v_lshrrev_b32 v{t0},4,v{ln}", [ln], [t0])
VV(f"v_bfe_u32 v{t1},v{ln},3,1", [ln], [t1])
VV(f"v_lshl_add_u32 v{t1},v{t0},3,v{t1}", [t0, t1], [t1])
VV(f"v_and_b32 v{t2},7,v{ln}", [ln], [t2])
VV(f"v_mul_u32_u24 v{vRaw},{ROWB},v{t1}", [t1], [vRaw])
VV(f"v_lshl_add_u32 v{vRaw},v{t2},3,v{vRaw}", [t2, vRaw], [vRaw])
VV(f"v_lshlrev_b32 v{vU},4,v0", [0], [vU])
VV(f"v_bfe_u32 v{t3},v{ln},2,1", [ln], [t3])
VV(f"v_mul_u32_u24 v{t3},768,v{t3}", [t3], [t3])
VV(f"v_mul_u32_u24 v{vT},{ROWB},v{t1}", [t1], [vT])
VV(f"v_add_u32 v{vT},v{vT},v{t3}", [t3, vT], [vT])
S("s_and_b32 s54,s2,7", [2], [54])
S("s_lshr_b32 s55,s2,3", [2], [55])
S(f"s_lshl_b32 s{sY0},s54,6", [54], [sY0])
S("s_lshl_b32 s55,s55,4", [55], [55])
S(f"s_lshl_b32 s56,s{sWv},2", [sWv], [56])
S("s_add_u32 s56,s56,s55", [55, 56], [56])
S(f"s_mul_i32 s{sCol},s56,384", [56], [sCol])
S(f"s_mul_i32 s57,s{sY0},{ROWB}", [sY0], [57])
S(f"s_add_u32 s{sRawB},s57,s{sCol}", [57, sCol], [sRawB])
S(f"s_mul_i32 s{sUW},s{sWv},{UWAVE - 1024}", [sWv], [sUW])
if CFG["par"]:
    S(f"s_bfe_u32 s58,s2,{0x10000 + (0 if CFG['par'] == 1 else 3)}")
else:
    S("s_mov_b32 s58,0")
for c in range(6):
    S(f"s_add_u32 s59,s58,{c}")
    if c == 5:
        S("s_cmp_eq_u32 s59,6\ns_cselect_b32 s59,0,s59")
    S(f"s_mul_i32 s60,s59,{18 * 3072}\ns_lshl_b32 s59,s59,6")
    S(f"s_add_u32 s{sRawC + c},s{sRawB},s59\ns_add_u32 s{sColC + c},s{sCol},s59\ns_add_u32 s{sUC + c},s{sUW},s60")
S("s_waitcnt lgkmcnt(0)")
S(f"s_mov_b32 s{sUs},s52"); S(f"s_and_b32 s{sUs + 1},s53,0xffff"); S(f"s_mov_b32 s{sUs + 2},{4 * UWAVE}"); S(f"s_mov_b32 s{sUs + 3},0x20000")
if CFG["fuse"]:
    S("s_mov_b32 s36,s6\ns_and_b32 s37,s7,0xffff\ns_mov_b32 s38,663552\ns_mov_b32 s39,0x20000")
    S(f"s_mov_b32 s60,s{sO + 2}\ns_and_b32 s61,s{sO + 3},0xffff\ns_mov_b32 s62,0\ns_mov_b32 s63,0x20000")
    S(f"s_mov_b32 s52,s{sO + 2}\ns_mov_b32 s53,s{sO + 3}")
    S(f"s_cmp_lt_u32 s2,216\ns_cselect_b32 s84,s{sWv},0\ns_cmp_eq_u32 s84,3\ns_cbranch_scc0 L_noitem")
    S("s_mov_b32 s84,s2\ns_mov_b32 s62,256\n" + u_item("P", False) + "\nL_noitem:")
S(f"s_mov_b32 s{sX},s4"); S(f"s_and_b32 s{sX + 1},s5,0xffff"); S(f"s_mov_b32 s{sX + 2},{XB}"); S(f"s_mov_b32 s{sX + 3},0x20000")
S(f"s_sub_u32 s{sXL},s4,384"); S(f"s_subb_u32 s{sXL + 1},s{sX + 1},0")
S("s_cmp_eq_u32 s56,0"); S(f"s_cselect_b32 s{sXL + 2},0,{XB + 384}"); S(f"s_mov_b32 s{sXL + 3},0x20000")
S(f"s_mov_b32 s{sXR},s4"); S(f"s_mov_b32 s{sXR + 1},s{sX + 1}")
S("s_cmp_eq_u32 s56,508"); S(f"s_cselect_b32 s{sXR + 2},0,{XB}"); S(f"s_mov_b32 s{sXR + 3},0x20000")
for op in halo_addr(0):
    em.put(op)
nb0 = [i for i, op in enumerate(pro_loads) if op.wtag.get(("v", PB[0] + 8)) or op.wtag.get(("v", PB[1] + 8))][CFG["aw"] - 1] + 1
for i, op in enumerate(pro_loads[:NPRO0]):
    em.put(op)
    if i + 1 == nb0 and CFG["fuse"]:
        S(f"s_waitcnt vmcnt({len(em.vm)})")
        S("s_and_b32 s84,s2,3\ns_lshl_b32 s84,s84,6\ns_mov_b64 exec,1")
        VV("v_mov_b32 v66,1", [], [66])
        em.put(Op("buffer_atomic_add v66,off,s[60:63],s84 sc1", "vst", [("v", 66)], [], cost=0))
        S("s_mov_b64 exec,-1")
if CFG["ctouch"]:
    S("s_getpc_b64 s[58:59]")
    S(f"s_lshr_b32 s84,s2,3\ns_lshl_b32 s84,s84,2\ns_add_u32 s84,s84,s{sWv}\ns_lshl_b32 s84,s84,10")
    VV(f"v_and_b32 v65,7,v{ln}", [ln], [65])
    VV(f"v_lshl_add_u32 v65,v65,7,s84", [65], [65])
    VV(f"v_min_u32 v65,L_code_end-L_go-4096,v65", [65], [65])
    em.put(Op("global_load_dword v67,v65,s[58:59]", "vld", [("v", 65)], [("v", 67)]))
if not CFG["fuse"]:
    for op in pro_U:
        em.put(op)
S(f"s_and_b32 s{sO + 1},s{sO + 1},0xffff"); S(f"s_mov_b32 s{sO + 2},{XB}"); S(f"s_mov_b32 s{sO + 3},0x20000")
S(f"s_mov_b32 s{sM5},{fbits(-5.0):#x}"); S(f"s_mov_b32 s{s8},{fbits(8.0):#x}"); S(f"s_mov_b32 s{sMask},0xffff0000")
S(f"s_mov_b32 s{sM125},{fbits(-1.25):#x}"); S(f"s_mov_b32 s{s025},{fbits(0.25):#x}")
S("s_mul_i32 s58,s55,384", [55], [58])
S("s_add_u32 s58,s57,s58", [57, 58], [58])
S(f"s_lshr_b32 s59,s{sWv},1", [sWv], [59])
S(f"s_mul_i32 s{sStA},s59,384", [59], [sStA])
S(f"s_mul_i32 s{sStY},s59,{ROWB}", [59], [sStY])
S(f"s_add_u32 s{sStA},s{sStA},s58", [58, sStA], [sStA])
S(f"s_add_u32 s{sStY},s{sStY},s58", [58, sStY], [sStY])
S(f"s_lshl_b32 s59,s{sWv},6", [sWv], [59])
VV(f"v_lshlrev_b32 v{vW},8,v{t1}", [t1], [vW])
VV(f"v_and_b32 v{t3},1,v{t0}", [t0], [t3])
VV(f"v_xor_b32 v{t3},1,v{t3}", [t3], [t3])
VV(f"v_lshlrev_b32 v{t3},2,v{t3}", [t3], [t3])
VV(f"v_xor_b32 v{t3},v{t3},v{t2}", [t3, t2], [t3])
VV(f"v_lshl_add_u32 v{vW},v{t3},3,v{vW}", [t3, vW], [vW])
VV(f"v_add_u32 v{vW},s59,v{vW}", [vW], [vW], [59])
VV(f"v_add_u32 v{vW},256,v{vW}", [vW], [vW])
VV(f"v_lshrrev_b32 v{t0},5,v{ln}", [ln], [t0])
VV(f"v_mul_u32_u24 v{vHW},{33 * 256},v{t0}", [t0], [vHW])
VV(f"v_lshlrev_b32 v{t0},5,v{t0}", [t0], [t0])
VV(f"v_bfe_u32 v{t1},v{vU},3,6", [vU], [t1])
VV(f"v_xor_b32 v{t1},v{t1},v{t0}", [t0, t1], [t1])
VV(f"v_add3_u32 v{vHW},v{vHW},v{t1},s59", [vHW, t1], [vHW], [59])
VV(f"v_bfe_u32 v{t0},v{ln},2,2", [ln], [t0])
VV(f"v_and_b32 v{t1},3,v{ln}", [ln], [t1])
VV(f"v_lshrrev_b32 v{t2},4,v{ln}", [ln], [t2])
VV(f"v_lshlrev_b32 v{vRA},11,v{t0}", [t0], [vRA])
VV(f"v_lshl_add_u32 v{vRA},v{t1},6,v{vRA}", [t1, vRA], [vRA])
VV(f"v_and_b32 v{t3},1,v{t0}", [t0], [t3])
VV(f"v_lshlrev_b32 v{t3},1,v{t3}", [t3], [t3])
VV(f"v_xor_b32 v{t3},v{t3},v{t2}", [t3, t2], [t3])
VV(f"v_lshl_add_u32 v{vRA},v{t3},4,v{vRA}", [t3, vRA], [vRA])
VV(f"v_xor_b32 v{vRB},32,v{vRA}", [vRA], [vRB])
VV(f"v_lshrrev_b32 v{t0},1,v{t2}", [t2], [t0])
VV(f"v_lshl_add_u32 v{t0},s{sWv},1,v{t0}", [t0], [t0], [sWv])
VV(f"v_and_b32 v{t1},7,v{ln}", [ln], [t1])
VV(f"v_xor_b32 v{t0},v{t0},v{t1}", [t0, t1], [t0])
VV(f"v_and_b32 v{t3},15,v{ln}", [ln], [t3])
VV(f"v_lshlrev_b32 v{vXw},7,v{t3}", [t3], [vXw])
VV(f"v_lshl_add_u32 v{vXw},v{t0},4,v{vXw}", [t0, vXw], [vXw])
VV(f"v_and_b32 v{t3},1,v{t2}", [t2], [t3])
VV(f"v_lshl_add_u32 v{vXw},v{t3},3,v{vXw}", [t3, vXw], [vXw])
VV(f"v_bfe_u32 v{t0},v{vU},7,4", [vU], [t0])
VV(f"v_lshrrev_b32 v{t2},2,v{t0}", [t0], [t2])
VV(f"v_mul_u32_u24 v{vSt},{8 * ROWB},v{t2}", [t2], [vSt])
VV(f"v_and_b32 v{t2},3,v{t0}", [t0], [t2])
VV(f"v_mul_u32_u24 v{t2},1536,v{t2}", [t2], [t2])
VV(f"v_and_b32 v{t0},7,v{t0}", [t0], [t0])
VV(f"v_xor_b32 v{t0},v{t0},v{t1}", [t0, t1], [t0])
VV(f"v_lshl_add_u32 v{t0},v{t0},4,v{t2}", [t0, t2], [t0])
VV(f"v_add_u32 v{vSt},v{vSt},v{t0}", [t0, vSt], [vSt])
stamp()
rest = pro_loads[NPRO0:]
for j in range(4):
    for k, op in enumerate(main_compute(0, 0, j, PB[j])):
        em.put(op)
        if j == 0 and k == 17:
            stamp()
    for op in main_writes(0, 0, j, PB[j], -BIG, -BIG)[0]:
        em.put(op)
    if j == 1:
        if CFG["fuse"]:
            VV(f"v_and_b32 v65,3,v{ln}", [ln], [65])
            VV("v_lshlrev_b32 v65,6,v65", [65], [65])
            S("s_mov_b32 s84,0\nL_poll:\nglobal_load_dword v66,v65,s[52:53] sc1\ns_add_u32 s84,s84,1\ns_waitcnt vmcnt(0)")
            S("v_cmp_ne_u32 vcc,54,v66\ns_cmp_gt_u32 s84,0x4000\ns_cbranch_scc1 L_fallback\ns_cbranch_vccnz L_poll\nL_uready:")
            em.vm_done = len(em.vm)
            stamp()
            for op in pro_U:
                em.put(op)
        for op in rest:
            em.put(op)
for op in halo_compute(0, 0, PH, -BIG, -BIG)[0]:
    em.put(op)
stamp()
em.put(Op("s_barrier", "bar"))
for op in pro_V:
    em.put(op)
stamp()
nfree = 0
stamp_gaps = set(P * NP + 288 * k - 1 for P in range(NPASS) for k in range(1, 10))
probe = set()
if CFG["dbg"] == 3:
    stamp_gaps = set()
    probe = set(id(ld_ops[k]) for k in [(0, 2, 1), (0, 2, 3), (0, 3, 1), (0, 3, 3), (0, 4, 2), (1, 0, 3), (1, 2, 2), (1, 3, 2), (1, 4, 1)])
for g in range(NM):
    em.put(mf[g])
    if g in stamp_gaps and g < NM - 1:
        stamp()
    cur = gaps[g]
    body = cur["sc"] + cur["mem"] + cur["valu"]
    if g < NM - 1:
        w = em.wait_for(body + [mf[g + 1]])
        if w and cur["sc"] and cur["sc"][0].kind != "bar":
            nfree += 1
    for op in body:
        em.put(op)
        if id(op) in probe:
            S("s_waitcnt lgkmcnt(0)")
            stamp()
            S("s_waitcnt vmcnt(0) lgkmcnt(0)")
            stamp()
            S("s_waitcnt lgkmcnt(0)")
if CFG["dbg"]:
    stamp()
    S("s_waitcnt vmcnt(0) lgkmcnt(0)")
    stamp()
    S("s_memrealtime s[94:95]")
    S("s_waitcnt lgkmcnt(0)")
    S(f"v_writelane_b32 v{vDBG},s98,{nst[0] - 1}")
    S(f"s_sub_u32 s94,s94,s96\nv_writelane_b32 v{vDBG},s94,{nst[0]}\nv_writelane_b32 v{vDBG},s96,{nst[0] + 1}")
    S(f"s_getreg_b32 s95,hwreg(HW_REG_XCC_ID)\nv_writelane_b32 v{vDBG},s95,{nst[0] + 2}")
    S(f"s_mov_b32 s{sUs + 2},0x1000000")
    S(f"s_lshl_b32 s54,s2,2\ns_add_u32 s54,s54,s{sWv}\ns_lshl_b32 s54,s54,7\ns_add_u32 s54,s54,0x400000")
    S(f"v_bfe_u32 v1,v{vU},4,6\nv_lshlrev_b32 v1,2,v1\ns_mov_b64 exec,0xffffffff\ns_mov_b32 exec_hi,0")
    S(f"buffer_store_dword v{vDBG},v1,s[{sUs}:{sUs + 3}],s54 offen")
    if CFG["dbg"] == 2:
        S("s_load_dwordx2 s[4:5],s[0:1],24\ns_waitcnt lgkmcnt(0)")
        S(f"s_lshl_b32 s54,s2,2\ns_add_u32 s54,s54,s{sWv}\ns_cmp_eq_u32 s54,400\ns_cbranch_scc0 L_nodbg")
        S(f"v_mov_b32 v2,v{vDBG}\ns_nop 1\nv_sub_u32_dpp v2,v{vDBG},v{vDBG} row_shl:1 row_mask:0xf bank_mask:0xf\ns_nop 1")
        S("global_store_dword v1,v2,s[4:5]")
        S("L_nodbg:")
    print("; stamps", nst[0], file=sys.stderr)
print(f"; waits {em.nwait} nops {em.nnop} wait+scalar clashes {nfree} instrs {len(em.out)}", file=sys.stderr)
main_lines = em.lines()

U = []
A = U.append
A("s_cmp_ge_u32 s2,216\ns_cbranch_scc1 L_uend")
A("s_load_dwordx2 s[4:5],s[0:1],8\ns_load_dwordx2 s[6:7],s[0:1],32")
A("s_mul_hi_u32 s20,s2,0x55555556\ns_mul_i32 s21,s20,3\ns_sub_u32 s21,s2,s21")
A("s_mul_hi_u32 s22,s20,0x55555556\ns_mul_i32 s23,s22,3\ns_sub_u32 s23,s20,s23")
A("s_mul_hi_u32 s24,s22,0x2aaaaaab\ns_mul_i32 s25,s24,6\ns_sub_u32 s25,s22,s25")
A("v_and_b32 v1,15,v0\nv_lshrrev_b32 v2,4,v0")
A("s_lshl_b32 s26,s23,6\ns_lshl_b32 s27,s24,4\ns_add_u32 s26,s26,s27\nv_add_u32 v3,s26,v1\nv_lshlrev_b32 v3,1,v3")
A("v_mul_u32_u24 v4,3072,v2\nv_add_u32 v3,v3,v4")
A("s_mul_i32 s26,s21,221184\ns_mul_i32 s27,s25,12288\ns_add_u32 s26,s26,s27\ns_add_u32 s27,s26,73728\ns_add_u32 s28,s27,73728")
A("s_waitcnt lgkmcnt(0)")
A("s_mov_b32 s8,s4\ns_and_b32 s9,s5,0xffff\ns_mov_b32 s10,663552\ns_mov_b32 s11,0x20000")
A(f"s_mov_b32 s12,s6\ns_and_b32 s13,s7,0xffff\ns_mov_b32 s14,{4 * UWAVE}\ns_mov_b32 s15,0x20000")
for s in range(3):
    for e in range(8):
        A(f"buffer_load_short_d16_hi v{8 + s * 8 + e},v3,s[8:11],s{26 + s} offen offset:{e * 384}")
A(f"s_mul_i32 s30,s24,{UWAVE}\ns_mul_i32 s31,s25,{18 * 3072}\ns_add_u32 s30,s30,s31\ns_mul_i32 s31,s23,3072\ns_add_u32 s30,s30,s31\n"
  "s_lshl_b32 s31,s21,10\ns_add_u32 s30,s30,s31")
A("v_lshlrev_b32 v5,4,v0")
A(f"s_mov_b32 s33,{fbits(-1 / 6):#x}\ns_mov_b32 s34,{fbits(1 / 24):#x}\ns_mov_b32 s35,{fbits(1 / 6):#x}\ns_mov_b32 s36,{fbits(1 / 12):#x}")
A("s_waitcnt vmcnt(0)")
for e in range(8):
    g0, g1, g2 = 8 + e, 16 + e, 24 + e
    A(f"v_add_f32 v6,v{g0},v{g2}\nv_add_f32 v{32 + e},v6,v{g1}\nv_sub_f32 v{40 + e},v6,v{g1}")
    A(f"v_mul_f32 v{32 + e},s33,v{32 + e}\nv_mul_f32 v{40 + e},s33,v{40 + e}")
    A(f"v_mul_f32 v6,s34,v{g0}\nv_fmac_f32 v6,s35,v{g2}\nv_fma_f32 v{48 + e},s36,v{g1},v6\nv_fma_f32 v{56 + e},-s36,v{g1},v6")
for p, src in ((0, 8), (1, 32), (2, 40), (3, 48), (4, 56), (5, 24)):
    for e in range(4):
        A(f"v_cvt_pk_bf16_f32 v{64 + 4 * p + e},v{src + 2 * e},v{src + 2 * e + 1}")
    A(f"s_add_u32 s31,s30,{p * 9216}")
    A(f"buffer_store_dwordx4 v[{64 + 4 * p}:{67 + 4 * p}],v5,s[12:15],s31 offen")
A("L_uend:\ns_endpgm")

KD = """.amdhsa_kernel {n}
  .amdhsa_next_free_vgpr {v}
  .amdhsa_next_free_sgpr {s}
  .amdhsa_accum_offset {a}
  .amdhsa_group_segment_fixed_size 0
  .amdhsa_kernarg_size 40
  .amdhsa_user_sgpr_count 2
  .amdhsa_user_sgpr_kernarg_segment_ptr 1
  .amdhsa_system_sgpr_workgroup_id_x 1
  .amdhsa_float_denorm_mode_32 3
.end_amdhsa_kernel"""
out = []
if CFG["fuse"]:
    out.append(f"; @launch grid=(256,1,1) block=(256,1,1) lds={18 * UNIT}")
else:
    out.append("; @launch kernel=wtrans_kernel grid=(216,1,1) block=(64,1,1) lds=0")
    out.append(f"; @launch kernel=standalone__winograd__vision_kernel grid=(256,1,1) block=(256,1,1) lds={18 * UNIT}")
out.append('.amdgcn_target "amdgcn-amd-amdhsa--gfx950"')
out.append(".macro M d,a,b,c\nv_mfma_f32_16x16x32_bf16 \\d,\\a,\\b,\\c\n.endm")
out.append(".text")
if not CFG["fuse"]:
    out.append(".globl wtrans_kernel\n.p2align 8\n.type wtrans_kernel,@function\nwtrans_kernel:")
    out += U
out.append(".globl standalone__winograd__vision_kernel\n.p2align 8\n.type standalone__winograd__vision_kernel,@function")
out.append("standalone__winograd__vision_kernel:")
out += main_lines
out.append("s_endpgm\nL_code_end:")
out.append('.section .rodata,"a"\n.p2align 6')
if not CFG["fuse"]:
    out.append(KD.format(n="wtrans_kernel", v=96, s=48, a=96))
    out.append(".p2align 6")
out.append(KD.format(n="standalone__winograd__vision_kernel", v=512, s=102 if CFG["dbg"] else 94, a=256))
print("\n".join(out))
```

```python
import sys
import struct
from sched import Op, R, schedule, Emitter, BIG

CFG = dict(D=12, E=8, LATG=30, st_gap=25.0, st0=1590, vlead=7, dbg=0, stf=" nt", nost=0, touch=0, ctouch=1, ptouch=0,
           ldsp=0, prom=1, tlag=0, par=0, fuse=1, aw=1, usc=1, pollj=1)
for a in sys.argv[1:]:
    k, v = a.split("=")
    CFG[k] = type(CFG[k])(v)

XB = 100663296
ROWB = 196608
UNIT = 8704
NP = 2592
NPASS = 2
UWAVE = 324 * 1024
fbits = lambda x: struct.unpack("<I", struct.pack("<f", x))[0]

if CFG["dbg"]:
    CFG["D"] = min(CFG["D"], 11)
D, E = CFG["D"], CFG["E"]
BUF = [192, 204]
UV0 = 216
AV0, AU0 = 192, 192 + 4 * E
NUA = (256 - AU0) // 4
NUV = D - NUA
TMP = UV0 + 4 * NUV
HAL = TMP + 7
vRaw, vHalo, vW, vHW, vRA, vRB, vU, vSt, vXw, vT, vJ = range(HAL + 6, HAL + 17)
assert vJ <= 255, vJ
sX, sXL, sXR, sUs, sO = 8, 12, 16, 20, 24
sRaw, sHalo, sRawB, sCol = 28, 29, 30, 31
sStA, sStY, sSt, sTo = 32, 33, 34, 35
sM5, s8, sMask, sM125, sUW, s025 = 40, 41, 42, 43, 44, 45
sU = 46
sY0, sWv = 49, 50
sRawC, sColC, sUC = 64, 70, 76
STB = 82


def acc(p, kb, y):
    o = (kb * 8 + y) * 4
    return {1: ("a", o), 2: ("a", 96 + o), 3: ("v", o), 4: ("v", 96 + o), 0: ("v", o), 5: ("v", 96 + o)}[p]


def uslot(n):
    s = n % D
    return ("a", AU0 + 4 * s) if s < NUA else ("v", UV0 + 4 * (s - NUA))


def vslot(n):
    return ("a", AV0 + 4 * (n % E))


rr = lambda f, a, n: f"{f}[{a}:{a + n - 1}]" if n > 1 else f"{f}{a}"


def LK(u, tag):
    return [((u, 0), tag), ((u, 1), tag)]


def X45(P):
    return (6, 7) if P % 2 == 0 else (0, 1)


def unit_of(P, c, p):
    x45 = X45(P)
    if p in (0, 5):
        i = 0 if p == 0 else 1
        if c == 0:
            return X45(P + 1)[i]
        if c == 5:
            return 8 + i
        return 10 + 2 * (c - 1) + i
    if c % 2 == 0:
        return 2 + (p - 1)
    if c < 5:
        return (x45[0], x45[1], 8, 9)[p - 1]
    return (x45[0], x45[1], 2, 3)[p - 1]


def nxt(P, c):
    return (P, c + 1) if c < 5 else ((P + 1, 0) if P + 1 < NPASS else None)


groups = []
for P in range(NPASS):
    for c in range(5):
        for p in (1, 2, 3, 4):
            groups.append((P, c, p, (0, 1, 2)))
    for p in (1, 2, 3, 4):
        groups.append((P, 5, p, (0,)))
    for p in (1, 2, 3, 4):
        groups.append((P, 5, p, (1, 2)))
    for kb in range(3):
        for p in (0, 5):
            for c in range(6):
                groups.append((P, c, p, (kb,)))

mf = []
ufr = []
vfr = []
cnt = {}
last_w = {}
first_w = {}
for (P, c, p, kbs) in groups:
    v0 = len(vfr)
    for rho in range(10):
        vfr.append(dict(P=P, c=c, p=p, rho=rho, first=None, last=None))
    for r in range(3):
        for kb in kbs:
            un = len(ufr)
            ufr.append(dict(P=P, c=c, p=p, kb=kb, r=r, first=len(mf), last=len(mf) + 7))
            for y in range(8):
                i = len(mf)
                vn = v0 + y + r
                if vfr[vn]["first"] is None:
                    vfr[vn]["first"] = i
                vfr[vn]["last"] = i
                f, a = acc(p, kb, y)
                uf, ua = uslot(un)
                vf, va = vslot(vn)
                key = (P, p, kb, y)
                n = cnt.get(key, 0)
                cnt[key] = n + 1
                init = n == 0 and p in (1, 2, 3, 4)
                csrc = "0" if init else rr(f, a, 4)
                rd = R(uf, ua, 4) + R(vf, va, 4) + ([] if init else R(f, a, 4))
                rtag = {x: ("U", un) for x in R(uf, ua, 4)}
                rtag.update({x: ("V", vn) for x in R(vf, va, 4)})
                if not init:
                    rtag.update({x: ("M", P, p, kb, y, n) for x in R(f, a, 4)})
                mf.append(Op(f"M {rr(f, a, 4)},{rr(uf, ua, 4)},{rr(vf, va, 4)},{csrc}", "mfma", rd, R(f, a, 4),
                             rtag=rtag, wtag={x: ("M", P, p, kb, y, n + 1) for x in R(f, a, 4)}))
                last_w[key] = i
                first_w.setdefault(key, i)
NM = len(mf)
assert NM == NP * NPASS


def Bgap(P, c):
    if c < 0:
        return Bgap(P - 1, 6) if P > 0 else -1
    if c <= 4:
        return P * NP + 288 * c + 278
    if c == 5:
        return P * NP + 1728 - 6
    return P * NP + NP - 10


def Bmid(P):
    return P * NP + 288 * 4 + 129


fixed = {}
for P in range(NPASS):
    lst = [Bgap(P, c) for c in range(6)] + [Bmid(P)]
    if P + 1 < NPASS:
        lst.append(Bgap(P, 6))
    for g in lst:
        fixed[g] = [Op("s_barrier", "bar")]

S_U = []
pro_U = []
cur_su = {}
for n, u in enumerate(ufr):
    off = (u["p"] * 3 + u["kb"]) * 3072
    rel = ufr[n - D]["last"] if n >= D else -BIG
    dst = pro_U if n < D else S_U
    kb = u["kb"]
    if cur_su.get(kb) != (u["c"], off):
        cur_su[kb] = (u["c"], off)
        dst.append(Op(f"s_add_u32 s{sU + kb},s{sUC + u['c']},{off}", "salu", [("s", sUC + u["c"])], [("s", sU + kb)], release=rel - 6,
                      target=rel - 6, deadline=rel + 4))
    f, a = uslot(n)
    dst.append(Op(f"buffer_load_dwordx4 {rr(f, a, 4)},v{vU},s[{sUs}:{sUs + 3}],s{sU + kb} offen offset:{u['r'] * 1024}{' sc1' if CFG['usc'] else ''}", "vld",
                  [("v", vU), ("s", sU + kb)], R(f, a, 4), release=rel, target=rel - 100, deadline=rel + 6,
                  wtag={x: ("U", n) for x in R(f, a, 4)}))

S_V = []
pro_V = []
v_ops = []
vbase = 0
offs = [unit_of(v["P"], v["c"], v["p"]) * UNIT + v["rho"] * 256 for v in vfr]
for n, v in enumerate(vfr):
    rel = vfr[n - E]["last"] if n >= E else -BIG
    rel = max(rel, Bgap(v["P"], v["c"] - 1))
    dst = pro_V if n < E else S_V
    dl = v["first"] - 5
    if v["p"] in (0, 5):
        if v["P"] + 1 < NPASS:
            dl = min(dl, Bgap(v["P"], 6) - 1)
    elif v["c"] == 4 and v["p"] <= 2:
        dl = min(dl, Bmid(v["P"]) - 1)
    else:
        dl = min(dl, Bgap(v["P"], v["c"]) - 1)
    assert dl >= rel or n < E, (v, dl, rel)
    tg = max(rel, v["first"] - CFG["vlead"])
    if not (0 <= offs[n] - vbase <= 65535):
        lo = hi = offs[n]
        m = n
        while m < len(offs) and max(hi, offs[m]) - min(lo, offs[m]) <= 65535:
            lo, hi = min(lo, offs[m]), max(hi, offs[m])
            m += 1
        d = (lo - vbase) & 0xFFFFFFFF
        vbase = lo
        for reg in (vRA, vRB):
            dst.append(Op(f"v_add_u32 v{reg},{d:#x},v{reg}", "valu", [("v", reg)], [("v", reg)], release=rel - 3,
                          target=tg - 3, deadline=dl - 2))
    reg = vRA if v["rho"] in (0, 9) else vRB
    f, a = vslot(n)
    u = unit_of(v["P"], v["c"], v["p"])
    dst.append(Op(f"ds_read_b128 {rr(f, a, 4)},v{reg} offset:{offs[n] - vbase}", "dsr", [("v", reg)], R(f, a, 4),
                  release=rel, target=tg, deadline=dl, wtag={x: ("V", n) for x in R(f, a, 4)},
                  lds_r=LK(u, (v["P"], v["c"], v["p"]))))
    v_ops.append((dst[-1], v))


def tv(i):
    return TMP + i


def xform(t, spare):
    L = []
    t0, t1, t2, t3, t4, t5 = t
    a = spare
    L.append((f"v_fmac_f32 v{t0},s{sM125},v{t2}", [t0, t2], [t0]))
    L.append((f"v_fmac_f32 v{t5},4.0,v{t1}", [t5, t1], [t5]))
    L.append((f"v_fma_f32 v{a},-4.0,v{t2},v{t4}", [t2, t4], [a]))
    L.append((f"v_fmac_f32 v{t0},s{s025},v{t4}", [t0, t4], [t0]))
    L.append((f"v_fmac_f32 v{t5},s{sM5},v{t3}", [t5, t3], [t5]))
    L.append((f"v_sub_f32 v{t4},v{t4},v{t2}", [t4, t2], [t4]))
    L.append((f"v_fma_f32 v{t2},-4.0,v{t1},v{t3}", [t1, t3], [t2]))
    L.append((f"v_sub_f32 v{t3},v{t3},v{t1}", [t3, t1], [t3]))
    L.append((f"v_add_f32 v{t1},v{a},v{t2}", [a, t2], [t1]))
    L.append((f"v_sub_f32 v{a},v{a},v{t2}", [a, t2], [a]))
    L.append((f"v_fma_f32 v{t2},2.0,v{t3},v{t4}", [t3, t4], [t2]))
    L.append((f"v_fmac_f32 v{t4},-2.0,v{t3}", [t3, t4], [t4]))
    return L, [t0, t1, a, t2, t4, t5], t3


def V(text, rd, wr, **kw):
    return Op(text, "valu", [("v", x) for x in rd], [("v", x) for x in wr], **kw)


def touches(P, c, j, px, prom):
    ops = [Op(f"s_add_u32 s{sTo},s{sRawC + c},{(32 * P + 2 * j) * ROWB}", "salu", [("s", sRawC + c)], [("s", sTo)])]
    for fl in (" nt", "")[:1 + prom]:
        ops.append(Op(f"buffer_load_dword v{vJ},v{vT},s[{sX}:{sX + 3}],s{sTo} offen offset:{(px - 1) * 384}{fl}",
                      "vld", [("v", vT), ("s", sTo)], [("v", vJ)], name="touch"))
    return ops


def main_loads(P, c, j, buf, first=False):
    ops = []
    dep = []
    if first and CFG["ptouch"]:
        ops += touches(P, c, j, 1, 0) + touches(P, c, j, 2, 0)[1:]
    ops.append(Op(f"s_add_u32 s{sRaw},s{sRawC + c},{(32 * P + 2 * j) * ROWB}", "salu", [("s", sRawC + c)], [("s", sRaw)]))
    for jj in (0, 5, 1, 2, 3, 4):
        srd, imm = (sXL, 0) if jj == 0 else (sXR, 4 * 384) if jj == 5 else (sX, (jj - 1) * 384)
        o = Op(f"buffer_load_dwordx2 v[{buf + 2 * jj}:{buf + 2 * jj + 1}],v{vRaw},s[{srd}:{srd + 3}],s{sRaw} offen offset:{imm}",
               "vld", [("v", vRaw), ("s", sRaw)], R("v", buf + 2 * jj, 2),
               wtag={x: ("raw", P, c, j, jj) for x in R("v", buf + 2 * jj, 2)})
        ops.append(o)
        dep.append((o, jj))
    return ops, dep


def after_touches(P, c, j):
    if not CFG["touch"]:
        return []
    ops = []
    n = nxt(P, c)
    if c % 2 == 1 and n:
        ops += touches(n[0], n[1], j, 1, 1)
    nb = (P, c, j + 1) if j < 3 else (n + (0,) if n else None)
    if nb and nb[1] % 2 == 0 and nb[:2] != (0, 0):
        ops += touches(nb[0], nb[1], nb[2], 2, CFG["prom"])
    return ops


def main_compute(P, c, j, buf):
    ops = []
    for i in range(2):
        lo = [tv(k) for k in range(6)]
        hi = [buf + 2 * k + i for k in range(6)]
        for jj in (2, 0, 1, 5, 4, 3):
            ops.append(V(f"v_lshlrev_b32 v{lo[jj]},16,v{hi[jj]}", [hi[jj]], [lo[jj]], rtag={("v", hi[jj]): ("raw", P, c, j, jj)}))
        L, vlo, freed = xform(lo, tv(6))
        ops += [V(t, a, b) for t, a, b in L]
        for jj in (2, 0, 1, 5, 4, 3):
            ops.append(V(f"v_and_b32 v{hi[jj]},s{sMask},v{hi[jj]}", [hi[jj]], [hi[jj]], rtag={("v", hi[jj]): ("raw", P, c, j, jj)}))
        L, vhi, _ = xform(hi, freed)
        ops += [V(t, a, b) for t, a, b in L]
        for p in (0, 5, 1, 3, 2, 4):
            ops.append(V(f"v_cvt_pk_bf16_f32 v{hi[p]},v{vlo[p]},v{vhi[p]}", [vlo[p], vhi[p]], [hi[p]],
                         wtag={("v", hi[p]): ("Vp", P, c, j, p)}))
    return ops


def main_writes(P, c, j, buf, rel, rel_late):
    ops = []
    wr = {}
    for pa, pb in ((0, 5), (1, 2), (3, 4)):
        ua, ub = unit_of(P, c, pa), unit_of(P, c, pb)
        base, sh = vW, 0
        r = rel_late if pa == 3 else rel
        if max(ua, ub) * 17 + j > 255:
            sh = min(ua, ub)
            base = tv(0)
            ops.append(V(f"v_add_u32 v{base},{sh * UNIT},v{vW}", [vW], [base]))
        o = Op(f"ds_write2st64_b64 v{base},v[{buf + 2 * pa}:{buf + 2 * pa + 1}],v[{buf + 2 * pb}:{buf + 2 * pb + 1}] "
               f"offset0:{(ua - sh) * 17 + j} offset1:{(ub - sh) * 17 + j}", "dsw",
               [("v", base)] + R("v", buf + 2 * pa, 2) + R("v", buf + 2 * pb, 2), [], cost=5, release=r,
               rtag={**{x: ("Vp", P, c, j, pa) for x in R("v", buf + 2 * pa, 2)},
                     **{x: ("Vp", P, c, j, pb) for x in R("v", buf + 2 * pb, 2)}},
               lds_w=LK(ua, (P, c, pa)) + LK(ub, (P, c, pb)))
        ops.append(o)
        wr[pa] = wr[pb] = o
    return ops, wr


def halo_loads(P, c, regs):
    ops = []
    sHalo = sColC + c
    for jj in range(6):
        srd, imm = (sXL, 0) if jj == 0 else (sXR, 4 * 384) if jj == 5 else (sX, (jj - 1) * 384)
        ops.append(Op(f"buffer_load_short_d16_hi v{regs + jj},v{vHalo},s[{srd}:{srd + 3}],s{sHalo} offen offset:{imm}",
                      "vld", [("v", vHalo), ("s", sHalo)], [("v", regs + jj)], wtag={("v", regs + jj): ("hraw", P, c, jj)}))
    return ops


def halo_compute(P, c, regs, rel, rel_late):
    ops = []
    L, vr, _ = xform([regs + k for k in range(6)], tv(0))
    seen = set()
    for t, a, b in L:
        rt = {("v", x): ("hraw", P, c, x - regs) for x in a if regs <= x < regs + 6 and x not in seen}
        seen.update(b)
        ops.append(V(t, a, b, rtag=rt))
    pk = {}
    for k, (pa, pb) in enumerate(((0, 5), (1, 2), (3, 4))):
        ops.append(V(f"v_cvt_pk_bf16_f32 v{tv(1 + k)},v{vr[pa]},v{vr[pb]}", [vr[pa], vr[pb]], [tv(1 + k)]))
        pk[pa] = (tv(1 + k), "")
        pk[pb] = (tv(1 + k), "_d16_hi")
    free_raw = ops[-1]
    sh_cur = None
    for p in (0, 5, 1, 2, 3, 4):
        u = unit_of(P, c, p)
        base, off = vHW, u * UNIT
        if off > 65535:
            if sh_cur is None or not (0 <= off - sh_cur <= 65535):
                sh_cur = off
                ops.append(V(f"v_add_u32 v{tv(0)},{off},v{vHW}", [vHW], [tv(0)]))
            base, off = tv(0), off - sh_cur
        ops.append(Op(f"ds_write_b16{pk[p][1]} v{base},v{pk[p][0]} offset:{off}", "dsw", [("v", base), ("v", pk[p][0])], [], cost=2,
                      release=rel_late if p in (3, 4) else rel, lds_w=LK(u, (P, c, p))))
    return ops, free_raw


def halo_addr(P):
    t0, t1 = tv(0), tv(1)
    return [V(f"v_bfe_u32 v{t0},v{vU},9,1", [vU], [t0]),
            V(f"v_mul_u32_u24 v{t0},33,v{t0}", [t0], [t0]),
            Op(f"v_add_u32 v{t0},s{sY0},v{t0}", "valu", [("v", t0), ("s", sY0)], [("v", t0)]),
            V(f"v_add_u32 v{t0},{32 * P - 1},v{t0}", [t0], [t0]),
            V(f"v_mul_u32_u24 v{t1},{ROWB},v{t0}", [t0], [t1]),
            V(f"v_cmp_gt_u32 vcc,512,v{t0}", [t0], []),
            V(f"v_bfe_u32 v{t0},v{vU},3,6", [vU], [t0]),
            V(f"v_add_u32 v{t1},v{t1},v{t0}", [t0, t1], [t1]),
            V(f"v_bfrev_b32 v{t0},1", [], [t0]),
            V(f"v_cndmask_b32 v{vHalo},v{t0},v{t1},vcc", [t0, t1], [vHalo])]


def stage_write(P, key, slot, ra, rb):
    u, h = slot
    off = u * 17 + h * 8
    assert off + 4 <= 255
    return Op(f"ds_write2st64_b64 v{vXw},v[{ra}:{ra + 1}],v[{rb}:{rb + 1}] offset0:{off} offset1:{off + 4}", "dsw",
              [("v", vXw)] + R("v", ra, 2) + R("v", rb, 2), [], cost=5,
              rtag={**{x: ("Y", P, key, 0) for x in R("v", ra, 2)}, **{x: ("Y", P, key, 1) for x in R("v", rb, 2)}},
              lds_w=[(slot, ("X", P, key))])


XT = 0
XTB = 8 * UNIT


def stage_read(P, key, slot):
    kb, kind, y = key
    if kind == "s":
        f, a = acc(1, kb, y)
        nw = (1, kb, y)
        so, imm = f"s{sStA},{(32 * P + y) * ROWB}", 384 + 128 * kb
    else:
        p = 0 if kind == 0 else 5
        if kb == 0:
            yy = y + (0 if kind == 0 else 4)
            f, a = acc(2, kb, yy)
            nw = (2, kb, yy)
        else:
            f, a = acc(p, kb, 2 * y)
            nw = (3 if p == 0 else 4, kb, 2 * y)
        so, imm = f"s{sStY},{(32 * P + 2 * y) * ROWB}", kind * 384 + 128 * kb
    off = slot[0] * UNIT + slot[1] * 4096
    base = vU
    if off > 65535:
        base, off = XT, off - XTB
    rd = Op(f"ds_read_b128 {rr(f, a, 4)},v{base} offset:{off}", "dsr", [("v", base)], R(f, a, 4),
            wtag={x: ("L", P, key) for x in R(f, a, 4)}, lds_r=[(slot, ("X", P, key))],
            rtag={("v", XT): ("XT", P)} if base == XT else None)
    dl = first_w[(P + 1,) + nw] - 2 if P + 1 < NPASS else BIG
    s = Op(f"s_add_u32 s{sSt},{so}", "salu", [], [("s", sSt)])
    if CFG["nost"]:
        st = Op("v_nop", "valu", R(f, a, 4), [], deadline=dl, after=[(rd, 5)])
    else:
        st = Op(f"buffer_store_dwordx4 {rr(f, a, 4)},v{vSt},s[{sO}:{sO + 3}],s{sSt} offen offset:{imm}{CFG['stf']}", "vst",
                R(f, a, 4) + [("v", vSt), ("s", sSt)], [], cost=6, deadline=dl, rtag={x: ("L", P, key) for x in R(f, a, 4)},
                after=[(rd, 5)])
    return rd, [s, st]


def sw_block(P, kb, y, slot):
    ops = []
    rel = last_w[(P, 4, kb, y)] + 3
    a1, a2, m3, m4 = acc(1, kb, y)[1], acc(2, kb, y)[1], acc(3, kb, y)[1], acc(4, kb, y)[1]
    pk = [tv(0), tv(2)]
    key = (kb, "s", y)
    for h in range(2):
        us, t2s = [pk[1] + h, tv(4)], [pk[0] + h, tv(5)]
        t1 = tv(6)
        for e in range(2):
            i = 2 * h + e
            u, t2 = us[e], t2s[e]
            M3, M4 = m3 + i, m4 + i
            dl0 = first_w[(P, 0, kb, y)] - 2
            dl3 = first_w[(P, 5, kb, y)] - 2
            ops.append(Op(f"v_accvgpr_read_b32 v{t1},a{a1 + i}", "valu", [("a", a1 + i)], [("v", t1)], release=rel,
                          rtag={("a", a1 + i): ("M", P, 1, kb, y, 18)}))
            ops.append(Op(f"v_accvgpr_read_b32 v{t2},a{a2 + i}", "valu", [("a", a2 + i)], [("v", t2)],
                          rtag={("a", a2 + i): ("M", P, 2, kb, y, 18)}))
            ops.append(V(f"v_add_f32 v{u},v{t1},v{t2}", [t1, t2], [u]))
            ops.append(V(f"v_sub_f32 v{t1},v{t1},v{t2}", [t1, t2], [t1]))
            ops.append(V(f"v_add_f32 v{t2},v{M3},v{M4}", [M3, M4], [t2],
                         rtag={("v", M3): ("M", P, 3, kb, y, 18), ("v", M4): ("M", P, 4, kb, y, 18)}))
            ops.append(V(f"v_sub_f32 v{M4},v{M3},v{M4}", [M3, M4], [M4]))
            ops.append(V(f"v_add_f32 v{M3},v{u},v{t2}", [u, t2], [M3], wtag={("v", M3): ("M", P, 0, kb, y, 0)}, deadline=dl0))
            ops.append(V(f"v_fmac_f32 v{u},4.0,v{t2}", [u, t2], [u]))
            ops.append(V(f"v_fma_f32 v{t2},2.0,v{M4},v{t1}", [M4, t1], [t2]))
            ops.append(Op(f"v_fma_f32 v{M4},s{s8},v{M4},v{t1}", "valu", [("v", M4), ("v", t1)], [("v", M4)],
                          wtag={("v", M4): ("M", P, 5, kb, y, 0)}, deadline=dl3))
        for m, src in ((1, t2s), (2, us)):
            d = pk[m - 1] + h
            ops.append(V(f"v_cvt_pk_bf16_f32 v{d},v{src[0]},v{src[1]}", src, [d], wtag={("v", d): ("Y", P, key, m - 1)}))
    ops.append(stage_write(P, key, slot, pk[0], pk[1]))
    return ops


def fin_block(P, kb, m, yp, slot):
    ops = []
    p = 0 if m == 0 else 5
    key = (kb, m, yp)
    for k in range(2):
        y = 2 * yp + k
        a = acc(p, kb, y)[1]
        for h in range(2):
            ops.append(V(f"v_cvt_pk_bf16_f32 v{a + h},v{a + 2 * h},v{a + 2 * h + 1}", [a + 2 * h, a + 2 * h + 1], [a + h],
                         release=last_w[(P, p, kb, y)] + 3,
                         rtag={("v", a + 2 * h + 1): ("M", P, p, kb, y, 18)}, wtag={("v", a + h): ("Y", P, key, k)}))
    ops.append(stage_write(P, key, slot, acc(p, kb, 2 * yp)[1], acc(p, kb, 2 * yp + 1)[1]))
    return ops


S_main, S_ld, S_x, S_st = [], [], [], []
pending_bars = []


def flush_bars():
    for pos, lag, b in sorted(pending_bars, key=lambda x: -x[0]):
        while lag > 0 and pos < len(S_main) and S_main[pos].kind == "valu":
            pos += 1
            lag -= 1
        S_main.insert(pos, b)
    pending_bars.clear()


PB = [0, 12, 24, 36]
PH = 48
pro_loads = []
for j in range(4):
    pro_loads += main_loads(0, 0, j, PB[j], first=True)[0]
pro_loads += halo_loads(0, 0, PH)
NPRO0 = len(pro_loads)

prev_wr = {0: None, 1: None}
prev_hfree = None
ld_ops = {}
in_ld = set()


def add_loads(P, c, j):
    b = j % 2
    o, dep = main_loads(P, c, j, BUF[b])
    ld_ops[(P, c, j)] = o[-1]
    pw = prev_wr[b]
    tch = after_touches(P, c, j)
    if pw is None:
        pro_loads.extend(o + tch)
        return
    for op in tch:
        op.target = -BIG
        op.after = [(o[-1], CFG["tlag"])]
    o[0].after = [(pw[0], -1)]
    for op, slot in dep:
        op.after = [(pw[slot], 0)]
    prev = None
    for op in o:
        op.target = -BIG
        if op.kind == "vld":
            if prev is not None and CFG["ldsp"] and not (prev.name == "touch" and "nt" in prev.text):
                op.after.append((prev, CFG["ldsp"]))
            prev = op
    S_ld.extend(o + tch)
    in_ld.add(id(o[-1]))


def add_halo_loads(P, c, extra_after=()):
    o = halo_loads(P, c, HAL)
    ld_ops[(P, c, "h")] = o[-1]
    if prev_hfree is None:
        pro_loads.extend(o)
        return
    for op in o:
        op.after = [(prev_hfree, 1)] + list(extra_after)
        op.target = -BIG
    S_ld.extend(o)
    in_ld.add(id(o[-1]))


def add_round(P, c, j, rel, rel_late, dl, compute=True, write=True):
    b = j % 2
    if compute:
        ops = main_compute(P, c, j, BUF[b])
        if id(ld_ops[(P, c, j)]) in in_ld:
            ops[0].after = [(ld_ops[(P, c, j)], CFG["LATG"])]
        S_main.extend(ops)
    if write:
        ops, wr = main_writes(P, c, j, BUF[b], rel, rel_late)
        ops[-1].deadline = dl
        S_main.extend(ops)
        prev_wr[b] = wr


def add_halo(P, c, rel, rel_late, dl):
    global prev_hfree
    ops, fr = halo_compute(P, c, HAL, rel, rel_late)
    if id(ld_ops[(P, c, "h")]) in in_ld:
        ops[0].after = [(ld_ops[(P, c, "h")], CFG["LATG"])]
    ops[-1].deadline = dl
    S_main.extend(ops)
    prev_hfree = fr


reads_prev = []
unread = []
stores = []


def unit(P, key, slot, rel=-BIG):
    ops = sw_block(P, key[0], key[2], slot) if key[1] == "s" else fin_block(P, key[0], key[1], key[2], slot)
    ops[-1].release = max(ops[-1].release, rel)
    S_main.extend(ops)
    unread.append((key, slot, ops[-1]))


def xbar(P, release=-BIG, extra_needs=(), lag=6):
    global reads_prev, unread
    b = Op("s_barrier", "bar", needs=[w for _, _, w in unread] + reads_prev + list(extra_needs), release=release,
           after=[(o, 4) for o in reads_prev + list(extra_needs)] + [(w, 3) for _, _, w in unread])
    pending_bars.append((len(S_main), lag, b))
    reads_prev = []
    for key, slot, _ in unread:
        rd, st = stage_read(P, key, slot)
        rd.after = [(b, 0)]
        rd.target = -BIG
        S_x.append(rd)
        reads_prev.append(rd)
        stores.append(st)
    unread = []
    if lag == 0:
        flush_bars()
    return b


add_loads(0, 1, 0)
add_loads(0, 1, 1)
add_halo_loads(0, 1)
for P in range(NPASS):
    for c in range(1, 6):
        rel = Bgap(P, c - 2)
        rel_late = Bmid(P) if c == 5 else rel
        dl = Bgap(P, c - 1) - 3
        n = nxt(P, c)
        for j in [0, 1, "h", 2, 3]:
            if j == "h":
                add_halo(P, c, rel, rel_late, dl)
                if n:
                    if n[1] == 0:
                        ha = halo_addr(n[0])
                        S_main.extend(ha)
                        add_halo_loads(n[0], n[1], [(ha[-1], 1)])
                    else:
                        add_halo_loads(*n)
            else:
                add_round(P, c, j, rel, rel_late, dl)
                if j < 2:
                    add_loads(P, c, j + 2)
                elif n:
                    add_loads(n[0], n[1], j - 2)
    more = P + 1 < NPASS
    dl = Bgap(P, 6) - 3
    ringA = [(4, 0), (4, 1), (5, 0), (5, 1)]
    ringB = [(u, h) for u in (2, 3) + X45(P) + (4, 5) for h in (0, 1)]
    reads_prev, stores = [], []
    if more:
        add_round(P + 1, 0, 0, None, None, dl, write=False)
    for k in range(4):
        for y in (2 * k, 2 * k + 1):
            unit(P, (0, "s", y), ringA[y % 4])
        xbar(P)
    nb = 0
    for batch in ([(1, "s", y) for y in range(4)], [(0, 0, y) for y in range(4)] + [(1, "s", 4), (1, "s", 5)],
                  [(1, "s", 6), (1, "s", 7)] + [(0, 3, y) for y in range(4)],
                  [(2, "s", y) for y in range(4)], [(1, 0, y) for y in range(4)] + [(2, "s", 4), (2, "s", 5)],
                  [(2, "s", 6), (2, "s", 7)] + [(1, 3, y) for y in range(4)]):
        for k, key in enumerate(batch):
            unit(P, key, ringB[6 * (nb % 2) + k], Bgap(P, 5))
        nb += 1
        xbar(P)
        if nb == 3 and more:
            S_x.append(V(f"v_add_u32 v{XT},{XTB},v{vU}", [vU], [XT], wtag={("v", XT): ("XT", P)}))
    if more:
        p0_reads = [op for op, v in v_ops if v["P"] == P and v["p"] == 0 and v["first"] >= P * NP + NP - 288]
        add_round(P + 1, 0, 1, None, None, dl, write=False)
        xbar(P, lag=0)
        for j in (0, 1):
            add_round(P + 1, 0, j, -BIG, -BIG, dl, compute=False)
            add_loads(P + 1, 0, j + 2)
        add_halo(P + 1, 0, -BIG, -BIG, dl)
        add_halo_loads(P + 1, 1)
        add_round(P + 1, 0, 2, -BIG, -BIG, dl)
        add_loads(P + 1, 1, 0)
        xbar(P, extra_needs=p0_reads[-1:], lag=0)
        for y in range(4):
            unit(P, (2, 0, y), [(8, 0), (8, 1), (10, 0), (10, 1)][y])
        xbar(P)
        for op in reads_prev:
            op.deadline = dl
        add_round(P + 1, 0, 3, -BIG, -BIG, dl)
        add_loads(P + 1, 1, 1)
        for y in range(4):
            unit(P, (2, 3, y), [(12, 0), (12, 1), (14, 0), (14, 1)][y])
        xbar(P)
        for op in reads_prev:
            op.deadline = Bgap(P + 1, 0) - 3
    else:
        flush_bars()
        for y in range(4):
            unit(P, (2, 0, y), ringB[y])
        xbar(P, lag=0)
        for y in range(4):
            unit(P, (2, 3, y), ringB[6 + y])
        xbar(P, lag=0)
    t = P * NP + float(CFG["st0"])
    gap = CFG["st_gap"] if more else (NP - 30 - CFG["st0"]) / 44.0
    for s, st in stores:
        s.release = st.release = int(t) if t < NM - 8 else -BIG
        s.target = st.target = int(t)
        s.after = list(st.after)
        t += gap
        S_st.extend([s, st])
flush_bars()


def propagate(st, rate):
    nd = BIG
    for op in reversed(st):
        if nd < BIG:
            nd -= (op.cost if op.cost else 0.0) / rate + (0.34 if op.mem or op.kind == "bar" else 0)
        op.deadline = min(op.deadline, nd)
        nd = min(nd, op.deadline)
    for op in st:
        if op.deadline < BIG:
            op.deadline = int(op.deadline // 1)


propagate(S_st, 8.0)
for st in (S_st, S_x):
    for s in st:
        for a, d in s.after:
            a.deadline = min(a.deadline, s.deadline - d)
    propagate(S_x, 4.0)
propagate(S_main, 4.0)
for op in S_main:
    if op.target is None:
        op.target = op.deadline + 1000

streams = [S_U, S_V, S_ld, S_x, S_st, S_main]
bud = [2.0] * (NM // 288)
best = None
for it in range(6):
    for st in streams:
        for op in st:
            op.gap = None
    for op in pro_loads + pro_U + pro_V:
        op.gap = -BIG
    gaps, late = schedule(NM, streams, fixed, lambda g: bud[g // 288])
    tot = [0] * (NM // 288)
    und = [0] * (NM // 288)
    for g, cur in enumerate(gaps[:-1]):
        tot[g // 288] += max(2, cur["used"])
        und[g // 288] += max(0, 2 - cur["used"])
    est = sum(8 + 4 * max(2, c["used"]) for c in gaps[:-1])
    print(f"; iter {it}: est {est} cycles, late {len(late)}, tail ops {len(gaps[-1]['valu'])}, phases {[round(t / 288, 2) for t in tot]} "
          f"underfill {und}", file=sys.stderr)
    for w in range(len(bud)):
        bud[w] = max(2.0, 0.5 * bud[w] + 0.5 * (tot[w] - und[w]) / 288)
for op, g in late[:20]:
    print("; late", op.text, op.deadline, g, file=sys.stderr)

em = Emitter()
S = lambda t, rd=(), wr=(): em.raw(t, "salu", [("s", x) for x in rd], [("s", x) for x in wr])
VV = lambda t, rd=(), wr=(), srd=(), swr=(): em.raw(t, "valu", [("v", x) for x in rd] + [("s", x) for x in srd],
                                                    [("v", x) for x in wr] + [("s", x) for x in swr])
nst = [0]
vDBG = vJ + 1
assert vDBG <= 255 or not CFG['dbg']


def stamp():
    if not CFG["dbg"]:
        return
    if nst[0] > 0:
        S(f"v_writelane_b32 v{vDBG},s98,{nst[0] - 1}")
    S("s_memrealtime s[98:99]" if CFG["dbg"] == 4 else "s_memtime s[98:99]")
    nst[0] += 1


def pstamp():
    if CFG["dbg"] == 4:
        S("s_waitcnt lgkmcnt(0)")
        stamp()


def u_item(tag, loop):
    L = [f"L_item{tag}:"]
    A = L.append
    A("s_and_b32 s85,s84,3\ns_lshr_b32 s86,s84,2")
    A("s_mul_hi_u32 s87,s86,0x55555556\ns_mul_i32 s88,s87,3\ns_sub_u32 s86,s86,s88")
    A("s_mul_hi_u32 s88,s87,0x2aaaaaab\ns_mul_i32 s89,s88,6\ns_sub_u32 s87,s87,s89")
    A("s_mul_i32 s89,s86,221184\ns_mul_i32 s90,s87,12288\ns_add_u32 s89,s89,s90\ns_mul_i32 s90,s85,3072\ns_add_u32 s89,s89,s90")
    A("s_lshl_b32 s90,s88,7\ns_add_u32 s89,s89,s90\ns_add_u32 s90,s89,73728\ns_add_u32 s91,s90,73728")
    A(f"v_lshlrev_b32 v149,1,v{ln}")
    for s in range(3):
        for e in range(8):
            A(f"buffer_load_short_d16_hi v{68 + s * 8 + e},v149,s[36:39],s{89 + s} offen offset:{e * 384}")
    A(f"v_lshrrev_b32 v150,4,v{ln}\nv_mul_u32_u24 v150,{UWAVE},v150\nv_and_b32 v148,15,v{ln}\nv_lshl_add_u32 v150,v148,4,v150")
    A(f"s_mul_i32 s87,s87,{18 * 3072}\ns_mul_i32 s88,s88,3072\ns_add_u32 s87,s87,s88\ns_lshl_b32 s86,s86,10\ns_add_u32 s87,s87,s86")
    A("s_lshl_b32 s85,s85,8\ns_add_u32 s87,s87,s85")
    A(f"s_mov_b32 s85,{fbits(-1 / 6):#x}\ns_mov_b32 s86,{fbits(1 / 24):#x}\ns_mov_b32 s88,{fbits(1 / 6):#x}\ns_mov_b32 s92,{fbits(1 / 12):#x}")
    A("s_waitcnt vmcnt(0)")
    for e in range(8):
        g0, g1, g2 = 68 + e, 76 + e, 84 + e
        A(f"v_add_f32 v148,v{g0},v{g2}\nv_add_f32 v{92 + e},v148,v{g1}\nv_sub_f32 v{100 + e},v148,v{g1}")
        A(f"v_mul_f32 v{92 + e},s85,v{92 + e}\nv_mul_f32 v{100 + e},s85,v{100 + e}")
        A(f"v_mul_f32 v148,s86,v{g0}\nv_fmac_f32 v148,s88,v{g2}\nv_fma_f32 v{108 + e},s92,v{g1},v148\nv_fma_f32 v{116 + e},-s92,v{g1},v148")
    for p, src in ((0, 68), (5, 84), (1, 92), (2, 100), (3, 108), (4, 116)):
        for e in range(4):
            A(f"v_cvt_pk_bf16_f32 v{124 + 4 * p + e},v{src + 2 * e},v{src + 2 * e + 1}")
        A(f"s_add_u32 s89,s87,{p * 9216}")
        A(f"buffer_store_dwordx4 v[{124 + 4 * p}:{127 + 4 * p}],v150,s[{sUs}:{sUs + 3}],s89 offen sc1")
    if loop:
        A(f"s_waitcnt vmcnt(0)\ns_add_u32 s84,s84,1\ns_cmp_lt_u32 s84,216\ns_cbranch_scc1 L_item{tag}")
    return "\n".join(L)


t0, t1, t2, t3, ln = 60, 61, 62, 63, 64
S("s_cmp_ge_u32 s2,256")
S("s_cbranch_scc0 L_go\ns_endpgm")
if CFG["fuse"]:
    S("L_fallback:\ns_mov_b32 s84,0\n" + u_item("F", True) + "\ns_branch L_uready")
S("L_go:")
if CFG["dbg"]:
    S("s_memrealtime s[96:97]")
stamp()
S("s_load_dwordx4 s[4:7],s[0:1],0")
S(f"s_load_dwordx4 s[{sO}:{sO + 3}],s[0:1],16")
S("s_load_dwordx2 s[52:53],s[0:1],32")
VV(f"v_lshrrev_b32 v{t0},6,v0", [0], [t0])
VV(f"v_and_b32 v{ln},63,v0", [0], [ln])
VV(f"v_readfirstlane_b32 s{sWv},v{t0}", [t0], [], [], [sWv])
VV(f"v_lshrrev_b32 v{t0},4,v{ln}", [ln], [t0])
VV(f"v_bfe_u32 v{t1},v{ln},3,1", [ln], [t1])
VV(f"v_lshl_add_u32 v{t1},v{t0},3,v{t1}", [t0, t1], [t1])
VV(f"v_and_b32 v{t2},7,v{ln}", [ln], [t2])
VV(f"v_mul_u32_u24 v{vRaw},{ROWB},v{t1}", [t1], [vRaw])
VV(f"v_lshl_add_u32 v{vRaw},v{t2},3,v{vRaw}", [t2, vRaw], [vRaw])
VV(f"v_lshlrev_b32 v{vU},4,v0", [0], [vU])
VV(f"v_bfe_u32 v{t3},v{ln},2,1", [ln], [t3])
VV(f"v_mul_u32_u24 v{t3},768,v{t3}", [t3], [t3])
VV(f"v_mul_u32_u24 v{vT},{ROWB},v{t1}", [t1], [vT])
VV(f"v_add_u32 v{vT},v{vT},v{t3}", [t3, vT], [vT])
S("s_and_b32 s54,s2,7", [2], [54])
S("s_lshr_b32 s55,s2,3", [2], [55])
S(f"s_lshl_b32 s{sY0},s54,6", [54], [sY0])
S("s_lshl_b32 s55,s55,4", [55], [55])
S(f"s_lshl_b32 s56,s{sWv},2", [sWv], [56])
S("s_add_u32 s56,s56,s55", [55, 56], [56])
S(f"s_mul_i32 s{sCol},s56,384", [56], [sCol])
S(f"s_mul_i32 s57,s{sY0},{ROWB}", [sY0], [57])
S(f"s_add_u32 s{sRawB},s57,s{sCol}", [57, sCol], [sRawB])
S(f"s_mul_i32 s{sUW},s{sWv},{UWAVE - 1024}", [sWv], [sUW])
if CFG["par"]:
    S(f"s_bfe_u32 s58,s2,{0x10000 + (0 if CFG['par'] == 1 else 3)}")
else:
    S("s_mov_b32 s58,0")
for c in range(6):
    S(f"s_add_u32 s59,s58,{c}")
    if c == 5:
        S("s_cmp_eq_u32 s59,6\ns_cselect_b32 s59,0,s59")
    S(f"s_mul_i32 s60,s59,{18 * 3072}\ns_lshl_b32 s59,s59,6")
    S(f"s_add_u32 s{sRawC + c},s{sRawB},s59\ns_add_u32 s{sColC + c},s{sCol},s59\ns_add_u32 s{sUC + c},s{sUW},s60")
S("s_waitcnt lgkmcnt(0)")
S(f"s_mov_b32 s{sUs},s52"); S(f"s_and_b32 s{sUs + 1},s53,0xffff"); S(f"s_mov_b32 s{sUs + 2},{4 * UWAVE}"); S(f"s_mov_b32 s{sUs + 3},0x20000")
if CFG["fuse"]:
    S("s_mov_b32 s36,s6\ns_and_b32 s37,s7,0xffff\ns_mov_b32 s38,663552\ns_mov_b32 s39,0x20000")
    S(f"s_mov_b32 s60,s{sO + 2}\ns_and_b32 s61,s{sO + 3},0xffff\ns_mov_b32 s62,0\ns_mov_b32 s63,0x20000")
    S(f"s_mov_b32 s52,s{sO + 2}\ns_mov_b32 s53,s{sO + 3}")
    pstamp()
    S("v_mov_b32 v66,1\ns_cmp_lt_u32 s2,54\ns_cbranch_scc0 L_noitem")
    S(f"s_lshl_b32 s84,s2,2\ns_add_u32 s84,s84,s{sWv}\ns_mov_b32 s62,256\n" + u_item("P", False) + "\ns_waitcnt vmcnt(0)\nL_noitem:")
    pstamp()
    S(f"s_and_b32 s84,s{sWv},1\ns_lshl_b32 s85,s84,6\ns_lshl_b32 s84,s84,2\ns_mov_b64 exec,1")
    em.put(Op("buffer_atomic_add v66,off,s[60:63],s85 sc0 sc1", "vld", [("v", 66)], [("v", 66)], cost=0))
    S("s_mov_b64 exec,-1")
S(f"s_mov_b32 s{sX},s4"); S(f"s_and_b32 s{sX + 1},s5,0xffff"); S(f"s_mov_b32 s{sX + 2},{XB}"); S(f"s_mov_b32 s{sX + 3},0x20000")
S(f"s_sub_u32 s{sXL},s4,384"); S(f"s_subb_u32 s{sXL + 1},s{sX + 1},0")
S("s_cmp_eq_u32 s56,0"); S(f"s_cselect_b32 s{sXL + 2},0,{XB + 384}"); S(f"s_mov_b32 s{sXL + 3},0x20000")
S(f"s_mov_b32 s{sXR},s4"); S(f"s_mov_b32 s{sXR + 1},s{sX + 1}")
S("s_cmp_eq_u32 s56,508"); S(f"s_cselect_b32 s{sXR + 2},0,{XB}"); S(f"s_mov_b32 s{sXR + 3},0x20000")
for op in halo_addr(0):
    em.put(op)
nb0 = [i for i, op in enumerate(pro_loads) if op.wtag.get(("v", PB[0] + 8)) or op.wtag.get(("v", PB[1] + 8))][CFG["aw"] - 1] + 1
for i, op in enumerate(pro_loads[:NPRO0]):
    em.put(op)
    if i + 1 == nb0 and CFG["fuse"]:
        S("s_mov_b64 exec,1")
        VV("v_cmp_eq_u32 vcc,107,v66", [66], [])
        VV("v_mov_b32 v65,1", [], [65])
        S("s_nop 2\ns_and_b64 exec,exec,vcc\ns_cselect_b32 s62,s62,0\ns_mov_b64 exec,1")
        em.put(Op("buffer_store_dword v65,off,s[60:63],s84 offset:128 sc1", "vst", [("v", 65)], [], cost=0))
        S("s_mov_b64 exec,-1")
        pstamp()
if CFG["ctouch"]:
    S("s_getpc_b64 s[58:59]")
    S(f"s_lshr_b32 s84,s2,3\ns_lshl_b32 s84,s84,2\ns_add_u32 s84,s84,s{sWv}\ns_lshl_b32 s84,s84,10")
    VV(f"v_and_b32 v65,7,v{ln}", [ln], [65])
    VV(f"v_lshl_add_u32 v65,v65,7,s84", [65], [65])
    VV(f"v_min_u32 v65,L_code_end-L_go-4096,v65", [65], [65])
    em.put(Op("global_load_dword v67,v65,s[58:59]", "vld", [("v", 65)], [("v", 67)]))
if not CFG["fuse"]:
    for op in pro_U:
        em.put(op)
S(f"s_and_b32 s{sO + 1},s{sO + 1},0xffff"); S(f"s_mov_b32 s{sO + 2},{XB}"); S(f"s_mov_b32 s{sO + 3},0x20000")
S(f"s_mov_b32 s{sM5},{fbits(-5.0):#x}"); S(f"s_mov_b32 s{s8},{fbits(8.0):#x}"); S(f"s_mov_b32 s{sMask},0xffff0000")
S(f"s_mov_b32 s{sM125},{fbits(-1.25):#x}"); S(f"s_mov_b32 s{s025},{fbits(0.25):#x}")
S("s_mul_i32 s58,s55,384", [55], [58])
S("s_add_u32 s58,s57,s58", [57, 58], [58])
S(f"s_lshr_b32 s59,s{sWv},1", [sWv], [59])
S(f"s_mul_i32 s{sStA},s59,384", [59], [sStA])
S(f"s_mul_i32 s{sStY},s59,{ROWB}", [59], [sStY])
S(f"s_add_u32 s{sStA},s{sStA},s58", [58, sStA], [sStA])
S(f"s_add_u32 s{sStY},s{sStY},s58", [58, sStY], [sStY])
S(f"s_lshl_b32 s59,s{sWv},6", [sWv], [59])
VV(f"v_lshlrev_b32 v{vW},8,v{t1}", [t1], [vW])
VV(f"v_and_b32 v{t3},1,v{t0}", [t0], [t3])
VV(f"v_xor_b32 v{t3},1,v{t3}", [t3], [t3])
VV(f"v_lshlrev_b32 v{t3},2,v{t3}", [t3], [t3])
VV(f"v_xor_b32 v{t3},v{t3},v{t2}", [t3, t2], [t3])
VV(f"v_lshl_add_u32 v{vW},v{t3},3,v{vW}", [t3, vW], [vW])
VV(f"v_add_u32 v{vW},s59,v{vW}", [vW], [vW], [59])
VV(f"v_add_u32 v{vW},256,v{vW}", [vW], [vW])
VV(f"v_lshrrev_b32 v{t0},5,v{ln}", [ln], [t0])
VV(f"v_mul_u32_u24 v{vHW},{33 * 256},v{t0}", [t0], [vHW])
VV(f"v_lshlrev_b32 v{t0},5,v{t0}", [t0], [t0])
VV(f"v_bfe_u32 v{t1},v{vU},3,6", [vU], [t1])
VV(f"v_xor_b32 v{t1},v{t1},v{t0}", [t0, t1], [t1])
VV(f"v_add3_u32 v{vHW},v{vHW},v{t1},s59", [vHW, t1], [vHW], [59])
VV(f"v_bfe_u32 v{t0},v{ln},2,2", [ln], [t0])
VV(f"v_and_b32 v{t1},3,v{ln}", [ln], [t1])
VV(f"v_lshrrev_b32 v{t2},4,v{ln}", [ln], [t2])
VV(f"v_lshlrev_b32 v{vRA},11,v{t0}", [t0], [vRA])
VV(f"v_lshl_add_u32 v{vRA},v{t1},6,v{vRA}", [t1, vRA], [vRA])
VV(f"v_and_b32 v{t3},1,v{t0}", [t0], [t3])
VV(f"v_lshlrev_b32 v{t3},1,v{t3}", [t3], [t3])
VV(f"v_xor_b32 v{t3},v{t3},v{t2}", [t3, t2], [t3])
VV(f"v_lshl_add_u32 v{vRA},v{t3},4,v{vRA}", [t3, vRA], [vRA])
VV(f"v_xor_b32 v{vRB},32,v{vRA}", [vRA], [vRB])
VV(f"v_lshrrev_b32 v{t0},1,v{t2}", [t2], [t0])
VV(f"v_lshl_add_u32 v{t0},s{sWv},1,v{t0}", [t0], [t0], [sWv])
VV(f"v_and_b32 v{t1},7,v{ln}", [ln], [t1])
VV(f"v_xor_b32 v{t0},v{t0},v{t1}", [t0, t1], [t0])
VV(f"v_and_b32 v{t3},15,v{ln}", [ln], [t3])
VV(f"v_lshlrev_b32 v{vXw},7,v{t3}", [t3], [vXw])
VV(f"v_lshl_add_u32 v{vXw},v{t0},4,v{vXw}", [t0, vXw], [vXw])
VV(f"v_and_b32 v{t3},1,v{t2}", [t2], [t3])
VV(f"v_lshl_add_u32 v{vXw},v{t3},3,v{vXw}", [t3, vXw], [vXw])
VV(f"v_bfe_u32 v{t0},v{vU},7,4", [vU], [t0])
VV(f"v_lshrrev_b32 v{t2},2,v{t0}", [t0], [t2])
VV(f"v_mul_u32_u24 v{vSt},{8 * ROWB},v{t2}", [t2], [vSt])
VV(f"v_and_b32 v{t2},3,v{t0}", [t0], [t2])
VV(f"v_mul_u32_u24 v{t2},1536,v{t2}", [t2], [t2])
VV(f"v_and_b32 v{t0},7,v{t0}", [t0], [t0])
VV(f"v_xor_b32 v{t0},v{t0},v{t1}", [t0, t1], [t0])
VV(f"v_lshl_add_u32 v{t0},v{t0},4,v{t2}", [t0, t2], [t0])
VV(f"v_add_u32 v{vSt},v{vSt},v{t0}", [t0, vSt], [vSt])
stamp()
rest = pro_loads[NPRO0:]


def poll_and_rest():
    if CFG["fuse"]:
        VV(f"v_and_b32 v65,1,v{ln}", [ln], [65])
        VV("v_lshlrev_b32 v65,2,v65", [65], [65])
        pstamp()
        S("s_mov_b32 s84,0\nL_poll:\nglobal_load_dword v66,v65,s[52:53] offset:128 sc1\ns_add_u32 s84,s84,1\ns_waitcnt vmcnt(0)")
        S("v_cmp_eq_u32 vcc,0,v66\ns_cmp_gt_u32 s84,0x4000\ns_cbranch_scc1 L_fallback\ns_cbranch_vccnz L_poll\nL_uready:")
        em.vm_done = len(em.vm)
        stamp()
        for op in pro_U:
            em.put(op)
    for op in rest:
        em.put(op)


for j in range(4):
    for k, op in enumerate(main_compute(0, 0, j, PB[j])):
        em.put(op)
        if j == 0 and k == 17:
            stamp()
    for op in main_writes(0, 0, j, PB[j], -BIG, -BIG)[0]:
        em.put(op)
    if j == CFG["pollj"]:
        poll_and_rest()
for op in halo_compute(0, 0, PH, -BIG, -BIG)[0]:
    em.put(op)
if CFG["pollj"] == 4:
    poll_and_rest()
stamp()
em.put(Op("s_barrier", "bar"))
for op in pro_V:
    em.put(op)
stamp()
nfree = 0
stamp_gaps = set(P * NP + 288 * k - 1 for P in range(NPASS) for k in range(1, 10))
probe = set()
if CFG["dbg"] == 3:
    stamp_gaps = set()
    probe = set(id(ld_ops[k]) for k in [(0, 2, 1), (0, 2, 3), (0, 3, 1), (0, 3, 3), (0, 4, 2), (1, 0, 3), (1, 2, 2), (1, 3, 2), (1, 4, 1)])
for g in range(NM):
    em.put(mf[g])
    if g in stamp_gaps and g < NM - 1:
        stamp()
    cur = gaps[g]
    body = cur["sc"] + cur["mem"] + cur["valu"]
    if g < NM - 1:
        w = em.wait_for(body + [mf[g + 1]])
        if w and cur["sc"] and cur["sc"][0].kind != "bar":
            nfree += 1
    for op in body:
        em.put(op)
        if id(op) in probe:
            S("s_waitcnt lgkmcnt(0)")
            stamp()
            S("s_waitcnt vmcnt(0) lgkmcnt(0)")
            stamp()
            S("s_waitcnt lgkmcnt(0)")
if CFG["dbg"]:
    stamp()
    S("s_waitcnt vmcnt(0) lgkmcnt(0)")
    stamp()
    S("s_memrealtime s[94:95]")
    S("s_waitcnt lgkmcnt(0)")
    S(f"v_writelane_b32 v{vDBG},s98,{nst[0] - 1}")
    S(f"s_sub_u32 s94,s94,s96\nv_writelane_b32 v{vDBG},s94,{nst[0]}\nv_writelane_b32 v{vDBG},s96,{nst[0] + 1}")
    S(f"s_getreg_b32 s95,hwreg(HW_REG_XCC_ID)\nv_writelane_b32 v{vDBG},s95,{nst[0] + 2}")
    S(f"s_mov_b32 s{sUs + 2},0x1000000")
    S(f"s_lshl_b32 s54,s2,2\ns_add_u32 s54,s54,s{sWv}\ns_lshl_b32 s54,s54,7\ns_add_u32 s54,s54,0x400000")
    S(f"v_bfe_u32 v1,v{vU},4,6\nv_lshlrev_b32 v1,2,v1\ns_mov_b64 exec,0xffffffff\ns_mov_b32 exec_hi,0")
    S(f"buffer_store_dword v{vDBG},v1,s[{sUs}:{sUs + 3}],s54 offen")
    if CFG["dbg"] == 2:
        S("s_load_dwordx2 s[4:5],s[0:1],24\ns_waitcnt lgkmcnt(0)")
        S(f"s_lshl_b32 s54,s2,2\ns_add_u32 s54,s54,s{sWv}\ns_cmp_eq_u32 s54,400\ns_cbranch_scc0 L_nodbg")
        S(f"v_mov_b32 v2,v{vDBG}\ns_nop 1\nv_sub_u32_dpp v2,v{vDBG},v{vDBG} row_shl:1 row_mask:0xf bank_mask:0xf\ns_nop 1\nv_writelane_b32 v2,s94,15\ns_mov_b64 exec,0xffff")
        S("global_store_dword v1,v2,s[4:5]")
        S("L_nodbg:")
    print("; stamps", nst[0], file=sys.stderr)
print(f"; waits {em.nwait} nops {em.nnop} wait+scalar clashes {nfree} instrs {len(em.out)}", file=sys.stderr)
main_lines = em.lines()

U = []
A = U.append
A("s_cmp_ge_u32 s2,216\ns_cbranch_scc1 L_uend")
A("s_load_dwordx2 s[4:5],s[0:1],8\ns_load_dwordx2 s[6:7],s[0:1],32")
A("s_mul_hi_u32 s20,s2,0x55555556\ns_mul_i32 s21,s20,3\ns_sub_u32 s21,s2,s21")
A("s_mul_hi_u32 s22,s20,0x55555556\ns_mul_i32 s23,s22,3\ns_sub_u32 s23,s20,s23")
A("s_mul_hi_u32 s24,s22,0x2aaaaaab\ns_mul_i32 s25,s24,6\ns_sub_u32 s25,s22,s25")
A("v_and_b32 v1,15,v0\nv_lshrrev_b32 v2,4,v0")
A("s_lshl_b32 s26,s23,6\ns_lshl_b32 s27,s24,4\ns_add_u32 s26,s26,s27\nv_add_u32 v3,s26,v1\nv_lshlrev_b32 v3,1,v3")
A("v_mul_u32_u24 v4,3072,v2\nv_add_u32 v3,v3,v4")
A("s_mul_i32 s26,s21,221184\ns_mul_i32 s27,s25,12288\ns_add_u32 s26,s26,s27\ns_add_u32 s27,s26,73728\ns_add_u32 s28,s27,73728")
A("s_waitcnt lgkmcnt(0)")
A("s_mov_b32 s8,s4\ns_and_b32 s9,s5,0xffff\ns_mov_b32 s10,663552\ns_mov_b32 s11,0x20000")
A(f"s_mov_b32 s12,s6\ns_and_b32 s13,s7,0xffff\ns_mov_b32 s14,{4 * UWAVE}\ns_mov_b32 s15,0x20000")
for s in range(3):
    for e in range(8):
        A(f"buffer_load_short_d16_hi v{8 + s * 8 + e},v3,s[8:11],s{26 + s} offen offset:{e * 384}")
A(f"s_mul_i32 s30,s24,{UWAVE}\ns_mul_i32 s31,s25,{18 * 3072}\ns_add_u32 s30,s30,s31\ns_mul_i32 s31,s23,3072\ns_add_u32 s30,s30,s31\n"
  "s_lshl_b32 s31,s21,10\ns_add_u32 s30,s30,s31")
A("v_lshlrev_b32 v5,4,v0")
A(f"s_mov_b32 s33,{fbits(-1 / 6):#x}\ns_mov_b32 s34,{fbits(1 / 24):#x}\ns_mov_b32 s35,{fbits(1 / 6):#x}\ns_mov_b32 s36,{fbits(1 / 12):#x}")
A("s_waitcnt vmcnt(0)")
for e in range(8):
    g0, g1, g2 = 8 + e, 16 + e, 24 + e
    A(f"v_add_f32 v6,v{g0},v{g2}\nv_add_f32 v{32 + e},v6,v{g1}\nv_sub_f32 v{40 + e},v6,v{g1}")
    A(f"v_mul_f32 v{32 + e},s33,v{32 + e}\nv_mul_f32 v{40 + e},s33,v{40 + e}")
    A(f"v_mul_f32 v6,s34,v{g0}\nv_fmac_f32 v6,s35,v{g2}\nv_fma_f32 v{48 + e},s36,v{g1},v6\nv_fma_f32 v{56 + e},-s36,v{g1},v6")
for p, src in ((0, 8), (1, 32), (2, 40), (3, 48), (4, 56), (5, 24)):
    for e in range(4):
        A(f"v_cvt_pk_bf16_f32 v{64 + 4 * p + e},v{src + 2 * e},v{src + 2 * e + 1}")
    A(f"s_add_u32 s31,s30,{p * 9216}")
    A(f"buffer_store_dwordx4 v[{64 + 4 * p}:{67 + 4 * p}],v5,s[12:15],s31 offen")
A("L_uend:\ns_endpgm")

KD = """.amdhsa_kernel {n}
  .amdhsa_next_free_vgpr {v}
  .amdhsa_next_free_sgpr {s}
  .amdhsa_accum_offset {a}
  .amdhsa_group_segment_fixed_size 0
  .amdhsa_kernarg_size 40
  .amdhsa_user_sgpr_count 2
  .amdhsa_user_sgpr_kernarg_segment_ptr 1
  .amdhsa_system_sgpr_workgroup_id_x 1
  .amdhsa_float_denorm_mode_32 3
.end_amdhsa_kernel"""
out = []
if CFG["fuse"]:
    out.append(f"; @launch grid=(256,1,1) block=(256,1,1) lds={18 * UNIT}")
else:
    out.append("; @launch kernel=wtrans_kernel grid=(216,1,1) block=(64,1,1) lds=0")
    out.append(f"; @launch kernel=standalone__winograd__vision_kernel grid=(256,1,1) block=(256,1,1) lds={18 * UNIT}")
out.append('.amdgcn_target "amdgcn-amd-amdhsa--gfx950"')
out.append(".macro M d,a,b,c\nv_mfma_f32_16x16x32_bf16 \\d,\\a,\\b,\\c\n.endm")
out.append(".text")
if not CFG["fuse"]:
    out.append(".globl wtrans_kernel\n.p2align 8\n.type wtrans_kernel,@function\nwtrans_kernel:")
    out += U
out.append(".globl standalone__winograd__vision_kernel\n.p2align 8\n.type standalone__winograd__vision_kernel,@function")
out.append("standalone__winograd__vision_kernel:")
out += main_lines
out.append("s_endpgm\nL_code_end:")
out.append('.section .rodata,"a"\n.p2align 6')
if not CFG["fuse"]:
    out.append(KD.format(n="wtrans_kernel", v=96, s=48, a=96))
    out.append(".p2align 6")
out.append(KD.format(n="standalone__winograd__vision_kernel", v=512, s=102 if CFG["dbg"] else 94, a=256))
print("\n".join(out))
```

```python
import sys
import struct
from sched import Op, R, schedule, Emitter, BIG

CFG = dict(D=12, E=8, LATG=30, st_gap=25.0, st0=1590, vlead=7, dbg=0, stf=" nt", nost=0, touch=0, ctouch=1, ptouch=0,
           ldsp=0, prom=1, tlag=0, par=0, fuse=1, aw=1, usc=1, pollj=4, ntall=0, same=0, ntodd=0, hnt=0)
for a in sys.argv[1:]:
    k, v = a.split("=")
    CFG[k] = type(CFG[k])(v)

XB = 100663296
ROWB = 196608
UNIT = 8704
NP = 2592
NPASS = 2
UWAVE = 324 * 1024
fbits = lambda x: struct.unpack("<I", struct.pack("<f", x))[0]

if CFG["dbg"]:
    CFG["D"] = min(CFG["D"], 11)
D, E = CFG["D"], CFG["E"]
BUF = [192, 204]
UV0 = 216
AV0, AU0 = 192, 192 + 4 * E
NUA = (256 - AU0) // 4
NUV = D - NUA
TMP = UV0 + 4 * NUV
HAL = TMP + 7
vRaw, vHalo, vW, vHW, vRA, vRB, vU, vSt, vXw, vT, vJ = range(HAL + 6, HAL + 17)
assert vJ <= 255, vJ
sX, sXL, sXR, sUs, sO = 8, 12, 16, 20, 24
sRaw, sHalo, sRawB, sCol = 28, 29, 30, 31
sStA, sStY, sSt, sTo = 32, 33, 34, 35
sM5, s8, sMask, sM125, sUW, s025 = 40, 41, 42, 43, 44, 45
sU = 46
sY0, sWv = 49, 50
sRawC, sColC, sUC = 64, 70, 76
STB = 82


def acc(p, kb, y):
    o = (kb * 8 + y) * 4
    return {1: ("a", o), 2: ("a", 96 + o), 3: ("v", o), 4: ("v", 96 + o), 0: ("v", o), 5: ("v", 96 + o)}[p]


def uslot(n):
    s = n % D
    return ("a", AU0 + 4 * s) if s < NUA else ("v", UV0 + 4 * (s - NUA))


def vslot(n):
    return ("a", AV0 + 4 * (n % E))


rr = lambda f, a, n: f"{f}[{a}:{a + n - 1}]" if n > 1 else f"{f}{a}"


def LK(u, tag):
    return [((u, 0), tag), ((u, 1), tag)]


def X45(P):
    return (6, 7) if P % 2 == 0 else (0, 1)


def unit_of(P, c, p):
    x45 = X45(P)
    if p in (0, 5):
        i = 0 if p == 0 else 1
        if c == 0:
            return X45(P + 1)[i]
        if c == 5:
            return 8 + i
        return 10 + 2 * (c - 1) + i
    if c % 2 == 0:
        return 2 + (p - 1)
    if c < 5:
        return (x45[0], x45[1], 8, 9)[p - 1]
    return (x45[0], x45[1], 2, 3)[p - 1]


def nxt(P, c):
    return (P, c + 1) if c < 5 else ((P + 1, 0) if P + 1 < NPASS else None)


groups = []
for P in range(NPASS):
    for c in range(5):
        for p in (1, 2, 3, 4):
            groups.append((P, c, p, (0, 1, 2)))
    for p in (1, 2, 3, 4):
        groups.append((P, 5, p, (0,)))
    for p in (1, 2, 3, 4):
        groups.append((P, 5, p, (1, 2)))
    for kb in range(3):
        for p in (0, 5):
            for c in range(6):
                groups.append((P, c, p, (kb,)))

mf = []
ufr = []
vfr = []
cnt = {}
last_w = {}
first_w = {}
for (P, c, p, kbs) in groups:
    v0 = len(vfr)
    for rho in range(10):
        vfr.append(dict(P=P, c=c, p=p, rho=rho, first=None, last=None))
    for r in range(3):
        for kb in kbs:
            un = len(ufr)
            ufr.append(dict(P=P, c=c, p=p, kb=kb, r=r, first=len(mf), last=len(mf) + 7))
            for y in range(8):
                i = len(mf)
                vn = v0 + y + r
                if vfr[vn]["first"] is None:
                    vfr[vn]["first"] = i
                vfr[vn]["last"] = i
                f, a = acc(p, kb, y)
                uf, ua = uslot(un)
                vf, va = vslot(vn)
                key = (P, p, kb, y)
                n = cnt.get(key, 0)
                cnt[key] = n + 1
                init = n == 0 and p in (1, 2, 3, 4)
                csrc = "0" if init else rr(f, a, 4)
                rd = R(uf, ua, 4) + R(vf, va, 4) + ([] if init else R(f, a, 4))
                rtag = {x: ("U", un) for x in R(uf, ua, 4)}
                rtag.update({x: ("V", vn) for x in R(vf, va, 4)})
                if not init:
                    rtag.update({x: ("M", P, p, kb, y, n) for x in R(f, a, 4)})
                mf.append(Op(f"M {rr(f, a, 4)},{rr(uf, ua, 4)},{rr(vf, va, 4)},{csrc}", "mfma", rd, R(f, a, 4),
                             rtag=rtag, wtag={x: ("M", P, p, kb, y, n + 1) for x in R(f, a, 4)}))
                last_w[key] = i
                first_w.setdefault(key, i)
NM = len(mf)
assert NM == NP * NPASS


def Bgap(P, c):
    if c < 0:
        return Bgap(P - 1, 6) if P > 0 else -1
    if c <= 4:
        return P * NP + 288 * c + 278
    if c == 5:
        return P * NP + 1728 - 6
    return P * NP + NP - 10


def Bmid(P):
    return P * NP + 288 * 4 + 129


fixed = {}
for P in range(NPASS):
    lst = [Bgap(P, c) for c in range(6)] + [Bmid(P)]
    if P + 1 < NPASS:
        lst.append(Bgap(P, 6))
    for g in lst:
        fixed[g] = [Op("s_barrier", "bar")]

S_U = []
pro_U = []
cur_su = {}
for n, u in enumerate(ufr):
    off = (u["p"] * 3 + u["kb"]) * 3072
    rel = ufr[n - D]["last"] if n >= D else -BIG
    dst = pro_U if n < D else S_U
    kb = u["kb"]
    if cur_su.get(kb) != (u["c"], off):
        cur_su[kb] = (u["c"], off)
        dst.append(Op(f"s_add_u32 s{sU + kb},s{sUC + u['c']},{off}", "salu", [("s", sUC + u["c"])], [("s", sU + kb)], release=rel - 6,
                      target=rel - 6, deadline=rel + 4))
    f, a = uslot(n)
    dst.append(Op(f"buffer_load_dwordx4 {rr(f, a, 4)},v{vU},s[{sUs}:{sUs + 3}],s{sU + kb} offen offset:{u['r'] * 1024}{' sc1' if CFG['usc'] else ''}", "vld",
                  [("v", vU), ("s", sU + kb)], R(f, a, 4), release=rel, target=rel - 100, deadline=rel + 6,
                  wtag={x: ("U", n) for x in R(f, a, 4)}))

S_V = []
pro_V = []
v_ops = []
vbase = 0
offs = [unit_of(v["P"], v["c"], v["p"]) * UNIT + v["rho"] * 256 for v in vfr]
for n, v in enumerate(vfr):
    rel = vfr[n - E]["last"] if n >= E else -BIG
    rel = max(rel, Bgap(v["P"], v["c"] - 1))
    dst = pro_V if n < E else S_V
    dl = v["first"] - 5
    if v["p"] in (0, 5):
        if v["P"] + 1 < NPASS:
            dl = min(dl, Bgap(v["P"], 6) - 1)
    elif v["c"] == 4 and v["p"] <= 2:
        dl = min(dl, Bmid(v["P"]) - 1)
    else:
        dl = min(dl, Bgap(v["P"], v["c"]) - 1)
    assert dl >= rel or n < E, (v, dl, rel)
    tg = max(rel, v["first"] - CFG["vlead"])
    if not (0 <= offs[n] - vbase <= 65535):
        lo = hi = offs[n]
        m = n
        while m < len(offs) and max(hi, offs[m]) - min(lo, offs[m]) <= 65535:
            lo, hi = min(lo, offs[m]), max(hi, offs[m])
            m += 1
        d = (lo - vbase) & 0xFFFFFFFF
        vbase = lo
        for reg in (vRA, vRB):
            dst.append(Op(f"v_add_u32 v{reg},{d:#x},v{reg}", "valu", [("v", reg)], [("v", reg)], release=rel - 3,
                          target=tg - 3, deadline=dl - 2))
    reg = vRA if v["rho"] in (0, 9) else vRB
    f, a = vslot(n)
    u = unit_of(v["P"], v["c"], v["p"])
    dst.append(Op(f"ds_read_b128 {rr(f, a, 4)},v{reg} offset:{offs[n] - vbase}", "dsr", [("v", reg)], R(f, a, 4),
                  release=rel, target=tg, deadline=dl, wtag={x: ("V", n) for x in R(f, a, 4)},
                  lds_r=LK(u, (v["P"], v["c"], v["p"]))))
    v_ops.append((dst[-1], v))


def tv(i):
    return TMP + i


def xform(t, spare):
    L = []
    t0, t1, t2, t3, t4, t5 = t
    a = spare
    L.append((f"v_fmac_f32 v{t0},s{sM125},v{t2}", [t0, t2], [t0]))
    L.append((f"v_fmac_f32 v{t5},4.0,v{t1}", [t5, t1], [t5]))
    L.append((f"v_fma_f32 v{a},-4.0,v{t2},v{t4}", [t2, t4], [a]))
    L.append((f"v_fmac_f32 v{t0},s{s025},v{t4}", [t0, t4], [t0]))
    L.append((f"v_fmac_f32 v{t5},s{sM5},v{t3}", [t5, t3], [t5]))
    L.append((f"v_sub_f32 v{t4},v{t4},v{t2}", [t4, t2], [t4]))
    L.append((f"v_fma_f32 v{t2},-4.0,v{t1},v{t3}", [t1, t3], [t2]))
    L.append((f"v_sub_f32 v{t3},v{t3},v{t1}", [t3, t1], [t3]))
    L.append((f"v_add_f32 v{t1},v{a},v{t2}", [a, t2], [t1]))
    L.append((f"v_sub_f32 v{a},v{a},v{t2}", [a, t2], [a]))
    L.append((f"v_fma_f32 v{t2},2.0,v{t3},v{t4}", [t3, t4], [t2]))
    L.append((f"v_fmac_f32 v{t4},-2.0,v{t3}", [t3, t4], [t4]))
    return L, [t0, t1, a, t2, t4, t5], t3


def V(text, rd, wr, **kw):
    return Op(text, "valu", [("v", x) for x in rd], [("v", x) for x in wr], **kw)


def touches(P, c, j, px, prom):
    ops = [Op(f"s_add_u32 s{sTo},s{sRawC + c},{(32 * P + 2 * j) * ROWB}", "salu", [("s", sRawC + c)], [("s", sTo)])]
    for fl in (" nt", "")[:1 + prom]:
        ops.append(Op(f"buffer_load_dword v{vJ},v{vT},s[{sX}:{sX + 3}],s{sTo} offen offset:{(px - 1) * 384}{fl}",
                      "vld", [("v", vT), ("s", sTo)], [("v", vJ)], name="touch"))
    return ops


def main_loads(P, c, j, buf, first=False):
    ops = []
    dep = []
    pm = CFG["same"] >= 2 and c % 2 == 0
    if CFG["same"] < 2 and ((first and CFG["ptouch"]) or (not first and CFG["same"] and c % 2 == 0)):
        ops += touches(P, c, j, 1, 0) + touches(P, c, j, 2, 0)[1:]
    ops.append(Op(f"s_add_u32 s{sRaw},s{sRawC + c},{(32 * P + 2 * j) * ROWB}", "salu", [("s", sRawC + c)], [("s", sRaw)]))
    for jj in ((1, 2, 3, 4, 0, 5) if pm else (0, 5, 1, 2, 3, 4)):
        srd, imm = (sXL, 0) if jj == 0 else (sXR, 4 * 384) if jj == 5 else (sX, (jj - 1) * 384)
        nt = CFG["ntall"] or (pm and 1 <= jj <= 4) or (CFG["ntodd"] and c % 2 == 1)
        o = Op(f"buffer_load_dwordx2 v[{buf + 2 * jj}:{buf + 2 * jj + 1}],v{vRaw},s[{srd}:{srd + 3}],s{sRaw} offen offset:{imm}{' nt' if nt else ''}",
               "vld", [("v", vRaw), ("s", sRaw)], R("v", buf + 2 * jj, 2),
               wtag={x: ("raw", P, c, j, jj) for x in R("v", buf + 2 * jj, 2)})
        ops.append(o)
        dep.append((o, jj))
        if pm and jj == (3 if CFG["same"] == 2 else 4):
            for px in ((2,) if CFG["same"] == 2 else (1, 3)):
                ops.append(Op(f"buffer_load_dword v{vJ},v{vT},s[{sX}:{sX + 3}],s{sRaw} offen offset:{(px - 1) * 384}",
                              "vld", [("v", vT), ("s", sRaw)], [("v", vJ)]))
    return ops, dep


def after_touches(P, c, j):
    if not CFG["touch"]:
        return []
    ops = []
    n = nxt(P, c)
    if c % 2 == 1 and n:
        ops += touches(n[0], n[1], j, 1, 1)
    nb = (P, c, j + 1) if j < 3 else (n + (0,) if n else None)
    if nb and nb[1] % 2 == 0 and nb[:2] != (0, 0):
        ops += touches(nb[0], nb[1], nb[2], 2, CFG["prom"])
    return ops


def main_compute(P, c, j, buf):
    ops = []
    for i in range(2):
        lo = [tv(k) for k in range(6)]
        hi = [buf + 2 * k + i for k in range(6)]
        for jj in (2, 0, 1, 5, 4, 3):
            ops.append(V(f"v_lshlrev_b32 v{lo[jj]},16,v{hi[jj]}", [hi[jj]], [lo[jj]], rtag={("v", hi[jj]): ("raw", P, c, j, jj)}))
        L, vlo, freed = xform(lo, tv(6))
        ops += [V(t, a, b) for t, a, b in L]
        for jj in (2, 0, 1, 5, 4, 3):
            ops.append(V(f"v_and_b32 v{hi[jj]},s{sMask},v{hi[jj]}", [hi[jj]], [hi[jj]], rtag={("v", hi[jj]): ("raw", P, c, j, jj)}))
        L, vhi, _ = xform(hi, freed)
        ops += [V(t, a, b) for t, a, b in L]
        for p in (0, 5, 1, 3, 2, 4):
            ops.append(V(f"v_cvt_pk_bf16_f32 v{hi[p]},v{vlo[p]},v{vhi[p]}", [vlo[p], vhi[p]], [hi[p]],
                         wtag={("v", hi[p]): ("Vp", P, c, j, p)}))
    return ops


def main_writes(P, c, j, buf, rel, rel_late):
    ops = []
    wr = {}
    nc = c if j < 2 else c + 1
    for pa, pb in (((1, 2), (3, 4), (0, 5)) if CFG["same"] >= 2 and nc % 2 == 0 and c != 5 else ((0, 5), (1, 2), (3, 4))):
        ua, ub = unit_of(P, c, pa), unit_of(P, c, pb)
        base, sh = vW, 0
        r = rel_late if pa == 3 else rel
        if max(ua, ub) * 17 + j > 255:
            sh = min(ua, ub)
            base = tv(0)
            ops.append(V(f"v_add_u32 v{base},{sh * UNIT},v{vW}", [vW], [base]))
        o = Op(f"ds_write2st64_b64 v{base},v[{buf + 2 * pa}:{buf + 2 * pa + 1}],v[{buf + 2 * pb}:{buf + 2 * pb + 1}] "
               f"offset0:{(ua - sh) * 17 + j} offset1:{(ub - sh) * 17 + j}", "dsw",
               [("v", base)] + R("v", buf + 2 * pa, 2) + R("v", buf + 2 * pb, 2), [], cost=5, release=r,
               rtag={**{x: ("Vp", P, c, j, pa) for x in R("v", buf + 2 * pa, 2)},
                     **{x: ("Vp", P, c, j, pb) for x in R("v", buf + 2 * pb, 2)}},
               lds_w=LK(ua, (P, c, pa)) + LK(ub, (P, c, pb)))
        ops.append(o)
        wr[pa] = wr[pb] = o
    return ops, wr


def halo_loads(P, c, regs):
    ops = []
    sHalo = sColC + c
    for jj in range(6):
        srd, imm = (sXL, 0) if jj == 0 else (sXR, 4 * 384) if jj == 5 else (sX, (jj - 1) * 384)
        ops.append(Op(f"buffer_load_short_d16_hi v{regs + jj},v{vHalo},s[{srd}:{srd + 3}],s{sHalo} offen offset:{imm}{' nt' if CFG['hnt'] else ''}",
                      "vld", [("v", vHalo), ("s", sHalo)], [("v", regs + jj)], wtag={("v", regs + jj): ("hraw", P, c, jj)}))
    return ops


def halo_compute(P, c, regs, rel, rel_late):
    ops = []
    L, vr, _ = xform([regs + k for k in range(6)], tv(0))
    seen = set()
    for t, a, b in L:
        rt = {("v", x): ("hraw", P, c, x - regs) for x in a if regs <= x < regs + 6 and x not in seen}
        seen.update(b)
        ops.append(V(t, a, b, rtag=rt))
    pk = {}
    for k, (pa, pb) in enumerate(((0, 5), (1, 2), (3, 4))):
        ops.append(V(f"v_cvt_pk_bf16_f32 v{tv(1 + k)},v{vr[pa]},v{vr[pb]}", [vr[pa], vr[pb]], [tv(1 + k)]))
        pk[pa] = (tv(1 + k), "")
        pk[pb] = (tv(1 + k), "_d16_hi")
    free_raw = ops[-1]
    sh_cur = None
    for p in (0, 5, 1, 2, 3, 4):
        u = unit_of(P, c, p)
        base, off = vHW, u * UNIT
        if off > 65535:
            if sh_cur is None or not (0 <= off - sh_cur <= 65535):
                sh_cur = off
                ops.append(V(f"v_add_u32 v{tv(0)},{off},v{vHW}", [vHW], [tv(0)]))
            base, off = tv(0), off - sh_cur
        ops.append(Op(f"ds_write_b16{pk[p][1]} v{base},v{pk[p][0]} offset:{off}", "dsw", [("v", base), ("v", pk[p][0])], [], cost=2,
                      release=rel_late if p in (3, 4) else rel, lds_w=LK(u, (P, c, p))))
    return ops, free_raw


def halo_addr(P):
    t0, t1 = tv(0), tv(1)
    return [V(f"v_bfe_u32 v{t0},v{vU},9,1", [vU], [t0]),
            V(f"v_mul_u32_u24 v{t0},33,v{t0}", [t0], [t0]),
            Op(f"v_add_u32 v{t0},s{sY0},v{t0}", "valu", [("v", t0), ("s", sY0)], [("v", t0)]),
            V(f"v_add_u32 v{t0},{32 * P - 1},v{t0}", [t0], [t0]),
            V(f"v_mul_u32_u24 v{t1},{ROWB},v{t0}", [t0], [t1]),
            V(f"v_cmp_gt_u32 vcc,512,v{t0}", [t0], []),
            V(f"v_bfe_u32 v{t0},v{vU},3,6", [vU], [t0]),
            V(f"v_add_u32 v{t1},v{t1},v{t0}", [t0, t1], [t1]),
            V(f"v_bfrev_b32 v{t0},1", [], [t0]),
            V(f"v_cndmask_b32 v{vHalo},v{t0},v{t1},vcc", [t0, t1], [vHalo])]


def stage_write(P, key, slot, ra, rb):
    u, h = slot
    off = u * 17 + h * 8
    assert off + 4 <= 255
    return Op(f"ds_write2st64_b64 v{vXw},v[{ra}:{ra + 1}],v[{rb}:{rb + 1}] offset0:{off} offset1:{off + 4}", "dsw",
              [("v", vXw)] + R("v", ra, 2) + R("v", rb, 2), [], cost=5,
              rtag={**{x: ("Y", P, key, 0) for x in R("v", ra, 2)}, **{x: ("Y", P, key, 1) for x in R("v", rb, 2)}},
              lds_w=[(slot, ("X", P, key))])


XT = 0
XTB = 8 * UNIT


def stage_read(P, key, slot):
    kb, kind, y = key
    if kind == "s":
        f, a = acc(1, kb, y)
        nw = (1, kb, y)
        so, imm = f"s{sStA},{(32 * P + y) * ROWB}", 384 + 128 * kb
    else:
        p = 0 if kind == 0 else 5
        if kb == 0:
            yy = y + (0 if kind == 0 else 4)
            f, a = acc(2, kb, yy)
            nw = (2, kb, yy)
        else:
            f, a = acc(p, kb, 2 * y)
            nw = (3 if p == 0 else 4, kb, 2 * y)
        so, imm = f"s{sStY},{(32 * P + 2 * y) * ROWB}", kind * 384 + 128 * kb
    off = slot[0] * UNIT + slot[1] * 4096
    base = vU
    if off > 65535:
        base, off = XT, off - XTB
    rd = Op(f"ds_read_b128 {rr(f, a, 4)},v{base} offset:{off}", "dsr", [("v", base)], R(f, a, 4),
            wtag={x: ("L", P, key) for x in R(f, a, 4)}, lds_r=[(slot, ("X", P, key))],
            rtag={("v", XT): ("XT", P)} if base == XT else None)
    dl = first_w[(P + 1,) + nw] - 2 if P + 1 < NPASS else BIG
    s = Op(f"s_add_u32 s{sSt},{so}", "salu", [], [("s", sSt)])
    if CFG["nost"]:
        st = Op("v_nop", "valu", R(f, a, 4), [], deadline=dl, after=[(rd, 5)])
    else:
        st = Op(f"buffer_store_dwordx4 {rr(f, a, 4)},v{vSt},s[{sO}:{sO + 3}],s{sSt} offen offset:{imm}{CFG['stf']}", "vst",
                R(f, a, 4) + [("v", vSt), ("s", sSt)], [], cost=6, deadline=dl, rtag={x: ("L", P, key) for x in R(f, a, 4)},
                after=[(rd, 5)])
    return rd, [s, st]


def sw_block(P, kb, y, slot):
    ops = []
    rel = last_w[(P, 4, kb, y)] + 3
    a1, a2, m3, m4 = acc(1, kb, y)[1], acc(2, kb, y)[1], acc(3, kb, y)[1], acc(4, kb, y)[1]
    pk = [tv(0), tv(2)]
    key = (kb, "s", y)
    for h in range(2):
        us, t2s = [pk[1] + h, tv(4)], [pk[0] + h, tv(5)]
        t1 = tv(6)
        for e in range(2):
            i = 2 * h + e
            u, t2 = us[e], t2s[e]
            M3, M4 = m3 + i, m4 + i
            dl0 = first_w[(P, 0, kb, y)] - 2
            dl3 = first_w[(P, 5, kb, y)] - 2
            ops.append(Op(f"v_accvgpr_read_b32 v{t1},a{a1 + i}", "valu", [("a", a1 + i)], [("v", t1)], release=rel,
                          rtag={("a", a1 + i): ("M", P, 1, kb, y, 18)}))
            ops.append(Op(f"v_accvgpr_read_b32 v{t2},a{a2 + i}", "valu", [("a", a2 + i)], [("v", t2)],
                          rtag={("a", a2 + i): ("M", P, 2, kb, y, 18)}))
            ops.append(V(f"v_add_f32 v{u},v{t1},v{t2}", [t1, t2], [u]))
            ops.append(V(f"v_sub_f32 v{t1},v{t1},v{t2}", [t1, t2], [t1]))
            ops.append(V(f"v_add_f32 v{t2},v{M3},v{M4}", [M3, M4], [t2],
                         rtag={("v", M3): ("M", P, 3, kb, y, 18), ("v", M4): ("M", P, 4, kb, y, 18)}))
            ops.append(V(f"v_sub_f32 v{M4},v{M3},v{M4}", [M3, M4], [M4]))
            ops.append(V(f"v_add_f32 v{M3},v{u},v{t2}", [u, t2], [M3], wtag={("v", M3): ("M", P, 0, kb, y, 0)}, deadline=dl0))
            ops.append(V(f"v_fmac_f32 v{u},4.0,v{t2}", [u, t2], [u]))
            ops.append(V(f"v_fma_f32 v{t2},2.0,v{M4},v{t1}", [M4, t1], [t2]))
            ops.append(Op(f"v_fma_f32 v{M4},s{s8},v{M4},v{t1}", "valu", [("v", M4), ("v", t1)], [("v", M4)],
                          wtag={("v", M4): ("M", P, 5, kb, y, 0)}, deadline=dl3))
        for m, src in ((1, t2s), (2, us)):
            d = pk[m - 1] + h
            ops.append(V(f"v_cvt_pk_bf16_f32 v{d},v{src[0]},v{src[1]}", src, [d], wtag={("v", d): ("Y", P, key, m - 1)}))
    ops.append(stage_write(P, key, slot, pk[0], pk[1]))
    return ops


def fin_block(P, kb, m, yp, slot):
    ops = []
    p = 0 if m == 0 else 5
    key = (kb, m, yp)
    for k in range(2):
        y = 2 * yp + k
        a = acc(p, kb, y)[1]
        for h in range(2):
            ops.append(V(f"v_cvt_pk_bf16_f32 v{a + h},v{a + 2 * h},v{a + 2 * h + 1}", [a + 2 * h, a + 2 * h + 1], [a + h],
                         release=last_w[(P, p, kb, y)] + 3,
                         rtag={("v", a + 2 * h + 1): ("M", P, p, kb, y, 18)}, wtag={("v", a + h): ("Y", P, key, k)}))
    ops.append(stage_write(P, key, slot, acc(p, kb, 2 * yp)[1], acc(p, kb, 2 * yp + 1)[1]))
    return ops


S_main, S_ld, S_x, S_st = [], [], [], []
pending_bars = []


def flush_bars():
    for pos, lag, b in sorted(pending_bars, key=lambda x: -x[0]):
        while lag > 0 and pos < len(S_main) and S_main[pos].kind == "valu":
            pos += 1
            lag -= 1
        S_main.insert(pos, b)
    pending_bars.clear()


PB = [0, 12, 24, 36]
PH = 48
pro_loads = []
for j in range(4):
    pro_loads += main_loads(0, 0, j, PB[j], first=True)[0]
pro_loads += halo_loads(0, 0, PH)
NPRO0 = len(pro_loads)

prev_wr = {0: None, 1: None}
prev_hfree = None
ld_ops = {}
in_ld = set()


def add_loads(P, c, j):
    b = j % 2
    o, dep = main_loads(P, c, j, BUF[b])
    ld_ops[(P, c, j)] = o[-1]
    pw = prev_wr[b]
    tch = after_touches(P, c, j)
    if pw is None:
        pro_loads.extend(o + tch)
        return
    for op in tch:
        op.target = -BIG
        op.after = [(o[-1], CFG["tlag"])]
    o[0].after = [(pw[dep[0][1]], -1)]
    for op in o:
        if op.name == "touch":
            op.after = [(pw[0], 0)]
    for op, slot in dep:
        op.after = [(pw[slot], 0)]
    prev = None
    for op in o:
        op.target = -BIG
        if op.kind == "vld":
            if prev is not None and CFG["ldsp"] and not (prev.name == "touch" and "nt" in prev.text):
                op.after.append((prev, CFG["ldsp"]))
            prev = op
    S_ld.extend(o + tch)
    in_ld.add(id(o[-1]))


def add_halo_loads(P, c, extra_after=()):
    o = halo_loads(P, c, HAL)
    ld_ops[(P, c, "h")] = o[-1]
    if prev_hfree is None:
        pro_loads.extend(o)
        return
    for op in o:
        op.after = [(prev_hfree, 1)] + list(extra_after)
        op.target = -BIG
    S_ld.extend(o)
    in_ld.add(id(o[-1]))


def add_round(P, c, j, rel, rel_late, dl, compute=True, write=True):
    b = j % 2
    if compute:
        ops = main_compute(P, c, j, BUF[b])
        if id(ld_ops[(P, c, j)]) in in_ld:
            ops[0].after = [(ld_ops[(P, c, j)], CFG["LATG"])]
        S_main.extend(ops)
    if write:
        ops, wr = main_writes(P, c, j, BUF[b], rel, rel_late)
        ops[-1].deadline = dl
        S_main.extend(ops)
        prev_wr[b] = wr


def add_halo(P, c, rel, rel_late, dl):
    global prev_hfree
    ops, fr = halo_compute(P, c, HAL, rel, rel_late)
    if id(ld_ops[(P, c, "h")]) in in_ld:
        ops[0].after = [(ld_ops[(P, c, "h")], CFG["LATG"])]
    ops[-1].deadline = dl
    S_main.extend(ops)
    prev_hfree = fr


reads_prev = []
unread = []
stores = []


def unit(P, key, slot, rel=-BIG):
    ops = sw_block(P, key[0], key[2], slot) if key[1] == "s" else fin_block(P, key[0], key[1], key[2], slot)
    ops[-1].release = max(ops[-1].release, rel)
    S_main.extend(ops)
    unread.append((key, slot, ops[-1]))


def xbar(P, release=-BIG, extra_needs=(), lag=6):
    global reads_prev, unread
    b = Op("s_barrier", "bar", needs=[w for _, _, w in unread] + reads_prev + list(extra_needs), release=release,
           after=[(o, 4) for o in reads_prev + list(extra_needs)] + [(w, 3) for _, _, w in unread])
    pending_bars.append((len(S_main), lag, b))
    reads_prev = []
    for key, slot, _ in unread:
        rd, st = stage_read(P, key, slot)
        rd.after = [(b, 0)]
        rd.target = -BIG
        S_x.append(rd)
        reads_prev.append(rd)
        stores.append(st)
    unread = []
    if lag == 0:
        flush_bars()
    return b


add_loads(0, 1, 0)
add_loads(0, 1, 1)
add_halo_loads(0, 1)
for P in range(NPASS):
    for c in range(1, 6):
        rel = Bgap(P, c - 2)
        rel_late = Bmid(P) if c == 5 else rel
        dl = Bgap(P, c - 1) - 3
        n = nxt(P, c)
        for j in [0, 1, "h", 2, 3]:
            if j == "h":
                add_halo(P, c, rel, rel_late, dl)
                if n:
                    if n[1] == 0:
                        ha = halo_addr(n[0])
                        S_main.extend(ha)
                        add_halo_loads(n[0], n[1], [(ha[-1], 1)])
                    else:
                        add_halo_loads(*n)
            else:
                add_round(P, c, j, rel, rel_late, dl)
                if j < 2:
                    add_loads(P, c, j + 2)
                elif n:
                    add_loads(n[0], n[1], j - 2)
    more = P + 1 < NPASS
    dl = Bgap(P, 6) - 3
    ringA = [(4, 0), (4, 1), (5, 0), (5, 1)]
    ringB = [(u, h) for u in (2, 3) + X45(P) + (4, 5) for h in (0, 1)]
    reads_prev, stores = [], []
    if more:
        add_round(P + 1, 0, 0, None, None, dl, write=False)
    for k in range(4):
        for y in (2 * k, 2 * k + 1):
            unit(P, (0, "s", y), ringA[y % 4])
        xbar(P)
    nb = 0
    for batch in ([(1, "s", y) for y in range(4)], [(0, 0, y) for y in range(4)] + [(1, "s", 4), (1, "s", 5)],
                  [(1, "s", 6), (1, "s", 7)] + [(0, 3, y) for y in range(4)],
                  [(2, "s", y) for y in range(4)], [(1, 0, y) for y in range(4)] + [(2, "s", 4), (2, "s", 5)],
                  [(2, "s", 6), (2, "s", 7)] + [(1, 3, y) for y in range(4)]):
        for k, key in enumerate(batch):
            unit(P, key, ringB[6 * (nb % 2) + k], Bgap(P, 5))
        nb += 1
        xbar(P)
        if nb == 3 and more:
            S_x.append(V(f"v_add_u32 v{XT},{XTB},v{vU}", [vU], [XT], wtag={("v", XT): ("XT", P)}))
    if more:
        p0_reads = [op for op, v in v_ops if v["P"] == P and v["p"] == 0 and v["first"] >= P * NP + NP - 288]
        add_round(P + 1, 0, 1, None, None, dl, write=False)
        xbar(P, lag=0)
        for j in (0, 1):
            add_round(P + 1, 0, j, -BIG, -BIG, dl, compute=False)
            add_loads(P + 1, 0, j + 2)
        add_halo(P + 1, 0, -BIG, -BIG, dl)
        add_halo_loads(P + 1, 1)
        add_round(P + 1, 0, 2, -BIG, -BIG, dl)
        add_loads(P + 1, 1, 0)
        xbar(P, extra_needs=p0_reads[-1:], lag=0)
        for y in range(4):
            unit(P, (2, 0, y), [(8, 0), (8, 1), (10, 0), (10, 1)][y])
        xbar(P)
        for op in reads_prev:
            op.deadline = dl
        add_round(P + 1, 0, 3, -BIG, -BIG, dl)
        add_loads(P + 1, 1, 1)
        for y in range(4):
            unit(P, (2, 3, y), [(12, 0), (12, 1), (14, 0), (14, 1)][y])
        xbar(P)
        for op in reads_prev:
            op.deadline = Bgap(P + 1, 0) - 3
    else:
        flush_bars()
        for y in range(4):
            unit(P, (2, 0, y), ringB[y])
        xbar(P, lag=0)
        for y in range(4):
            unit(P, (2, 3, y), ringB[6 + y])
        xbar(P, lag=0)
    t = P * NP + float(CFG["st0"])
    gap = CFG["st_gap"] if more else (NP - 30 - CFG["st0"]) / 44.0
    for s, st in stores:
        s.release = st.release = int(t) if t < NM - 8 else -BIG
        s.target = st.target = int(t)
        s.after = list(st.after)
        t += gap
        S_st.extend([s, st])
flush_bars()


def propagate(st, rate):
    nd = BIG
    for op in reversed(st):
        if nd < BIG:
            nd -= (op.cost if op.cost else 0.0) / rate + (0.34 if op.mem or op.kind == "bar" else 0)
        op.deadline = min(op.deadline, nd)
        nd = min(nd, op.deadline)
    for op in st:
        if op.deadline < BIG:
            op.deadline = int(op.deadline // 1)


propagate(S_st, 8.0)
for st in (S_st, S_x):
    for s in st:
        for a, d in s.after:
            a.deadline = min(a.deadline, s.deadline - d)
    propagate(S_x, 4.0)
propagate(S_main, 4.0)
for op in S_main:
    if op.target is None:
        op.target = op.deadline + 1000

streams = [S_U, S_V, S_ld, S_x, S_st, S_main]
bud = [2.0] * (NM // 288)
best = None
for it in range(6):
    for st in streams:
        for op in st:
            op.gap = None
    for op in pro_loads + pro_U + pro_V:
        op.gap = -BIG
    gaps, late = schedule(NM, streams, fixed, lambda g: bud[g // 288])
    tot = [0] * (NM // 288)
    und = [0] * (NM // 288)
    for g, cur in enumerate(gaps[:-1]):
        tot[g // 288] += max(2, cur["used"])
        und[g // 288] += max(0, 2 - cur["used"])
    est = sum(8 + 4 * max(2, c["used"]) for c in gaps[:-1])
    print(f"; iter {it}: est {est} cycles, late {len(late)}, tail ops {len(gaps[-1]['valu'])}, phases {[round(t / 288, 2) for t in tot]} "
          f"underfill {und}", file=sys.stderr)
    for w in range(len(bud)):
        bud[w] = max(2.0, 0.5 * bud[w] + 0.5 * (tot[w] - und[w]) / 288)
for op, g in late[:20]:
    print("; late", op.text, op.deadline, g, file=sys.stderr)

em = Emitter()
S = lambda t, rd=(), wr=(): em.raw(t, "salu", [("s", x) for x in rd], [("s", x) for x in wr])
VV = lambda t, rd=(), wr=(), srd=(), swr=(): em.raw(t, "valu", [("v", x) for x in rd] + [("s", x) for x in srd],
                                                    [("v", x) for x in wr] + [("s", x) for x in swr])
nst = [0]
vDBG = vJ + 1
assert vDBG <= 255 or not CFG['dbg']


def stamp():
    if not CFG["dbg"]:
        return
    if nst[0] > 0:
        S(f"v_writelane_b32 v{vDBG},s98,{nst[0] - 1}")
    S("s_memrealtime s[98:99]" if CFG["dbg"] == 4 else "s_memtime s[98:99]")
    nst[0] += 1


def pstamp():
    if CFG["dbg"] == 4:
        S("s_waitcnt lgkmcnt(0)")
        stamp()


def u_item(tag, loop):
    L = [f"L_item{tag}:"]
    A = L.append
    A("s_and_b32 s85,s84,3\ns_lshr_b32 s86,s84,2")
    A("s_mul_hi_u32 s87,s86,0x55555556\ns_mul_i32 s88,s87,3\ns_sub_u32 s86,s86,s88")
    A("s_mul_hi_u32 s88,s87,0x2aaaaaab\ns_mul_i32 s89,s88,6\ns_sub_u32 s87,s87,s89")
    A("s_mul_i32 s89,s86,221184\ns_mul_i32 s90,s87,12288\ns_add_u32 s89,s89,s90\ns_mul_i32 s90,s85,3072\ns_add_u32 s89,s89,s90")
    A("s_lshl_b32 s90,s88,7\ns_add_u32 s89,s89,s90\ns_add_u32 s90,s89,73728\ns_add_u32 s91,s90,73728")
    A(f"v_lshlrev_b32 v149,1,v{ln}")
    for s in range(3):
        for e in range(8):
            A(f"buffer_load_short_d16_hi v{68 + s * 8 + e},v149,s[36:39],s{89 + s} offen offset:{e * 384}")
    A(f"v_lshrrev_b32 v150,4,v{ln}\nv_mul_u32_u24 v150,{UWAVE},v150\nv_and_b32 v148,15,v{ln}\nv_lshl_add_u32 v150,v148,4,v150")
    A(f"s_mul_i32 s87,s87,{18 * 3072}\ns_mul_i32 s88,s88,3072\ns_add_u32 s87,s87,s88\ns_lshl_b32 s86,s86,10\ns_add_u32 s87,s87,s86")
    A("s_lshl_b32 s85,s85,8\ns_add_u32 s87,s87,s85")
    A(f"s_mov_b32 s85,{fbits(-1 / 6):#x}\ns_mov_b32 s86,{fbits(1 / 24):#x}\ns_mov_b32 s88,{fbits(1 / 6):#x}\ns_mov_b32 s92,{fbits(1 / 12):#x}")
    A("s_waitcnt vmcnt(0)")
    for e in range(8):
        g0, g1, g2 = 68 + e, 76 + e, 84 + e
        A(f"v_add_f32 v148,v{g0},v{g2}\nv_add_f32 v{92 + e},v148,v{g1}\nv_sub_f32 v{100 + e},v148,v{g1}")
        A(f"v_mul_f32 v{92 + e},s85,v{92 + e}\nv_mul_f32 v{100 + e},s85,v{100 + e}")
        A(f"v_mul_f32 v148,s86,v{g0}\nv_fmac_f32 v148,s88,v{g2}\nv_fma_f32 v{108 + e},s92,v{g1},v148\nv_fma_f32 v{116 + e},-s92,v{g1},v148")
    for p, src in ((0, 68), (5, 84), (1, 92), (2, 100), (3, 108), (4, 116)):
        for e in range(4):
            A(f"v_cvt_pk_bf16_f32 v{124 + 4 * p + e},v{src + 2 * e},v{src + 2 * e + 1}")
        A(f"s_add_u32 s89,s87,{p * 9216}")
        A(f"buffer_store_dwordx4 v[{124 + 4 * p}:{127 + 4 * p}],v150,s[{sUs}:{sUs + 3}],s89 offen sc1")
    if loop:
        A(f"s_waitcnt vmcnt(0)\ns_add_u32 s84,s84,1\ns_cmp_lt_u32 s84,216\ns_cbranch_scc1 L_item{tag}")
    return "\n".join(L)


t0, t1, t2, t3, ln = 60, 61, 62, 63, 64
S("s_cmp_ge_u32 s2,256")
S("s_cbranch_scc0 L_go\ns_endpgm")
if CFG["fuse"]:
    S("L_fallback:\ns_mov_b32 s84,0\n" + u_item("F", True) + "\ns_branch L_uready")
S("L_go:")
if CFG["dbg"]:
    S("s_memrealtime s[96:97]")
stamp()
S("s_load_dwordx4 s[4:7],s[0:1],0")
S(f"s_load_dwordx4 s[{sO}:{sO + 3}],s[0:1],16")
S("s_load_dwordx2 s[52:53],s[0:1],32")
VV(f"v_lshrrev_b32 v{t0},6,v0", [0], [t0])
VV(f"v_and_b32 v{ln},63,v0", [0], [ln])
VV(f"v_readfirstlane_b32 s{sWv},v{t0}", [t0], [], [], [sWv])
VV(f"v_lshrrev_b32 v{t0},4,v{ln}", [ln], [t0])
VV(f"v_bfe_u32 v{t1},v{ln},3,1", [ln], [t1])
VV(f"v_lshl_add_u32 v{t1},v{t0},3,v{t1}", [t0, t1], [t1])
VV(f"v_and_b32 v{t2},7,v{ln}", [ln], [t2])
VV(f"v_mul_u32_u24 v{vRaw},{ROWB},v{t1}", [t1], [vRaw])
VV(f"v_lshl_add_u32 v{vRaw},v{t2},3,v{vRaw}", [t2, vRaw], [vRaw])
VV(f"v_lshlrev_b32 v{vU},4,v0", [0], [vU])
VV(f"v_bfe_u32 v{t3},v{ln},2,1", [ln], [t3])
VV(f"v_mul_u32_u24 v{t3},{384 if CFG['same'] >= 2 else 768},v{t3}", [t3], [t3])
VV(f"v_mul_u32_u24 v{vT},{ROWB},v{t1}", [t1], [vT])
VV(f"v_add_u32 v{vT},v{vT},v{t3}", [t3, vT], [vT])
S("s_and_b32 s54,s2,7", [2], [54])
S("s_lshr_b32 s55,s2,3", [2], [55])
S(f"s_lshl_b32 s{sY0},s54,6", [54], [sY0])
S("s_lshl_b32 s55,s55,4", [55], [55])
S(f"s_lshl_b32 s56,s{sWv},2", [sWv], [56])
S("s_add_u32 s56,s56,s55", [55, 56], [56])
S(f"s_mul_i32 s{sCol},s56,384", [56], [sCol])
S(f"s_mul_i32 s57,s{sY0},{ROWB}", [sY0], [57])
S(f"s_add_u32 s{sRawB},s57,s{sCol}", [57, sCol], [sRawB])
S(f"s_mul_i32 s{sUW},s{sWv},{UWAVE - 1024}", [sWv], [sUW])
if CFG["par"]:
    S(f"s_bfe_u32 s58,s2,{0x10000 + (0 if CFG['par'] == 1 else 3)}")
else:
    S("s_mov_b32 s58,0")
for c in range(6):
    S(f"s_add_u32 s59,s58,{c}")
    if c == 5:
        S("s_cmp_eq_u32 s59,6\ns_cselect_b32 s59,0,s59")
    S(f"s_mul_i32 s60,s59,{18 * 3072}\ns_lshl_b32 s59,s59,6")
    S(f"s_add_u32 s{sRawC + c},s{sRawB},s59\ns_add_u32 s{sColC + c},s{sCol},s59\ns_add_u32 s{sUC + c},s{sUW},s60")
S("s_waitcnt lgkmcnt(0)")
S(f"s_mov_b32 s{sUs},s52"); S(f"s_and_b32 s{sUs + 1},s53,0xffff"); S(f"s_mov_b32 s{sUs + 2},{4 * UWAVE}"); S(f"s_mov_b32 s{sUs + 3},0x20000")
if CFG["fuse"]:
    S("s_mov_b32 s36,s6\ns_and_b32 s37,s7,0xffff\ns_mov_b32 s38,663552\ns_mov_b32 s39,0x20000")
    S(f"s_mov_b32 s60,s{sO + 2}\ns_and_b32 s61,s{sO + 3},0xffff\ns_mov_b32 s62,0\ns_mov_b32 s63,0x20000")
    S(f"s_mov_b32 s52,s{sO + 2}\ns_mov_b32 s53,s{sO + 3}")
    pstamp()
    S("v_mov_b32 v66,1\ns_cmp_lt_u32 s2,54\ns_cbranch_scc0 L_noitem")
    S(f"s_lshl_b32 s84,s2,2\ns_add_u32 s84,s84,s{sWv}\ns_mov_b32 s62,256\n" + u_item("P", False) + "\ns_waitcnt vmcnt(0)\nL_noitem:")
    pstamp()
    S(f"s_and_b32 s84,s{sWv},1\ns_lshl_b32 s85,s84,6\ns_lshl_b32 s84,s84,2\ns_mov_b64 exec,1")
    em.put(Op("buffer_atomic_add v66,off,s[60:63],s85 sc0 sc1", "vld", [("v", 66)], [("v", 66)], cost=0))
    S("s_mov_b64 exec,-1")
S(f"s_mov_b32 s{sX},s4"); S(f"s_and_b32 s{sX + 1},s5,0xffff"); S(f"s_mov_b32 s{sX + 2},{XB}"); S(f"s_mov_b32 s{sX + 3},0x20000")
S(f"s_sub_u32 s{sXL},s4,384"); S(f"s_subb_u32 s{sXL + 1},s{sX + 1},0")
S("s_cmp_eq_u32 s56,0"); S(f"s_cselect_b32 s{sXL + 2},0,{XB + 384}"); S(f"s_mov_b32 s{sXL + 3},0x20000")
S(f"s_mov_b32 s{sXR},s4"); S(f"s_mov_b32 s{sXR + 1},s{sX + 1}")
S("s_cmp_eq_u32 s56,508"); S(f"s_cselect_b32 s{sXR + 2},0,{XB}"); S(f"s_mov_b32 s{sXR + 3},0x20000")
for op in halo_addr(0):
    em.put(op)
nb0 = [i for i, op in enumerate(pro_loads) if op.kind == "salu" and f"s{sRaw}," in op.text][CFG["aw"]]
for i, op in enumerate(pro_loads[:NPRO0]):
    em.put(op)
    if i + 1 == nb0 and CFG["fuse"]:
        S("s_mov_b64 exec,1")
        VV("v_cmp_eq_u32 vcc,107,v66", [66], [])
        VV("v_mov_b32 v65,1", [], [65])
        S("s_nop 2\ns_and_b64 exec,exec,vcc\ns_cselect_b32 s62,s62,0\ns_mov_b64 exec,1")
        em.put(Op("buffer_store_dword v65,off,s[60:63],s84 offset:128 sc1", "vst", [("v", 65)], [], cost=0))
        S("s_mov_b64 exec,-1")
        pstamp()
if CFG["ctouch"]:
    S("s_getpc_b64 s[58:59]")
    S(f"s_lshr_b32 s84,s2,3\ns_lshl_b32 s84,s84,2\ns_add_u32 s84,s84,s{sWv}\ns_lshl_b32 s84,s84,10")
    VV(f"v_and_b32 v65,7,v{ln}", [ln], [65])
    VV(f"v_lshl_add_u32 v65,v65,7,s84", [65], [65])
    VV(f"v_min_u32 v65,L_code_end-L_go-4096,v65", [65], [65])
    em.put(Op("global_load_dword v67,v65,s[58:59]", "vld", [("v", 65)], [("v", 67)]))
if not CFG["fuse"]:
    for op in pro_U:
        em.put(op)
S(f"s_and_b32 s{sO + 1},s{sO + 1},0xffff"); S(f"s_mov_b32 s{sO + 2},{XB}"); S(f"s_mov_b32 s{sO + 3},0x20000")
S(f"s_mov_b32 s{sM5},{fbits(-5.0):#x}"); S(f"s_mov_b32 s{s8},{fbits(8.0):#x}"); S(f"s_mov_b32 s{sMask},0xffff0000")
S(f"s_mov_b32 s{sM125},{fbits(-1.25):#x}"); S(f"s_mov_b32 s{s025},{fbits(0.25):#x}")
S("s_mul_i32 s58,s55,384", [55], [58])
S("s_add_u32 s58,s57,s58", [57, 58], [58])
S(f"s_lshr_b32 s59,s{sWv},1", [sWv], [59])
S(f"s_mul_i32 s{sStA},s59,384", [59], [sStA])
S(f"s_mul_i32 s{sStY},s59,{ROWB}", [59], [sStY])
S(f"s_add_u32 s{sStA},s{sStA},s58", [58, sStA], [sStA])
S(f"s_add_u32 s{sStY},s{sStY},s58", [58, sStY], [sStY])
S(f"s_lshl_b32 s59,s{sWv},6", [sWv], [59])
VV(f"v_lshlrev_b32 v{vW},8,v{t1}", [t1], [vW])
VV(f"v_and_b32 v{t3},1,v{t0}", [t0], [t3])
VV(f"v_xor_b32 v{t3},1,v{t3}", [t3], [t3])
VV(f"v_lshlrev_b32 v{t3},2,v{t3}", [t3], [t3])
VV(f"v_xor_b32 v{t3},v{t3},v{t2}", [t3, t2], [t3])
VV(f"v_lshl_add_u32 v{vW},v{t3},3,v{vW}", [t3, vW], [vW])
VV(f"v_add_u32 v{vW},s59,v{vW}", [vW], [vW], [59])
VV(f"v_add_u32 v{vW},256,v{vW}", [vW], [vW])
VV(f"v_lshrrev_b32 v{t0},5,v{ln}", [ln], [t0])
VV(f"v_mul_u32_u24 v{vHW},{33 * 256},v{t0}", [t0], [vHW])
VV(f"v_lshlrev_b32 v{t0},5,v{t0}", [t0], [t0])
VV(f"v_bfe_u32 v{t1},v{vU},3,6", [vU], [t1])
VV(f"v_xor_b32 v{t1},v{t1},v{t0}", [t0, t1], [t1])
VV(f"v_add3_u32 v{vHW},v{vHW},v{t1},s59", [vHW, t1], [vHW], [59])
VV(f"v_bfe_u32 v{t0},v{ln},2,2", [ln], [t0])
VV(f"v_and_b32 v{t1},3,v{ln}", [ln], [t1])
VV(f"v_lshrrev_b32 v{t2},4,v{ln}", [ln], [t2])
VV(f"v_lshlrev_b32 v{vRA},11,v{t0}", [t0], [vRA])
VV(f"v_lshl_add_u32 v{vRA},v{t1},6,v{vRA}", [t1, vRA], [vRA])
VV(f"v_and_b32 v{t3},1,v{t0}", [t0], [t3])
VV(f"v_lshlrev_b32 v{t3},1,v{t3}", [t3], [t3])
VV(f"v_xor_b32 v{t3},v{t3},v{t2}", [t3, t2], [t3])
VV(f"v_lshl_add_u32 v{vRA},v{t3},4,v{vRA}", [t3, vRA], [vRA])
VV(f"v_xor_b32 v{vRB},32,v{vRA}", [vRA], [vRB])
VV(f"v_lshrrev_b32 v{t0},1,v{t2}", [t2], [t0])
VV(f"v_lshl_add_u32 v{t0},s{sWv},1,v{t0}", [t0], [t0], [sWv])
VV(f"v_and_b32 v{t1},7,v{ln}", [ln], [t1])
VV(f"v_xor_b32 v{t0},v{t0},v{t1}", [t0, t1], [t0])
VV(f"v_and_b32 v{t3},15,v{ln}", [ln], [t3])
VV(f"v_lshlrev_b32 v{vXw},7,v{t3}", [t3], [vXw])
VV(f"v_lshl_add_u32 v{vXw},v{t0},4,v{vXw}", [t0, vXw], [vXw])
VV(f"v_and_b32 v{t3},1,v{t2}", [t2], [t3])
VV(f"v_lshl_add_u32 v{vXw},v{t3},3,v{vXw}", [t3, vXw], [vXw])
VV(f"v_bfe_u32 v{t0},v{vU},7,4", [vU], [t0])
VV(f"v_lshrrev_b32 v{t2},2,v{t0}", [t0], [t2])
VV(f"v_mul_u32_u24 v{vSt},{8 * ROWB},v{t2}", [t2], [vSt])
VV(f"v_and_b32 v{t2},3,v{t0}", [t0], [t2])
VV(f"v_mul_u32_u24 v{t2},1536,v{t2}", [t2], [t2])
VV(f"v_and_b32 v{t0},7,v{t0}", [t0], [t0])
VV(f"v_xor_b32 v{t0},v{t0},v{t1}", [t0, t1], [t0])
VV(f"v_lshl_add_u32 v{t0},v{t0},4,v{t2}", [t0, t2], [t0])
VV(f"v_add_u32 v{vSt},v{vSt},v{t0}", [t0, vSt], [vSt])
stamp()
rest = pro_loads[NPRO0:]


def poll_and_rest():
    if CFG["fuse"]:
        VV(f"v_and_b32 v65,1,v{ln}", [ln], [65])
        VV("v_lshlrev_b32 v65,2,v65", [65], [65])
        pstamp()
        S("s_mov_b32 s84,0\nL_poll:\nglobal_load_dword v66,v65,s[52:53] offset:128 sc1\ns_add_u32 s84,s84,1\ns_waitcnt vmcnt(0)")
        S("v_cmp_eq_u32 vcc,0,v66\ns_cmp_gt_u32 s84,0x4000\ns_cbranch_scc1 L_fallback\ns_cbranch_vccnz L_poll\nL_uready:")
        em.vm_done = len(em.vm)
        stamp()
        for op in pro_U:
            em.put(op)
    for op in rest:
        em.put(op)


for j in range(4):
    for k, op in enumerate(main_compute(0, 0, j, PB[j])):
        em.put(op)
        if j == 0 and k == 17:
            stamp()
    for op in main_writes(0, 0, j, PB[j], -BIG, -BIG)[0]:
        em.put(op)
    if j == CFG["pollj"]:
        poll_and_rest()
for op in halo_compute(0, 0, PH, -BIG, -BIG)[0]:
    em.put(op)
if CFG["pollj"] == 4:
    poll_and_rest()
stamp()
em.put(Op("s_barrier", "bar"))
for op in pro_V:
    em.put(op)
stamp()
nfree = 0
stamp_gaps = set(P * NP + 288 * k - 1 for P in range(NPASS) for k in range(1, 10))
probe = set()
if CFG["dbg"] == 3:
    stamp_gaps = set()
    probe = set(id(ld_ops[k]) for k in [(0, 2, 1), (0, 2, 3), (0, 3, 1), (0, 3, 3), (0, 4, 2), (1, 0, 3), (1, 2, 2), (1, 3, 2), (1, 4, 1)])
for g in range(NM):
    em.put(mf[g])
    if g in stamp_gaps and g < NM - 1:
        stamp()
    cur = gaps[g]
    body = cur["sc"] + cur["mem"] + cur["valu"]
    if g < NM - 1:
        w = em.wait_for(body + [mf[g + 1]])
        if w and cur["sc"] and cur["sc"][0].kind != "bar":
            nfree += 1
    for op in body:
        em.put(op)
        if id(op) in probe:
            S("s_waitcnt lgkmcnt(0)")
            stamp()
            S("s_waitcnt vmcnt(0) lgkmcnt(0)")
            stamp()
            S("s_waitcnt lgkmcnt(0)")
if CFG["dbg"]:
    stamp()
    S("s_waitcnt vmcnt(0) lgkmcnt(0)")
    stamp()
    S("s_memrealtime s[94:95]")
    S("s_waitcnt lgkmcnt(0)")
    S(f"v_writelane_b32 v{vDBG},s98,{nst[0] - 1}")
    S(f"s_sub_u32 s94,s94,s96\nv_writelane_b32 v{vDBG},s94,{nst[0]}\nv_writelane_b32 v{vDBG},s96,{nst[0] + 1}")
    S(f"s_getreg_b32 s95,hwreg(HW_REG_XCC_ID)\nv_writelane_b32 v{vDBG},s95,{nst[0] + 2}")
    S(f"s_mov_b32 s{sUs + 2},0x1000000")
    S(f"s_lshl_b32 s54,s2,2\ns_add_u32 s54,s54,s{sWv}\ns_lshl_b32 s54,s54,7\ns_add_u32 s54,s54,0x400000")
    S(f"v_bfe_u32 v1,v{vU},4,6\nv_lshlrev_b32 v1,2,v1\ns_mov_b64 exec,0xffffffff\ns_mov_b32 exec_hi,0")
    S(f"buffer_store_dword v{vDBG},v1,s[{sUs}:{sUs + 3}],s54 offen")
    if CFG["dbg"] == 2:
        S("s_load_dwordx2 s[4:5],s[0:1],24\ns_waitcnt lgkmcnt(0)")
        S(f"s_lshl_b32 s54,s2,2\ns_add_u32 s54,s54,s{sWv}\ns_cmp_eq_u32 s54,400\ns_cbranch_scc0 L_nodbg")
        S(f"v_mov_b32 v2,v{vDBG}\ns_nop 1\nv_sub_u32_dpp v2,v{vDBG},v{vDBG} row_shl:1 row_mask:0xf bank_mask:0xf\ns_nop 1\nv_writelane_b32 v2,s94,15\ns_mov_b64 exec,0xffff")
        S("global_store_dword v1,v2,s[4:5]")
        S("L_nodbg:")
    print("; stamps", nst[0], file=sys.stderr)
print(f"; waits {em.nwait} nops {em.nnop} wait+scalar clashes {nfree} instrs {len(em.out)}", file=sys.stderr)
main_lines = em.lines()

U = []
A = U.append
A("s_cmp_ge_u32 s2,216\ns_cbranch_scc1 L_uend")
A("s_load_dwordx2 s[4:5],s[0:1],8\ns_load_dwordx2 s[6:7],s[0:1],32")
A("s_mul_hi_u32 s20,s2,0x55555556\ns_mul_i32 s21,s20,3\ns_sub_u32 s21,s2,s21")
A("s_mul_hi_u32 s22,s20,0x55555556\ns_mul_i32 s23,s22,3\ns_sub_u32 s23,s20,s23")
A("s_mul_hi_u32 s24,s22,0x2aaaaaab\ns_mul_i32 s25,s24,6\ns_sub_u32 s25,s22,s25")
A("v_and_b32 v1,15,v0\nv_lshrrev_b32 v2,4,v0")
A("s_lshl_b32 s26,s23,6\ns_lshl_b32 s27,s24,4\ns_add_u32 s26,s26,s27\nv_add_u32 v3,s26,v1\nv_lshlrev_b32 v3,1,v3")
A("v_mul_u32_u24 v4,3072,v2\nv_add_u32 v3,v3,v4")
A("s_mul_i32 s26,s21,221184\ns_mul_i32 s27,s25,12288\ns_add_u32 s26,s26,s27\ns_add_u32 s27,s26,73728\ns_add_u32 s28,s27,73728")
A("s_waitcnt lgkmcnt(0)")
A("s_mov_b32 s8,s4\ns_and_b32 s9,s5,0xffff\ns_mov_b32 s10,663552\ns_mov_b32 s11,0x20000")
A(f"s_mov_b32 s12,s6\ns_and_b32 s13,s7,0xffff\ns_mov_b32 s14,{4 * UWAVE}\ns_mov_b32 s15,0x20000")
for s in range(3):
    for e in range(8):
        A(f"buffer_load_short_d16_hi v{8 + s * 8 + e},v3,s[8:11],s{26 + s} offen offset:{e * 384}")
A(f"s_mul_i32 s30,s24,{UWAVE}\ns_mul_i32 s31,s25,{18 * 3072}\ns_add_u32 s30,s30,s31\ns_mul_i32 s31,s23,3072\ns_add_u32 s30,s30,s31\n"
  "s_lshl_b32 s31,s21,10\ns_add_u32 s30,s30,s31")
A("v_lshlrev_b32 v5,4,v0")
A(f"s_mov_b32 s33,{fbits(-1 / 6):#x}\ns_mov_b32 s34,{fbits(1 / 24):#x}\ns_mov_b32 s35,{fbits(1 / 6):#x}\ns_mov_b32 s36,{fbits(1 / 12):#x}")
A("s_waitcnt vmcnt(0)")
for e in range(8):
    g0, g1, g2 = 8 + e, 16 + e, 24 + e
    A(f"v_add_f32 v6,v{g0},v{g2}\nv_add_f32 v{32 + e},v6,v{g1}\nv_sub_f32 v{40 + e},v6,v{g1}")
    A(f"v_mul_f32 v{32 + e},s33,v{32 + e}\nv_mul_f32 v{40 + e},s33,v{40 + e}")
    A(f"v_mul_f32 v6,s34,v{g0}\nv_fmac_f32 v6,s35,v{g2}\nv_fma_f32 v{48 + e},s36,v{g1},v6\nv_fma_f32 v{56 + e},-s36,v{g1},v6")
for p, src in ((0, 8), (1, 32), (2, 40), (3, 48), (4, 56), (5, 24)):
    for e in range(4):
        A(f"v_cvt_pk_bf16_f32 v{64 + 4 * p + e},v{src + 2 * e},v{src + 2 * e + 1}")
    A(f"s_add_u32 s31,s30,{p * 9216}")
    A(f"buffer_store_dwordx4 v[{64 + 4 * p}:{67 + 4 * p}],v5,s[12:15],s31 offen")
A("L_uend:\ns_endpgm")

KD = """.amdhsa_kernel {n}
  .amdhsa_next_free_vgpr {v}
  .amdhsa_next_free_sgpr {s}
  .amdhsa_accum_offset {a}
  .amdhsa_group_segment_fixed_size 0
  .amdhsa_kernarg_size 40
  .amdhsa_user_sgpr_count 2
  .amdhsa_user_sgpr_kernarg_segment_ptr 1
  .amdhsa_system_sgpr_workgroup_id_x 1
  .amdhsa_float_denorm_mode_32 3
.end_amdhsa_kernel"""
out = []
if CFG["fuse"]:
    out.append(f"; @launch grid=(256,1,1) block=(256,1,1) lds={18 * UNIT}")
else:
    out.append("; @launch kernel=wtrans_kernel grid=(216,1,1) block=(64,1,1) lds=0")
    out.append(f"; @launch kernel=standalone__winograd__vision_kernel grid=(256,1,1) block=(256,1,1) lds={18 * UNIT}")
out.append('.amdgcn_target "amdgcn-amd-amdhsa--gfx950"')
out.append(".macro M d,a,b,c\nv_mfma_f32_16x16x32_bf16 \\d,\\a,\\b,\\c\n.endm")
out.append(".text")
if not CFG["fuse"]:
    out.append(".globl wtrans_kernel\n.p2align 8\n.type wtrans_kernel,@function\nwtrans_kernel:")
    out += U
out.append(".globl standalone__winograd__vision_kernel\n.p2align 8\n.type standalone__winograd__vision_kernel,@function")
out.append("standalone__winograd__vision_kernel:")
out += main_lines
out.append("s_endpgm\nL_code_end:")
out.append('.section .rodata,"a"\n.p2align 6')
if not CFG["fuse"]:
    out.append(KD.format(n="wtrans_kernel", v=96, s=48, a=96))
    out.append(".p2align 6")
out.append(KD.format(n="standalone__winograd__vision_kernel", v=512, s=102 if CFG["dbg"] else 94, a=256))
print("\n".join(out))
```

```python
import sys
import struct
from sched import Op, R, schedule, Emitter, BIG

CFG = dict(D=12, E=8, LATG=30, st_gap=25.0, st0=1590, vlead=7, dbg=0, stf=" nt", nost=0, touch=0, ctouch=1, ptouch=0,
           ldsp=0, prom=1, tlag=0, par=0, fuse=1, aw=1, usc=1, pollj=4, ntall=0, same=0, ntodd=0, hnt=0)
for a in sys.argv[1:]:
    k, v = a.split("=")
    CFG[k] = type(CFG[k])(v)

XB = 100663296
ROWB = 196608
UNIT = 8704
NP = 2592
NPASS = 2
UWAVE = 324 * 1024
fbits = lambda x: struct.unpack("<I", struct.pack("<f", x))[0]

if CFG["dbg"]:
    CFG["D"] = min(CFG["D"], 11)
D, E = CFG["D"], CFG["E"]
BUF = [192, 204]
UV0 = 216
AV0, AU0 = 192, 192 + 4 * E
NUA = (256 - AU0) // 4
NUV = D - NUA
TMP = UV0 + 4 * NUV
HAL = TMP + 7
vRaw, vHalo, vW, vHW, vRA, vRB, vU, vSt, vXw, vT, vJ = range(HAL + 6, HAL + 17)
assert vJ <= 255, vJ
sX, sXL, sXR, sUs, sO = 8, 12, 16, 20, 24
sRaw, sHalo, sRawB, sCol = 28, 29, 30, 31
sStA, sStY, sSt, sTo = 32, 33, 34, 35
sM5, s8, sMask, sM125, sUW, s025 = 40, 41, 42, 43, 44, 45
sU = 46
sY0, sWv = 49, 50
sRawC, sColC, sUC = 64, 70, 76
STB = 82


def acc(p, kb, y):
    o = (kb * 8 + y) * 4
    return {1: ("a", o), 2: ("a", 96 + o), 3: ("v", o), 4: ("v", 96 + o), 0: ("v", o), 5: ("v", 96 + o)}[p]


def uslot(n):
    s = n % D
    return ("a", AU0 + 4 * s) if s < NUA else ("v", UV0 + 4 * (s - NUA))


def vslot(n):
    return ("a", AV0 + 4 * (n % E))


rr = lambda f, a, n: f"{f}[{a}:{a + n - 1}]" if n > 1 else f"{f}{a}"


def LK(u, tag):
    return [((u, 0), tag), ((u, 1), tag)]


def X45(P):
    return (6, 7) if P % 2 == 0 else (0, 1)


def unit_of(P, c, p):
    x45 = X45(P)
    if p in (0, 5):
        i = 0 if p == 0 else 1
        if c == 0:
            return X45(P + 1)[i]
        if c == 5:
            return 8 + i
        return 10 + 2 * (c - 1) + i
    if c % 2 == 0:
        return 2 + (p - 1)
    if c < 5:
        return (x45[0], x45[1], 8, 9)[p - 1]
    return (x45[0], x45[1], 2, 3)[p - 1]


def nxt(P, c):
    return (P, c + 1) if c < 5 else ((P + 1, 0) if P + 1 < NPASS else None)


groups = []
for P in range(NPASS):
    for c in range(5):
        for p in (1, 2, 3, 4):
            groups.append((P, c, p, (0, 1, 2)))
    for p in (1, 2, 3, 4):
        groups.append((P, 5, p, (0,)))
    for p in (1, 2, 3, 4):
        groups.append((P, 5, p, (1, 2)))
    for kb in range(3):
        for p in (0, 5):
            for c in range(6):
                groups.append((P, c, p, (kb,)))

mf = []
ufr = []
vfr = []
cnt = {}
last_w = {}
first_w = {}
for (P, c, p, kbs) in groups:
    v0 = len(vfr)
    for rho in range(10):
        vfr.append(dict(P=P, c=c, p=p, rho=rho, first=None, last=None))
    for r in range(3):
        for kb in kbs:
            un = len(ufr)
            ufr.append(dict(P=P, c=c, p=p, kb=kb, r=r, first=len(mf), last=len(mf) + 7))
            for y in range(8):
                i = len(mf)
                vn = v0 + y + r
                if vfr[vn]["first"] is None:
                    vfr[vn]["first"] = i
                vfr[vn]["last"] = i
                f, a = acc(p, kb, y)
                uf, ua = uslot(un)
                vf, va = vslot(vn)
                key = (P, p, kb, y)
                n = cnt.get(key, 0)
                cnt[key] = n + 1
                init = n == 0 and p in (1, 2, 3, 4)
                csrc = "0" if init else rr(f, a, 4)
                rd = R(uf, ua, 4) + R(vf, va, 4) + ([] if init else R(f, a, 4))
                rtag = {x: ("U", un) for x in R(uf, ua, 4)}
                rtag.update({x: ("V", vn) for x in R(vf, va, 4)})
                if not init:
                    rtag.update({x: ("M", P, p, kb, y, n) for x in R(f, a, 4)})
                mf.append(Op(f"M {rr(f, a, 4)},{rr(uf, ua, 4)},{rr(vf, va, 4)},{csrc}", "mfma", rd, R(f, a, 4),
                             rtag=rtag, wtag={x: ("M", P, p, kb, y, n + 1) for x in R(f, a, 4)}))
                last_w[key] = i
                first_w.setdefault(key, i)
NM = len(mf)
assert NM == NP * NPASS


def Bgap(P, c):
    if c < 0:
        return Bgap(P - 1, 6) if P > 0 else -1
    if c <= 4:
        return P * NP + 288 * c + 278
    if c == 5:
        return P * NP + 1728 - 6
    return P * NP + NP - 10


def Bmid(P):
    return P * NP + 288 * 4 + 129


fixed = {}
for P in range(NPASS):
    lst = [Bgap(P, c) for c in range(6)] + [Bmid(P)]
    if P + 1 < NPASS:
        lst.append(Bgap(P, 6))
    for g in lst:
        fixed[g] = [Op("s_barrier", "bar")]

S_U = []
pro_U = []
cur_su = {}
for n, u in enumerate(ufr):
    off = (u["p"] * 3 + u["kb"]) * 3072
    rel = ufr[n - D]["last"] if n >= D else -BIG
    dst = pro_U if n < D else S_U
    kb = u["kb"]
    if cur_su.get(kb) != (u["c"], off):
        cur_su[kb] = (u["c"], off)
        dst.append(Op(f"s_add_u32 s{sU + kb},s{sUC + u['c']},{off}", "salu", [("s", sUC + u["c"])], [("s", sU + kb)], release=rel - 6,
                      target=rel - 6, deadline=rel + 4))
    f, a = uslot(n)
    dst.append(Op(f"buffer_load_dwordx4 {rr(f, a, 4)},v{vU},s[{sUs}:{sUs + 3}],s{sU + kb} offen offset:{u['r'] * 1024}{' sc1' if CFG['usc'] else ''}", "vld",
                  [("v", vU), ("s", sU + kb)], R(f, a, 4), release=rel, target=rel - 100, deadline=rel + 6,
                  wtag={x: ("U", n) for x in R(f, a, 4)}))

S_V = []
pro_V = []
v_ops = []
vbase = 0
offs = [unit_of(v["P"], v["c"], v["p"]) * UNIT + v["rho"] * 256 for v in vfr]
for n, v in enumerate(vfr):
    rel = vfr[n - E]["last"] if n >= E else -BIG
    rel = max(rel, Bgap(v["P"], v["c"] - 1))
    dst = pro_V if n < E else S_V
    dl = v["first"] - 5
    if v["p"] in (0, 5):
        if v["P"] + 1 < NPASS:
            dl = min(dl, Bgap(v["P"], 6) - 1)
    elif v["c"] == 4 and v["p"] <= 2:
        dl = min(dl, Bmid(v["P"]) - 1)
    else:
        dl = min(dl, Bgap(v["P"], v["c"]) - 1)
    assert dl >= rel or n < E, (v, dl, rel)
    tg = max(rel, v["first"] - CFG["vlead"])
    if not (0 <= offs[n] - vbase <= 65535):
        lo = hi = offs[n]
        m = n
        while m < len(offs) and max(hi, offs[m]) - min(lo, offs[m]) <= 65535:
            lo, hi = min(lo, offs[m]), max(hi, offs[m])
            m += 1
        d = (lo - vbase) & 0xFFFFFFFF
        vbase = lo
        for reg in (vRA, vRB):
            dst.append(Op(f"v_add_u32 v{reg},{d:#x},v{reg}", "valu", [("v", reg)], [("v", reg)], release=rel - 3,
                          target=tg - 3, deadline=dl - 2))
    reg = vRA if v["rho"] in (0, 9) else vRB
    f, a = vslot(n)
    u = unit_of(v["P"], v["c"], v["p"])
    dst.append(Op(f"ds_read_b128 {rr(f, a, 4)},v{reg} offset:{offs[n] - vbase}", "dsr", [("v", reg)], R(f, a, 4),
                  release=rel, target=tg, deadline=dl, wtag={x: ("V", n) for x in R(f, a, 4)},
                  lds_r=LK(u, (v["P"], v["c"], v["p"]))))
    v_ops.append((dst[-1], v))


def tv(i):
    return TMP + i


def xform(t, spare):
    L = []
    t0, t1, t2, t3, t4, t5 = t
    a = spare
    L.append((f"v_fmac_f32 v{t0},s{sM125},v{t2}", [t0, t2], [t0]))
    L.append((f"v_fmac_f32 v{t5},4.0,v{t1}", [t5, t1], [t5]))
    L.append((f"v_fma_f32 v{a},-4.0,v{t2},v{t4}", [t2, t4], [a]))
    L.append((f"v_fmac_f32 v{t0},s{s025},v{t4}", [t0, t4], [t0]))
    L.append((f"v_fmac_f32 v{t5},s{sM5},v{t3}", [t5, t3], [t5]))
    L.append((f"v_sub_f32 v{t4},v{t4},v{t2}", [t4, t2], [t4]))
    L.append((f"v_fma_f32 v{t2},-4.0,v{t1},v{t3}", [t1, t3], [t2]))
    L.append((f"v_sub_f32 v{t3},v{t3},v{t1}", [t3, t1], [t3]))
    L.append((f"v_add_f32 v{t1},v{a},v{t2}", [a, t2], [t1]))
    L.append((f"v_sub_f32 v{a},v{a},v{t2}", [a, t2], [a]))
    L.append((f"v_fma_f32 v{t2},2.0,v{t3},v{t4}", [t3, t4], [t2]))
    L.append((f"v_fmac_f32 v{t4},-2.0,v{t3}", [t3, t4], [t4]))
    return L, [t0, t1, a, t2, t4, t5], t3


def V(text, rd, wr, **kw):
    return Op(text, "valu", [("v", x) for x in rd], [("v", x) for x in wr], **kw)


def touches(P, c, j, px, prom):
    ops = [Op(f"s_add_u32 s{sTo},s{sRawC + c},{(32 * P + 2 * j) * ROWB}", "salu", [("s", sRawC + c)], [("s", sTo)])]
    for fl in (" nt", "")[:1 + prom]:
        ops.append(Op(f"buffer_load_dword v{vJ},v{vT},s[{sX}:{sX + 3}],s{sTo} offen offset:{(px - 1) * 384}{fl}",
                      "vld", [("v", vT), ("s", sTo)], [("v", vJ)], name="touch"))
    return ops


def main_loads(P, c, j, buf, first=False):
    ops = []
    dep = []
    pm = CFG["same"] >= 2 and c % 2 == 0
    if CFG["same"] < 2 and ((first and CFG["ptouch"]) or (not first and CFG["same"] and c % 2 == 0)):
        ops += touches(P, c, j, 1, 0) + touches(P, c, j, 2, 0)[1:]
    ops.append(Op(f"s_add_u32 s{sRaw},s{sRawC + c},{(32 * P + 2 * j) * ROWB}", "salu", [("s", sRawC + c)], [("s", sRaw)]))
    for jj in ((1, 2, 3, 4, 0, 5) if pm else (0, 5, 1, 2, 3, 4)):
        srd, imm = (sXL, 0) if jj == 0 else (sXR, 4 * 384) if jj == 5 else (sX, (jj - 1) * 384)
        nt = CFG["ntall"] or (pm and 1 <= jj <= 4) or (CFG["ntodd"] and c % 2 == 1)
        o = Op(f"buffer_load_dwordx2 v[{buf + 2 * jj}:{buf + 2 * jj + 1}],v{vRaw},s[{srd}:{srd + 3}],s{sRaw} offen offset:{imm}{' nt' if nt else ''}",
               "vld", [("v", vRaw), ("s", sRaw)], R("v", buf + 2 * jj, 2),
               wtag={x: ("raw", P, c, j, jj) for x in R("v", buf + 2 * jj, 2)})
        ops.append(o)
        dep.append((o, jj))
        if pm and jj == (3 if CFG["same"] == 2 else 4):
            for px in ((2,) if CFG["same"] == 2 else (1, 3)):
                ops.append(Op(f"buffer_load_dword v{vJ},v{vT},s[{sX}:{sX + 3}],s{sRaw} offen offset:{(px - 1) * 384}",
                              "vld", [("v", vT), ("s", sRaw)], [("v", vJ)]))
    return ops, dep


def after_touches(P, c, j):
    if not CFG["touch"]:
        return []
    ops = []
    n = nxt(P, c)
    if c % 2 == 1 and n:
        ops += touches(n[0], n[1], j, 1, 1)
    nb = (P, c, j + 1) if j < 3 else (n + (0,) if n else None)
    if nb and nb[1] % 2 == 0 and nb[:2] != (0, 0):
        ops += touches(nb[0], nb[1], nb[2], 2, CFG["prom"])
    return ops


def main_compute(P, c, j, buf):
    ops = []
    for i in range(2):
        lo = [tv(k) for k in range(6)]
        hi = [buf + 2 * k + i for k in range(6)]
        for jj in (2, 0, 1, 5, 4, 3):
            ops.append(V(f"v_lshlrev_b32 v{lo[jj]},16,v{hi[jj]}", [hi[jj]], [lo[jj]], rtag={("v", hi[jj]): ("raw", P, c, j, jj)}))
        L, vlo, freed = xform(lo, tv(6))
        ops += [V(t, a, b) for t, a, b in L]
        for jj in (2, 0, 1, 5, 4, 3):
            ops.append(V(f"v_and_b32 v{hi[jj]},s{sMask},v{hi[jj]}", [hi[jj]], [hi[jj]], rtag={("v", hi[jj]): ("raw", P, c, j, jj)}))
        L, vhi, _ = xform(hi, freed)
        ops += [V(t, a, b) for t, a, b in L]
        for p in (0, 5, 1, 3, 2, 4):
            ops.append(V(f"v_cvt_pk_bf16_f32 v{hi[p]},v{vlo[p]},v{vhi[p]}", [vlo[p], vhi[p]], [hi[p]],
                         wtag={("v", hi[p]): ("Vp", P, c, j, p)}))
    return ops


def main_writes(P, c, j, buf, rel, rel_late):
    ops = []
    wr = {}
    nc = c if j < 2 else c + 1
    for pa, pb in (((1, 2), (3, 4), (0, 5)) if CFG["same"] >= 2 and nc % 2 == 0 and c != 5 else ((0, 5), (1, 2), (3, 4))):
        ua, ub = unit_of(P, c, pa), unit_of(P, c, pb)
        base, sh = vW, 0
        r = rel_late if pa == 3 else rel
        if max(ua, ub) * 17 + j > 255:
            sh = min(ua, ub)
            base = tv(0)
            ops.append(V(f"v_add_u32 v{base},{sh * UNIT},v{vW}", [vW], [base]))
        o = Op(f"ds_write2st64_b64 v{base},v[{buf + 2 * pa}:{buf + 2 * pa + 1}],v[{buf + 2 * pb}:{buf + 2 * pb + 1}] "
               f"offset0:{(ua - sh) * 17 + j} offset1:{(ub - sh) * 17 + j}", "dsw",
               [("v", base)] + R("v", buf + 2 * pa, 2) + R("v", buf + 2 * pb, 2), [], cost=5, release=r,
               rtag={**{x: ("Vp", P, c, j, pa) for x in R("v", buf + 2 * pa, 2)},
                     **{x: ("Vp", P, c, j, pb) for x in R("v", buf + 2 * pb, 2)}},
               lds_w=LK(ua, (P, c, pa)) + LK(ub, (P, c, pb)))
        ops.append(o)
        wr[pa] = wr[pb] = o
    return ops, wr


def halo_loads(P, c, regs):
    ops = []
    sHalo = sColC + c
    for jj in range(6):
        srd, imm = (sXL, 0) if jj == 0 else (sXR, 4 * 384) if jj == 5 else (sX, (jj - 1) * 384)
        ops.append(Op(f"buffer_load_short_d16_hi v{regs + jj},v{vHalo},s[{srd}:{srd + 3}],s{sHalo} offen offset:{imm}{' nt' if CFG['hnt'] else ''}",
                      "vld", [("v", vHalo), ("s", sHalo)], [("v", regs + jj)], wtag={("v", regs + jj): ("hraw", P, c, jj)}))
    return ops


def halo_compute(P, c, regs, rel, rel_late):
    ops = []
    L, vr, _ = xform([regs + k for k in range(6)], tv(0))
    seen = set()
    for t, a, b in L:
        rt = {("v", x): ("hraw", P, c, x - regs) for x in a if regs <= x < regs + 6 and x not in seen}
        seen.update(b)
        ops.append(V(t, a, b, rtag=rt))
    pk = {}
    for k, (pa, pb) in enumerate(((0, 5), (1, 2), (3, 4))):
        ops.append(V(f"v_cvt_pk_bf16_f32 v{tv(1 + k)},v{vr[pa]},v{vr[pb]}", [vr[pa], vr[pb]], [tv(1 + k)]))
        pk[pa] = (tv(1 + k), "")
        pk[pb] = (tv(1 + k), "_d16_hi")
    free_raw = ops[-1]
    sh_cur = None
    for p in (0, 5, 1, 2, 3, 4):
        u = unit_of(P, c, p)
        base, off = vHW, u * UNIT
        if off > 65535:
            if sh_cur is None or not (0 <= off - sh_cur <= 65535):
                sh_cur = off
                ops.append(V(f"v_add_u32 v{tv(0)},{off},v{vHW}", [vHW], [tv(0)]))
            base, off = tv(0), off - sh_cur
        ops.append(Op(f"ds_write_b16{pk[p][1]} v{base},v{pk[p][0]} offset:{off}", "dsw", [("v", base), ("v", pk[p][0])], [], cost=2,
                      release=rel_late if p in (3, 4) else rel, lds_w=LK(u, (P, c, p))))
    return ops, free_raw


def halo_addr(P):
    t0, t1 = tv(0), tv(1)
    return [V(f"v_bfe_u32 v{t0},v{vU},9,1", [vU], [t0]),
            V(f"v_mul_u32_u24 v{t0},33,v{t0}", [t0], [t0]),
            Op(f"v_add_u32 v{t0},s{sY0},v{t0}", "valu", [("v", t0), ("s", sY0)], [("v", t0)]),
            V(f"v_add_u32 v{t0},{32 * P - 1},v{t0}", [t0], [t0]),
            V(f"v_mul_u32_u24 v{t1},{ROWB},v{t0}", [t0], [t1]),
            V(f"v_cmp_gt_u32 vcc,512,v{t0}", [t0], []),
            V(f"v_bfe_u32 v{t0},v{vU},3,6", [vU], [t0]),
            V(f"v_add_u32 v{t1},v{t1},v{t0}", [t0, t1], [t1]),
            V(f"v_bfrev_b32 v{t0},1", [], [t0]),
            V(f"v_cndmask_b32 v{vHalo},v{t0},v{t1},vcc", [t0, t1], [vHalo])]


def stage_write(P, key, slot, ra, rb):
    u, h = slot
    off = u * 17 + h * 8
    assert off + 4 <= 255
    return Op(f"ds_write2st64_b64 v{vXw},v[{ra}:{ra + 1}],v[{rb}:{rb + 1}] offset0:{off} offset1:{off + 4}", "dsw",
              [("v", vXw)] + R("v", ra, 2) + R("v", rb, 2), [], cost=5,
              rtag={**{x: ("Y", P, key, 0) for x in R("v", ra, 2)}, **{x: ("Y", P, key, 1) for x in R("v", rb, 2)}},
              lds_w=[(slot, ("X", P, key))])


XT = 0
XTB = 8 * UNIT


def stage_read(P, key, slot):
    kb, kind, y = key
    if kind == "s":
        f, a = acc(1, kb, y)
        nw = (1, kb, y)
        so, imm = f"s{sStA},{(32 * P + y) * ROWB}", 384 + 128 * kb
    else:
        p = 0 if kind == 0 else 5
        if kb == 0:
            yy = y + (0 if kind == 0 else 4)
            f, a = acc(2, kb, yy)
            nw = (2, kb, yy)
        else:
            f, a = acc(p, kb, 2 * y)
            nw = (3 if p == 0 else 4, kb, 2 * y)
        so, imm = f"s{sStY},{(32 * P + 2 * y) * ROWB}", kind * 384 + 128 * kb
    off = slot[0] * UNIT + slot[1] * 4096
    base = vU
    if off > 65535:
        base, off = XT, off - XTB
    rd = Op(f"ds_read_b128 {rr(f, a, 4)},v{base} offset:{off}", "dsr", [("v", base)], R(f, a, 4),
            wtag={x: ("L", P, key) for x in R(f, a, 4)}, lds_r=[(slot, ("X", P, key))],
            rtag={("v", XT): ("XT", P)} if base == XT else None)
    dl = first_w[(P + 1,) + nw] - 2 if P + 1 < NPASS else BIG
    s = Op(f"s_add_u32 s{sSt},{so}", "salu", [], [("s", sSt)])
    if CFG["nost"]:
        st = Op("v_nop", "valu", R(f, a, 4), [], deadline=dl, after=[(rd, 5)])
    else:
        st = Op(f"buffer_store_dwordx4 {rr(f, a, 4)},v{vSt},s[{sO}:{sO + 3}],s{sSt} offen offset:{imm}{CFG['stf']}", "vst",
                R(f, a, 4) + [("v", vSt), ("s", sSt)], [], cost=6, deadline=dl, rtag={x: ("L", P, key) for x in R(f, a, 4)},
                after=[(rd, 5)])
    return rd, [s, st]


def sw_block(P, kb, y, slot):
    ops = []
    rel = last_w[(P, 4, kb, y)] + 3
    a1, a2, m3, m4 = acc(1, kb, y)[1], acc(2, kb, y)[1], acc(3, kb, y)[1], acc(4, kb, y)[1]
    pk = [tv(0), tv(2)]
    key = (kb, "s", y)
    for h in range(2):
        us, t2s = [pk[1] + h, tv(4)], [pk[0] + h, tv(5)]
        t1 = tv(6)
        for e in range(2):
            i = 2 * h + e
            u, t2 = us[e], t2s[e]
            M3, M4 = m3 + i, m4 + i
            dl0 = first_w[(P, 0, kb, y)] - 2
            dl3 = first_w[(P, 5, kb, y)] - 2
            ops.append(Op(f"v_accvgpr_read_b32 v{t1},a{a1 + i}", "valu", [("a", a1 + i)], [("v", t1)], release=rel,
                          rtag={("a", a1 + i): ("M", P, 1, kb, y, 18)}))
            ops.append(Op(f"v_accvgpr_read_b32 v{t2},a{a2 + i}", "valu", [("a", a2 + i)], [("v", t2)],
                          rtag={("a", a2 + i): ("M", P, 2, kb, y, 18)}))
            ops.append(V(f"v_add_f32 v{u},v{t1},v{t2}", [t1, t2], [u]))
            ops.append(V(f"v_sub_f32 v{t1},v{t1},v{t2}", [t1, t2], [t1]))
            ops.append(V(f"v_add_f32 v{t2},v{M3},v{M4}", [M3, M4], [t2],
                         rtag={("v", M3): ("M", P, 3, kb, y, 18), ("v", M4): ("M", P, 4, kb, y, 18)}))
            ops.append(V(f"v_sub_f32 v{M4},v{M3},v{M4}", [M3, M4], [M4]))
            ops.append(V(f"v_add_f32 v{M3},v{u},v{t2}", [u, t2], [M3], wtag={("v", M3): ("M", P, 0, kb, y, 0)}, deadline=dl0))
            ops.append(V(f"v_fmac_f32 v{u},4.0,v{t2}", [u, t2], [u]))
            ops.append(V(f"v_fma_f32 v{t2},2.0,v{M4},v{t1}", [M4, t1], [t2]))
            ops.append(Op(f"v_fma_f32 v{M4},s{s8},v{M4},v{t1}", "valu", [("v", M4), ("v", t1)], [("v", M4)],
                          wtag={("v", M4): ("M", P, 5, kb, y, 0)}, deadline=dl3))
        for m, src in ((1, t2s), (2, us)):
            d = pk[m - 1] + h
            ops.append(V(f"v_cvt_pk_bf16_f32 v{d},v{src[0]},v{src[1]}", src, [d], wtag={("v", d): ("Y", P, key, m - 1)}))
    ops.append(stage_write(P, key, slot, pk[0], pk[1]))
    return ops


def fin_block(P, kb, m, yp, slot):
    ops = []
    p = 0 if m == 0 else 5
    key = (kb, m, yp)
    for k in range(2):
        y = 2 * yp + k
        a = acc(p, kb, y)[1]
        for h in range(2):
            ops.append(V(f"v_cvt_pk_bf16_f32 v{a + h},v{a + 2 * h},v{a + 2 * h + 1}", [a + 2 * h, a + 2 * h + 1], [a + h],
                         release=last_w[(P, p, kb, y)] + 3,
                         rtag={("v", a + 2 * h + 1): ("M", P, p, kb, y, 18)}, wtag={("v", a + h): ("Y", P, key, k)}))
    ops.append(stage_write(P, key, slot, acc(p, kb, 2 * yp)[1], acc(p, kb, 2 * yp + 1)[1]))
    return ops


S_main, S_ld, S_x, S_st = [], [], [], []
pending_bars = []


def flush_bars():
    for pos, lag, b in sorted(pending_bars, key=lambda x: -x[0]):
        while lag > 0 and pos < len(S_main) and S_main[pos].kind == "valu":
            pos += 1
            lag -= 1
        S_main.insert(pos, b)
    pending_bars.clear()


PB = [0, 12, 24, 36]
PH = 48
pro_loads = []
for j in range(4):
    pro_loads += main_loads(0, 0, j, PB[j], first=True)[0]
pro_loads += halo_loads(0, 0, PH)
NPRO0 = len(pro_loads)

prev_wr = {0: None, 1: None}
prev_hfree = None
ld_ops = {}
in_ld = set()


def add_loads(P, c, j):
    b = j % 2
    o, dep = main_loads(P, c, j, BUF[b])
    ld_ops[(P, c, j)] = o[-1]
    pw = prev_wr[b]
    tch = after_touches(P, c, j)
    if pw is None:
        pro_loads.extend(o + tch)
        return
    for op in tch:
        op.target = -BIG
        op.after = [(o[-1], CFG["tlag"])]
    o[0].after = [(pw[dep[0][1]], -1)]
    for op in o:
        if op.name == "touch":
            op.after = [(pw[0], 0)]
    for op, slot in dep:
        op.after = [(pw[slot], 0)]
    prev = None
    for op in o:
        op.target = -BIG
        if op.kind == "vld":
            if prev is not None and CFG["ldsp"] and not (prev.name == "touch" and "nt" in prev.text):
                op.after.append((prev, CFG["ldsp"]))
            prev = op
    S_ld.extend(o + tch)
    in_ld.add(id(o[-1]))


def add_halo_loads(P, c, extra_after=()):
    o = halo_loads(P, c, HAL)
    ld_ops[(P, c, "h")] = o[-1]
    if prev_hfree is None:
        pro_loads.extend(o)
        return
    for op in o:
        op.after = [(prev_hfree, 1)] + list(extra_after)
        op.target = -BIG
    S_ld.extend(o)
    in_ld.add(id(o[-1]))


def add_round(P, c, j, rel, rel_late, dl, compute=True, write=True):
    b = j % 2
    if compute:
        ops = main_compute(P, c, j, BUF[b])
        if id(ld_ops[(P, c, j)]) in in_ld:
            ops[0].after = [(ld_ops[(P, c, j)], CFG["LATG"])]
        S_main.extend(ops)
    if write:
        ops, wr = main_writes(P, c, j, BUF[b], rel, rel_late)
        ops[-1].deadline = dl
        S_main.extend(ops)
        prev_wr[b] = wr


def add_halo(P, c, rel, rel_late, dl):
    global prev_hfree
    ops, fr = halo_compute(P, c, HAL, rel, rel_late)
    if id(ld_ops[(P, c, "h")]) in in_ld:
        ops[0].after = [(ld_ops[(P, c, "h")], CFG["LATG"])]
    ops[-1].deadline = dl
    S_main.extend(ops)
    prev_hfree = fr


reads_prev = []
unread = []
stores = []


def unit(P, key, slot, rel=-BIG):
    ops = sw_block(P, key[0], key[2], slot) if key[1] == "s" else fin_block(P, key[0], key[1], key[2], slot)
    ops[-1].release = max(ops[-1].release, rel)
    S_main.extend(ops)
    unread.append((key, slot, ops[-1]))


def xbar(P, release=-BIG, extra_needs=(), lag=6):
    global reads_prev, unread
    b = Op("s_barrier", "bar", needs=[w for _, _, w in unread] + reads_prev + list(extra_needs), release=release,
           after=[(o, 4) for o in reads_prev + list(extra_needs)] + [(w, 3) for _, _, w in unread])
    pending_bars.append((len(S_main), lag, b))
    reads_prev = []
    for key, slot, _ in unread:
        rd, st = stage_read(P, key, slot)
        rd.after = [(b, 0)]
        rd.target = -BIG
        S_x.append(rd)
        reads_prev.append(rd)
        stores.append(st)
    unread = []
    if lag == 0:
        flush_bars()
    return b


add_loads(0, 1, 0)
add_loads(0, 1, 1)
add_halo_loads(0, 1)
for P in range(NPASS):
    for c in range(1, 6):
        rel = Bgap(P, c - 2)
        rel_late = Bmid(P) if c == 5 else rel
        dl = Bgap(P, c - 1) - 3
        n = nxt(P, c)
        for j in [0, 1, "h", 2, 3]:
            if j == "h":
                add_halo(P, c, rel, rel_late, dl)
                if n:
                    if n[1] == 0:
                        ha = halo_addr(n[0])
                        S_main.extend(ha)
                        add_halo_loads(n[0], n[1], [(ha[-1], 1)])
                    else:
                        add_halo_loads(*n)
            else:
                add_round(P, c, j, rel, rel_late, dl)
                if j < 2:
                    add_loads(P, c, j + 2)
                elif n:
                    add_loads(n[0], n[1], j - 2)
    more = P + 1 < NPASS
    dl = Bgap(P, 6) - 3
    ringA = [(4, 0), (4, 1), (5, 0), (5, 1)]
    ringB = [(u, h) for u in (2, 3) + X45(P) + (4, 5) for h in (0, 1)]
    reads_prev, stores = [], []
    if more:
        add_round(P + 1, 0, 0, None, None, dl, write=False)
    for k in range(4):
        for y in (2 * k, 2 * k + 1):
            unit(P, (0, "s", y), ringA[y % 4])
        xbar(P)
    nb = 0
    for batch in ([(1, "s", y) for y in range(4)], [(0, 0, y) for y in range(4)] + [(1, "s", 4), (1, "s", 5)],
                  [(1, "s", 6), (1, "s", 7)] + [(0, 3, y) for y in range(4)],
                  [(2, "s", y) for y in range(4)], [(1, 0, y) for y in range(4)] + [(2, "s", 4), (2, "s", 5)],
                  [(2, "s", 6), (2, "s", 7)] + [(1, 3, y) for y in range(4)]):
        for k, key in enumerate(batch):
            unit(P, key, ringB[6 * (nb % 2) + k], Bgap(P, 5))
        nb += 1
        xbar(P)
        if nb == 3 and more:
            S_x.append(V(f"v_add_u32 v{XT},{XTB},v{vU}", [vU], [XT], wtag={("v", XT): ("XT", P)}))
    if more:
        p0_reads = [op for op, v in v_ops if v["P"] == P and v["p"] == 0 and v["first"] >= P * NP + NP - 288]
        add_round(P + 1, 0, 1, None, None, dl, write=False)
        xbar(P, lag=0)
        for j in (0, 1):
            add_round(P + 1, 0, j, -BIG, -BIG, dl, compute=False)
            add_loads(P + 1, 0, j + 2)
        add_halo(P + 1, 0, -BIG, -BIG, dl)
        add_halo_loads(P + 1, 1)
        add_round(P + 1, 0, 2, -BIG, -BIG, dl)
        add_loads(P + 1, 1, 0)
        xbar(P, extra_needs=p0_reads[-1:], lag=0)
        for y in range(4):
            unit(P, (2, 0, y), [(8, 0), (8, 1), (10, 0), (10, 1)][y])
        xbar(P)
        for op in reads_prev:
            op.deadline = dl
        add_round(P + 1, 0, 3, -BIG, -BIG, dl)
        add_loads(P + 1, 1, 1)
        for y in range(4):
            unit(P, (2, 3, y), [(12, 0), (12, 1), (14, 0), (14, 1)][y])
        xbar(P)
        for op in reads_prev:
            op.deadline = Bgap(P + 1, 0) - 3
    else:
        flush_bars()
        for y in range(4):
            unit(P, (2, 0, y), ringB[y])
        xbar(P, lag=0)
        for y in range(4):
            unit(P, (2, 3, y), ringB[6 + y])
        xbar(P, lag=0)
    t = P * NP + float(CFG["st0"])
    gap = CFG["st_gap"] if more else (NP - 30 - CFG["st0"]) / 44.0
    for s, st in stores:
        s.release = st.release = int(t) if t < NM - 8 else -BIG
        s.target = st.target = int(t)
        s.after = list(st.after)
        t += gap
        S_st.extend([s, st])
flush_bars()


def propagate(st, rate):
    nd = BIG
    for op in reversed(st):
        if nd < BIG:
            nd -= (op.cost if op.cost else 0.0) / rate + (0.34 if op.mem or op.kind == "bar" else 0)
        op.deadline = min(op.deadline, nd)
        nd = min(nd, op.deadline)
    for op in st:
        if op.deadline < BIG:
            op.deadline = int(op.deadline // 1)


propagate(S_st, 8.0)
for st in (S_st, S_x):
    for s in st:
        for a, d in s.after:
            a.deadline = min(a.deadline, s.deadline - d)
    propagate(S_x, 4.0)
propagate(S_main, 4.0)
for op in S_main:
    if op.target is None:
        op.target = op.deadline + 1000

streams = [S_U, S_V, S_ld, S_x, S_st, S_main]
bud = [2.0] * (NM // 288)
best = None
for it in range(6):
    for st in streams:
        for op in st:
            op.gap = None
    for op in pro_loads + pro_U + pro_V:
        op.gap = -BIG
    gaps, late = schedule(NM, streams, fixed, lambda g: bud[g // 288])
    tot = [0] * (NM // 288)
    und = [0] * (NM // 288)
    for g, cur in enumerate(gaps[:-1]):
        tot[g // 288] += max(2, cur["used"])
        und[g // 288] += max(0, 2 - cur["used"])
    est = sum(8 + 4 * max(2, c["used"]) for c in gaps[:-1])
    print(f"; iter {it}: est {est} cycles, late {len(late)}, tail ops {len(gaps[-1]['valu'])}, phases {[round(t / 288, 2) for t in tot]} "
          f"underfill {und}", file=sys.stderr)
    for w in range(len(bud)):
        bud[w] = max(2.0, 0.5 * bud[w] + 0.5 * (tot[w] - und[w]) / 288)
for op, g in late[:20]:
    print("; late", op.text, op.deadline, g, file=sys.stderr)

em = Emitter()
S = lambda t, rd=(), wr=(): em.raw(t, "salu", [("s", x) for x in rd], [("s", x) for x in wr])
VV = lambda t, rd=(), wr=(), srd=(), swr=(): em.raw(t, "valu", [("v", x) for x in rd] + [("s", x) for x in srd],
                                                    [("v", x) for x in wr] + [("s", x) for x in swr])
nst = [0]
vDBG = vJ + 1
assert vDBG <= 255 or not CFG['dbg']


def stamp():
    if not CFG["dbg"]:
        return
    if nst[0] > 0:
        S(f"v_writelane_b32 v{vDBG},s98,{nst[0] - 1}")
    S("s_memrealtime s[98:99]" if CFG["dbg"] == 4 else "s_memtime s[98:99]")
    nst[0] += 1


def pstamp():
    if CFG["dbg"] == 4:
        S("s_waitcnt lgkmcnt(0)")
        stamp()


def u_item(tag, loop):
    L = [f"L_item{tag}:"]
    A = L.append
    A("s_and_b32 s85,s84,3\ns_lshr_b32 s86,s84,2")
    A("s_mul_hi_u32 s87,s86,0x55555556\ns_mul_i32 s88,s87,3\ns_sub_u32 s86,s86,s88")
    A("s_mul_hi_u32 s88,s87,0x2aaaaaab\ns_mul_i32 s89,s88,6\ns_sub_u32 s87,s87,s89")
    A("s_mul_i32 s89,s86,221184\ns_mul_i32 s90,s87,12288\ns_add_u32 s89,s89,s90\ns_mul_i32 s90,s85,3072\ns_add_u32 s89,s89,s90")
    A("s_lshl_b32 s90,s88,7\ns_add_u32 s89,s89,s90\ns_add_u32 s90,s89,73728\ns_add_u32 s91,s90,73728")
    A(f"v_lshlrev_b32 v149,1,v{ln}")
    for s in range(3):
        for e in range(8):
            A(f"buffer_load_short_d16_hi v{68 + s * 8 + e},v149,s[36:39],s{89 + s} offen offset:{e * 384}")
    A(f"v_lshrrev_b32 v150,4,v{ln}\nv_mul_u32_u24 v150,{UWAVE},v150\nv_and_b32 v148,15,v{ln}\nv_lshl_add_u32 v150,v148,4,v150")
    A(f"s_mul_i32 s87,s87,{18 * 3072}\ns_mul_i32 s88,s88,3072\ns_add_u32 s87,s87,s88\ns_lshl_b32 s86,s86,10\ns_add_u32 s87,s87,s86")
    A("s_lshl_b32 s85,s85,8\ns_add_u32 s87,s87,s85")
    A(f"s_mov_b32 s85,{fbits(-1 / 6):#x}\ns_mov_b32 s86,{fbits(1 / 24):#x}\ns_mov_b32 s88,{fbits(1 / 6):#x}\ns_mov_b32 s92,{fbits(1 / 12):#x}")
    A("s_waitcnt vmcnt(0)")
    for e in range(8):
        g0, g1, g2 = 68 + e, 76 + e, 84 + e
        A(f"v_add_f32 v148,v{g0},v{g2}\nv_add_f32 v{92 + e},v148,v{g1}\nv_sub_f32 v{100 + e},v148,v{g1}")
        A(f"v_mul_f32 v{92 + e},s85,v{92 + e}\nv_mul_f32 v{100 + e},s85,v{100 + e}")
        A(f"v_mul_f32 v148,s86,v{g0}\nv_fmac_f32 v148,s88,v{g2}\nv_fma_f32 v{108 + e},s92,v{g1},v148\nv_fma_f32 v{116 + e},-s92,v{g1},v148")
    for p, src in ((0, 68), (5, 84), (1, 92), (2, 100), (3, 108), (4, 116)):
        for e in range(4):
            A(f"v_cvt_pk_bf16_f32 v{124 + 4 * p + e},v{src + 2 * e},v{src + 2 * e + 1}")
        A(f"s_add_u32 s89,s87,{p * 9216}")
        A(f"buffer_store_dwordx4 v[{124 + 4 * p}:{127 + 4 * p}],v150,s[{sUs}:{sUs + 3}],s89 offen sc1")
    if loop:
        A(f"s_waitcnt vmcnt(0)\ns_add_u32 s84,s84,1\ns_cmp_lt_u32 s84,216\ns_cbranch_scc1 L_item{tag}")
    return "\n".join(L)


t0, t1, t2, t3, ln = 60, 61, 62, 63, 64
S("s_cmp_ge_u32 s2,256")
S("s_cbranch_scc0 L_go\ns_endpgm\nL_go:")
if CFG["dbg"]:
    S("s_memrealtime s[96:97]")
stamp()
S("s_load_dwordx4 s[4:7],s[0:1],0")
S(f"s_load_dwordx4 s[{sO}:{sO + 3}],s[0:1],16")
S("s_load_dwordx2 s[52:53],s[0:1],32")
VV(f"v_lshrrev_b32 v{t0},6,v0", [0], [t0])
VV(f"v_and_b32 v{ln},63,v0", [0], [ln])
VV(f"v_readfirstlane_b32 s{sWv},v{t0}", [t0], [], [], [sWv])
VV(f"v_lshrrev_b32 v{t0},4,v{ln}", [ln], [t0])
VV(f"v_bfe_u32 v{t1},v{ln},3,1", [ln], [t1])
VV(f"v_lshl_add_u32 v{t1},v{t0},3,v{t1}", [t0, t1], [t1])
VV(f"v_and_b32 v{t2},7,v{ln}", [ln], [t2])
VV(f"v_mul_u32_u24 v{vRaw},{ROWB},v{t1}", [t1], [vRaw])
VV(f"v_lshl_add_u32 v{vRaw},v{t2},3,v{vRaw}", [t2, vRaw], [vRaw])
VV(f"v_lshlrev_b32 v{vU},4,v0", [0], [vU])
VV(f"v_bfe_u32 v{t3},v{ln},2,1", [ln], [t3])
VV(f"v_mul_u32_u24 v{t3},{384 if CFG['same'] >= 2 else 768},v{t3}", [t3], [t3])
VV(f"v_mul_u32_u24 v{vT},{ROWB},v{t1}", [t1], [vT])
VV(f"v_add_u32 v{vT},v{vT},v{t3}", [t3, vT], [vT])
S("s_and_b32 s54,s2,7", [2], [54])
S("s_lshr_b32 s55,s2,3", [2], [55])
S(f"s_lshl_b32 s{sY0},s54,6", [54], [sY0])
S("s_lshl_b32 s55,s55,4", [55], [55])
S(f"s_lshl_b32 s56,s{sWv},2", [sWv], [56])
S("s_add_u32 s56,s56,s55", [55, 56], [56])
S(f"s_mul_i32 s{sCol},s56,384", [56], [sCol])
S(f"s_mul_i32 s57,s{sY0},{ROWB}", [sY0], [57])
S(f"s_add_u32 s{sRawB},s57,s{sCol}", [57, sCol], [sRawB])
S(f"s_mul_i32 s{sUW},s{sWv},{UWAVE - 1024}", [sWv], [sUW])
if CFG["par"]:
    S(f"s_bfe_u32 s58,s2,{0x10000 + (0 if CFG['par'] == 1 else 3)}")
else:
    S("s_mov_b32 s58,0")
for c in range(6):
    S(f"s_add_u32 s59,s58,{c}")
    if c == 5:
        S("s_cmp_eq_u32 s59,6\ns_cselect_b32 s59,0,s59")
    S(f"s_mul_i32 s60,s59,{18 * 3072}\ns_lshl_b32 s59,s59,6")
    S(f"s_add_u32 s{sRawC + c},s{sRawB},s59\ns_add_u32 s{sColC + c},s{sCol},s59\ns_add_u32 s{sUC + c},s{sUW},s60")
S("s_waitcnt lgkmcnt(0)")
S(f"s_mov_b32 s{sUs},s52"); S(f"s_and_b32 s{sUs + 1},s53,0xffff"); S(f"s_mov_b32 s{sUs + 2},{4 * UWAVE}"); S(f"s_mov_b32 s{sUs + 3},0x20000")
if CFG["fuse"]:
    S("s_mov_b32 s36,s6\ns_and_b32 s37,s7,0xffff\ns_mov_b32 s38,663552\ns_mov_b32 s39,0x20000")
    S(f"s_mov_b32 s60,s{sO + 2}\ns_and_b32 s61,s{sO + 3},0xffff\ns_mov_b32 s62,0\ns_mov_b32 s63,0x20000")
    S(f"s_mov_b32 s52,s{sO + 2}\ns_mov_b32 s53,s{sO + 3}")
    pstamp()
    S("v_mov_b32 v66,1\ns_cmp_lt_u32 s2,54\ns_cbranch_scc0 L_noitem")
    S(f"s_lshl_b32 s84,s2,2\ns_add_u32 s84,s84,s{sWv}\ns_mov_b32 s62,256\n" + u_item("P", False) + "\ns_waitcnt vmcnt(0)\nL_noitem:")
    pstamp()
    S(f"s_and_b32 s84,s{sWv},1\ns_lshl_b32 s85,s84,6\ns_lshl_b32 s84,s84,2\ns_mov_b64 exec,1")
    em.put(Op("buffer_atomic_add v66,off,s[60:63],s85 sc0 sc1", "vld", [("v", 66)], [("v", 66)], cost=0))
    S("s_mov_b64 exec,-1")
S(f"s_mov_b32 s{sX},s4"); S(f"s_and_b32 s{sX + 1},s5,0xffff"); S(f"s_mov_b32 s{sX + 2},{XB}"); S(f"s_mov_b32 s{sX + 3},0x20000")
S(f"s_sub_u32 s{sXL},s4,384"); S(f"s_subb_u32 s{sXL + 1},s{sX + 1},0")
S("s_cmp_eq_u32 s56,0"); S(f"s_cselect_b32 s{sXL + 2},0,{XB + 384}"); S(f"s_mov_b32 s{sXL + 3},0x20000")
S(f"s_mov_b32 s{sXR},s4"); S(f"s_mov_b32 s{sXR + 1},s{sX + 1}")
S("s_cmp_eq_u32 s56,508"); S(f"s_cselect_b32 s{sXR + 2},0,{XB}"); S(f"s_mov_b32 s{sXR + 3},0x20000")
for op in halo_addr(0):
    em.put(op)
nb0 = [i for i, op in enumerate(pro_loads) if op.kind == "salu" and f"s{sRaw}," in op.text][CFG["aw"]]
for i, op in enumerate(pro_loads[:NPRO0]):
    em.put(op)
    if i + 1 == nb0 and CFG["fuse"]:
        S("s_mov_b64 exec,1")
        VV("v_cmp_eq_u32 vcc,107,v66", [66], [])
        VV("v_mov_b32 v65,1", [], [65])
        S("s_nop 2\ns_and_b64 exec,exec,vcc\ns_cselect_b32 s62,s62,0\ns_mov_b64 exec,1")
        em.put(Op("buffer_store_dword v65,off,s[60:63],s84 offset:128 sc1", "vst", [("v", 65)], [], cost=0))
        S("s_mov_b64 exec,-1")
        pstamp()
if CFG["ctouch"]:
    S("s_getpc_b64 s[58:59]")
    S(f"s_lshr_b32 s84,s2,3\ns_lshl_b32 s84,s84,2\ns_add_u32 s84,s84,s{sWv}\ns_lshl_b32 s84,s84,10")
    VV(f"v_and_b32 v65,7,v{ln}", [ln], [65])
    VV(f"v_lshl_add_u32 v65,v65,7,s84", [65], [65])
    VV(f"v_min_u32 v65,L_code_end-L_go-4096,v65", [65], [65])
    em.put(Op("global_load_dword v67,v65,s[58:59]", "vld", [("v", 65)], [("v", 67)]))
if not CFG["fuse"]:
    for op in pro_U:
        em.put(op)
S(f"s_and_b32 s{sO + 1},s{sO + 1},0xffff"); S(f"s_mov_b32 s{sO + 2},{XB}"); S(f"s_mov_b32 s{sO + 3},0x20000")
S(f"s_mov_b32 s{sM5},{fbits(-5.0):#x}"); S(f"s_mov_b32 s{s8},{fbits(8.0):#x}"); S(f"s_mov_b32 s{sMask},0xffff0000")
S(f"s_mov_b32 s{sM125},{fbits(-1.25):#x}"); S(f"s_mov_b32 s{s025},{fbits(0.25):#x}")
S("s_mul_i32 s58,s55,384", [55], [58])
S("s_add_u32 s58,s57,s58", [57, 58], [58])
S(f"s_lshr_b32 s59,s{sWv},1", [sWv], [59])
S(f"s_mul_i32 s{sStA},s59,384", [59], [sStA])
S(f"s_mul_i32 s{sStY},s59,{ROWB}", [59], [sStY])
S(f"s_add_u32 s{sStA},s{sStA},s58", [58, sStA], [sStA])
S(f"s_add_u32 s{sStY},s{sStY},s58", [58, sStY], [sStY])
S(f"s_lshl_b32 s59,s{sWv},6", [sWv], [59])
VV(f"v_lshlrev_b32 v{vW},8,v{t1}", [t1], [vW])
VV(f"v_and_b32 v{t3},1,v{t0}", [t0], [t3])
VV(f"v_xor_b32 v{t3},1,v{t3}", [t3], [t3])
VV(f"v_lshlrev_b32 v{t3},2,v{t3}", [t3], [t3])
VV(f"v_xor_b32 v{t3},v{t3},v{t2}", [t3, t2], [t3])
VV(f"v_lshl_add_u32 v{vW},v{t3},3,v{vW}", [t3, vW], [vW])
VV(f"v_add_u32 v{vW},s59,v{vW}", [vW], [vW], [59])
VV(f"v_add_u32 v{vW},256,v{vW}", [vW], [vW])
VV(f"v_lshrrev_b32 v{t0},5,v{ln}", [ln], [t0])
VV(f"v_mul_u32_u24 v{vHW},{33 * 256},v{t0}", [t0], [vHW])
VV(f"v_lshlrev_b32 v{t0},5,v{t0}", [t0], [t0])
VV(f"v_bfe_u32 v{t1},v{vU},3,6", [vU], [t1])
VV(f"v_xor_b32 v{t1},v{t1},v{t0}", [t0, t1], [t1])
VV(f"v_add3_u32 v{vHW},v{vHW},v{t1},s59", [vHW, t1], [vHW], [59])
VV(f"v_bfe_u32 v{t0},v{ln},2,2", [ln], [t0])
VV(f"v_and_b32 v{t1},3,v{ln}", [ln], [t1])
VV(f"v_lshrrev_b32 v{t2},4,v{ln}", [ln], [t2])
VV(f"v_lshlrev_b32 v{vRA},11,v{t0}", [t0], [vRA])
VV(f"v_lshl_add_u32 v{vRA},v{t1},6,v{vRA}", [t1, vRA], [vRA])
VV(f"v_and_b32 v{t3},1,v{t0}", [t0], [t3])
VV(f"v_lshlrev_b32 v{t3},1,v{t3}", [t3], [t3])
VV(f"v_xor_b32 v{t3},v{t3},v{t2}", [t3, t2], [t3])
VV(f"v_lshl_add_u32 v{vRA},v{t3},4,v{vRA}", [t3, vRA], [vRA])
VV(f"v_xor_b32 v{vRB},32,v{vRA}", [vRA], [vRB])
VV(f"v_lshrrev_b32 v{t0},1,v{t2}", [t2], [t0])
VV(f"v_lshl_add_u32 v{t0},s{sWv},1,v{t0}", [t0], [t0], [sWv])
VV(f"v_and_b32 v{t1},7,v{ln}", [ln], [t1])
VV(f"v_xor_b32 v{t0},v{t0},v{t1}", [t0, t1], [t0])
VV(f"v_and_b32 v{t3},15,v{ln}", [ln], [t3])
VV(f"v_lshlrev_b32 v{vXw},7,v{t3}", [t3], [vXw])
VV(f"v_lshl_add_u32 v{vXw},v{t0},4,v{vXw}", [t0, vXw], [vXw])
VV(f"v_and_b32 v{t3},1,v{t2}", [t2], [t3])
VV(f"v_lshl_add_u32 v{vXw},v{t3},3,v{vXw}", [t3, vXw], [vXw])
VV(f"v_bfe_u32 v{t0},v{vU},7,4", [vU], [t0])
VV(f"v_lshrrev_b32 v{t2},2,v{t0}", [t0], [t2])
VV(f"v_mul_u32_u24 v{vSt},{8 * ROWB},v{t2}", [t2], [vSt])
VV(f"v_and_b32 v{t2},3,v{t0}", [t0], [t2])
VV(f"v_mul_u32_u24 v{t2},1536,v{t2}", [t2], [t2])
VV(f"v_and_b32 v{t0},7,v{t0}", [t0], [t0])
VV(f"v_xor_b32 v{t0},v{t0},v{t1}", [t0, t1], [t0])
VV(f"v_lshl_add_u32 v{t0},v{t0},4,v{t2}", [t0, t2], [t0])
VV(f"v_add_u32 v{vSt},v{vSt},v{t0}", [t0, vSt], [vSt])
stamp()
rest = pro_loads[NPRO0:]


def poll_and_rest():
    if CFG["fuse"]:
        VV(f"v_and_b32 v65,1,v{ln}", [ln], [65])
        VV("v_lshlrev_b32 v65,2,v65", [65], [65])
        pstamp()
        S("s_mov_b32 s84,0\nL_poll:\nglobal_load_dword v66,v65,s[52:53] offset:128 sc1\ns_add_u32 s84,s84,1\ns_waitcnt vmcnt(0)")
        S("v_cmp_eq_u32 vcc,0,v66\ns_cmp_gt_u32 s84,0x4000\ns_cbranch_scc1 L_fallback\ns_cbranch_vccnz L_poll\nL_uready:")
        em.vm_done = len(em.vm)
        stamp()
        for op in pro_U:
            em.put(op)
    for op in rest:
        em.put(op)


for j in range(4):
    for k, op in enumerate(main_compute(0, 0, j, PB[j])):
        em.put(op)
        if j == 0 and k == 17:
            stamp()
    for op in main_writes(0, 0, j, PB[j], -BIG, -BIG)[0]:
        em.put(op)
    if j == CFG["pollj"]:
        poll_and_rest()
for op in halo_compute(0, 0, PH, -BIG, -BIG)[0]:
    em.put(op)
if CFG["pollj"] == 4:
    poll_and_rest()
stamp()
em.put(Op("s_barrier", "bar"))
for op in pro_V:
    em.put(op)
stamp()
nfree = 0
stamp_gaps = set(P * NP + 288 * k - 1 for P in range(NPASS) for k in range(1, 10))
probe = set()
if CFG["dbg"] == 3:
    stamp_gaps = set()
    probe = set(id(ld_ops[k]) for k in [(0, 2, 1), (0, 2, 3), (0, 3, 1), (0, 3, 3), (0, 4, 2), (1, 0, 3), (1, 2, 2), (1, 3, 2), (1, 4, 1)])
for g in range(NM):
    em.put(mf[g])
    if g in stamp_gaps and g < NM - 1:
        stamp()
    cur = gaps[g]
    body = cur["sc"] + cur["mem"] + cur["valu"]
    if g < NM - 1:
        w = em.wait_for(body + [mf[g + 1]])
        if w and cur["sc"] and cur["sc"][0].kind != "bar":
            nfree += 1
    for op in body:
        em.put(op)
        if id(op) in probe:
            S("s_waitcnt lgkmcnt(0)")
            stamp()
            S("s_waitcnt vmcnt(0) lgkmcnt(0)")
            stamp()
            S("s_waitcnt lgkmcnt(0)")
if CFG["dbg"]:
    stamp()
    S("s_waitcnt vmcnt(0) lgkmcnt(0)")
    stamp()
    S("s_memrealtime s[94:95]")
    S("s_waitcnt lgkmcnt(0)")
    S(f"v_writelane_b32 v{vDBG},s98,{nst[0] - 1}")
    S(f"s_sub_u32 s94,s94,s96\nv_writelane_b32 v{vDBG},s94,{nst[0]}\nv_writelane_b32 v{vDBG},s96,{nst[0] + 1}")
    S(f"s_getreg_b32 s95,hwreg(HW_REG_XCC_ID)\nv_writelane_b32 v{vDBG},s95,{nst[0] + 2}")
    S(f"s_mov_b32 s{sUs + 2},0x1000000")
    S(f"s_lshl_b32 s54,s2,2\ns_add_u32 s54,s54,s{sWv}\ns_lshl_b32 s54,s54,7\ns_add_u32 s54,s54,0x400000")
    S(f"v_bfe_u32 v1,v{vU},4,6\nv_lshlrev_b32 v1,2,v1\ns_mov_b64 exec,0xffffffff\ns_mov_b32 exec_hi,0")
    S(f"buffer_store_dword v{vDBG},v1,s[{sUs}:{sUs + 3}],s54 offen")
    if CFG["dbg"] == 2:
        S("s_load_dwordx2 s[4:5],s[0:1],24\ns_waitcnt lgkmcnt(0)")
        S(f"s_lshl_b32 s54,s2,2\ns_add_u32 s54,s54,s{sWv}\ns_cmp_eq_u32 s54,400\ns_cbranch_scc0 L_nodbg")
        S(f"v_mov_b32 v2,v{vDBG}\ns_nop 1\nv_sub_u32_dpp v2,v{vDBG},v{vDBG} row_shl:1 row_mask:0xf bank_mask:0xf\ns_nop 1\nv_writelane_b32 v2,s94,15\ns_mov_b64 exec,0xffff")
        S("global_store_dword v1,v2,s[4:5]")
        S("L_nodbg:")
    print("; stamps", nst[0], file=sys.stderr)
print(f"; waits {em.nwait} nops {em.nnop} wait+scalar clashes {nfree} instrs {len(em.out)}", file=sys.stderr)
main_lines = em.lines()

U = []
A = U.append
A("s_cmp_ge_u32 s2,216\ns_cbranch_scc1 L_uend")
A("s_load_dwordx2 s[4:5],s[0:1],8\ns_load_dwordx2 s[6:7],s[0:1],32")
A("s_mul_hi_u32 s20,s2,0x55555556\ns_mul_i32 s21,s20,3\ns_sub_u32 s21,s2,s21")
A("s_mul_hi_u32 s22,s20,0x55555556\ns_mul_i32 s23,s22,3\ns_sub_u32 s23,s20,s23")
A("s_mul_hi_u32 s24,s22,0x2aaaaaab\ns_mul_i32 s25,s24,6\ns_sub_u32 s25,s22,s25")
A("v_and_b32 v1,15,v0\nv_lshrrev_b32 v2,4,v0")
A("s_lshl_b32 s26,s23,6\ns_lshl_b32 s27,s24,4\ns_add_u32 s26,s26,s27\nv_add_u32 v3,s26,v1\nv_lshlrev_b32 v3,1,v3")
A("v_mul_u32_u24 v4,3072,v2\nv_add_u32 v3,v3,v4")
A("s_mul_i32 s26,s21,221184\ns_mul_i32 s27,s25,12288\ns_add_u32 s26,s26,s27\ns_add_u32 s27,s26,73728\ns_add_u32 s28,s27,73728")
A("s_waitcnt lgkmcnt(0)")
A("s_mov_b32 s8,s4\ns_and_b32 s9,s5,0xffff\ns_mov_b32 s10,663552\ns_mov_b32 s11,0x20000")
A(f"s_mov_b32 s12,s6\ns_and_b32 s13,s7,0xffff\ns_mov_b32 s14,{4 * UWAVE}\ns_mov_b32 s15,0x20000")
for s in range(3):
    for e in range(8):
        A(f"buffer_load_short_d16_hi v{8 + s * 8 + e},v3,s[8:11],s{26 + s} offen offset:{e * 384}")
A(f"s_mul_i32 s30,s24,{UWAVE}\ns_mul_i32 s31,s25,{18 * 3072}\ns_add_u32 s30,s30,s31\ns_mul_i32 s31,s23,3072\ns_add_u32 s30,s30,s31\n"
  "s_lshl_b32 s31,s21,10\ns_add_u32 s30,s30,s31")
A("v_lshlrev_b32 v5,4,v0")
A(f"s_mov_b32 s33,{fbits(-1 / 6):#x}\ns_mov_b32 s34,{fbits(1 / 24):#x}\ns_mov_b32 s35,{fbits(1 / 6):#x}\ns_mov_b32 s36,{fbits(1 / 12):#x}")
A("s_waitcnt vmcnt(0)")
for e in range(8):
    g0, g1, g2 = 8 + e, 16 + e, 24 + e
    A(f"v_add_f32 v6,v{g0},v{g2}\nv_add_f32 v{32 + e},v6,v{g1}\nv_sub_f32 v{40 + e},v6,v{g1}")
    A(f"v_mul_f32 v{32 + e},s33,v{32 + e}\nv_mul_f32 v{40 + e},s33,v{40 + e}")
    A(f"v_mul_f32 v6,s34,v{g0}\nv_fmac_f32 v6,s35,v{g2}\nv_fma_f32 v{48 + e},s36,v{g1},v6\nv_fma_f32 v{56 + e},-s36,v{g1},v6")
for p, src in ((0, 8), (1, 32), (2, 40), (3, 48), (4, 56), (5, 24)):
    for e in range(4):
        A(f"v_cvt_pk_bf16_f32 v{64 + 4 * p + e},v{src + 2 * e},v{src + 2 * e + 1}")
    A(f"s_add_u32 s31,s30,{p * 9216}")
    A(f"buffer_store_dwordx4 v[{64 + 4 * p}:{67 + 4 * p}],v5,s[12:15],s31 offen")
A("L_uend:\ns_endpgm")

KD = """.amdhsa_kernel {n}
  .amdhsa_next_free_vgpr {v}
  .amdhsa_next_free_sgpr {s}
  .amdhsa_accum_offset {a}
  .amdhsa_group_segment_fixed_size 0
  .amdhsa_kernarg_size 40
  .amdhsa_user_sgpr_count 2
  .amdhsa_user_sgpr_kernarg_segment_ptr 1
  .amdhsa_system_sgpr_workgroup_id_x 1
  .amdhsa_float_denorm_mode_32 3
.end_amdhsa_kernel"""
out = []
if CFG["fuse"]:
    out.append(f"; @launch grid=(256,1,1) block=(256,1,1) lds={18 * UNIT}")
else:
    out.append("; @launch kernel=wtrans_kernel grid=(216,1,1) block=(64,1,1) lds=0")
    out.append(f"; @launch kernel=standalone__winograd__vision_kernel grid=(256,1,1) block=(256,1,1) lds={18 * UNIT}")
out.append('.amdgcn_target "amdgcn-amd-amdhsa--gfx950"')
out.append(".macro M d,a,b,c\nv_mfma_f32_16x16x32_bf16 \\d,\\a,\\b,\\c\n.endm")
out.append(".text")
if not CFG["fuse"]:
    out.append(".globl wtrans_kernel\n.p2align 8\n.type wtrans_kernel,@function\nwtrans_kernel:")
    out += U
out.append(".globl standalone__winograd__vision_kernel\n.p2align 8\n.type standalone__winograd__vision_kernel,@function")
out.append("standalone__winograd__vision_kernel:")
out += main_lines
out.append("s_endpgm\nL_code_end:")
if CFG["fuse"]:
    out.append("L_fallback:\ns_mov_b32 s84,0\n" + u_item("F", True) + "\ns_branch L_uready")
out.append('.section .rodata,"a"\n.p2align 6')
if not CFG["fuse"]:
    out.append(KD.format(n="wtrans_kernel", v=96, s=48, a=96))
    out.append(".p2align 6")
out.append(KD.format(n="standalone__winograd__vision_kernel", v=512, s=102 if CFG["dbg"] else 94, a=256))
print("\n".join(out))
```

```python
import sys
import struct
from sched import Op, R, schedule, Emitter, BIG

CFG = dict(D=12, E=8, LATG=30, st_gap=25.0, st0=1590, vlead=7, dbg=0, stf=" sc1", nost=0, touch=0, ctouch=1, ptouch=0,
           ldsp=0, prom=1, tlag=0, par=0, fuse=1, aw=1, usc=1, pollj=4, ntall=0, same=0, ntodd=0, hnt=0, padat=-2, padus=0)
for a in sys.argv[1:]:
    k, v = a.split("=")
    CFG[k] = type(CFG[k])(v)

XB = 100663296
ROWB = 196608
UNIT = 8704
NP = 2592
NPASS = 2
UWAVE = 324 * 1024
fbits = lambda x: struct.unpack("<I", struct.pack("<f", x))[0]

if CFG["dbg"]:
    CFG["D"] = min(CFG["D"], 11)
D, E = CFG["D"], CFG["E"]
BUF = [192, 204]
UV0 = 216
AV0, AU0 = 192, 192 + 4 * E
NUA = (256 - AU0) // 4
NUV = D - NUA
TMP = UV0 + 4 * NUV
HAL = TMP + 7
vRaw, vHalo, vW, vHW, vRA, vRB, vU, vSt, vXw, vT, vJ = range(HAL + 6, HAL + 17)
assert vJ <= 255, vJ
sX, sXL, sXR, sUs, sO = 8, 12, 16, 20, 24
sRaw, sHalo, sRawB, sCol = 28, 29, 30, 31
sStA, sStY, sSt, sTo = 32, 33, 34, 35
sM5, s8, sMask, sM125, sUW, s025 = 40, 41, 42, 43, 44, 45
sU = 46
sY0, sWv = 49, 50
sRawC, sColC, sUC = 64, 70, 76
STB = 82


def acc(p, kb, y):
    o = (kb * 8 + y) * 4
    return {1: ("a", o), 2: ("a", 96 + o), 3: ("v", o), 4: ("v", 96 + o), 0: ("v", o), 5: ("v", 96 + o)}[p]


def uslot(n):
    s = n % D
    return ("a", AU0 + 4 * s) if s < NUA else ("v", UV0 + 4 * (s - NUA))


def vslot(n):
    return ("a", AV0 + 4 * (n % E))


rr = lambda f, a, n: f"{f}[{a}:{a + n - 1}]" if n > 1 else f"{f}{a}"


def LK(u, tag):
    return [((u, 0), tag), ((u, 1), tag)]


def X45(P):
    return (6, 7) if P % 2 == 0 else (0, 1)


def unit_of(P, c, p):
    x45 = X45(P)
    if p in (0, 5):
        i = 0 if p == 0 else 1
        if c == 0:
            return X45(P + 1)[i]
        if c == 5:
            return 8 + i
        return 10 + 2 * (c - 1) + i
    if c % 2 == 0:
        return 2 + (p - 1)
    if c < 5:
        return (x45[0], x45[1], 8, 9)[p - 1]
    return (x45[0], x45[1], 2, 3)[p - 1]


def nxt(P, c):
    return (P, c + 1) if c < 5 else ((P + 1, 0) if P + 1 < NPASS else None)


groups = []
for P in range(NPASS):
    for c in range(5):
        for p in (1, 2, 3, 4):
            groups.append((P, c, p, (0, 1, 2)))
    for p in (1, 2, 3, 4):
        groups.append((P, 5, p, (0,)))
    for p in (1, 2, 3, 4):
        groups.append((P, 5, p, (1, 2)))
    for kb in range(3):
        for p in (0, 5):
            for c in range(6):
                groups.append((P, c, p, (kb,)))

mf = []
ufr = []
vfr = []
cnt = {}
last_w = {}
first_w = {}
for (P, c, p, kbs) in groups:
    v0 = len(vfr)
    for rho in range(10):
        vfr.append(dict(P=P, c=c, p=p, rho=rho, first=None, last=None))
    for r in range(3):
        for kb in kbs:
            un = len(ufr)
            ufr.append(dict(P=P, c=c, p=p, kb=kb, r=r, first=len(mf), last=len(mf) + 7))
            for y in range(8):
                i = len(mf)
                vn = v0 + y + r
                if vfr[vn]["first"] is None:
                    vfr[vn]["first"] = i
                vfr[vn]["last"] = i
                f, a = acc(p, kb, y)
                uf, ua = uslot(un)
                vf, va = vslot(vn)
                key = (P, p, kb, y)
                n = cnt.get(key, 0)
                cnt[key] = n + 1
                init = n == 0 and p in (1, 2, 3, 4)
                csrc = "0" if init else rr(f, a, 4)
                rd = R(uf, ua, 4) + R(vf, va, 4) + ([] if init else R(f, a, 4))
                rtag = {x: ("U", un) for x in R(uf, ua, 4)}
                rtag.update({x: ("V", vn) for x in R(vf, va, 4)})
                if not init:
                    rtag.update({x: ("M", P, p, kb, y, n) for x in R(f, a, 4)})
                mf.append(Op(f"M {rr(f, a, 4)},{rr(uf, ua, 4)},{rr(vf, va, 4)},{csrc}", "mfma", rd, R(f, a, 4),
                             rtag=rtag, wtag={x: ("M", P, p, kb, y, n + 1) for x in R(f, a, 4)}))
                last_w[key] = i
                first_w.setdefault(key, i)
NM = len(mf)
assert NM == NP * NPASS


def Bgap(P, c):
    if c < 0:
        return Bgap(P - 1, 6) if P > 0 else -1
    if c <= 4:
        return P * NP + 288 * c + 278
    if c == 5:
        return P * NP + 1728 - 6
    return P * NP + NP - 10


def Bmid(P):
    return P * NP + 288 * 4 + 129


fixed = {}
for P in range(NPASS):
    lst = [Bgap(P, c) for c in range(6)] + [Bmid(P)]
    if P + 1 < NPASS:
        lst.append(Bgap(P, 6))
    for g in lst:
        fixed[g] = [Op("s_barrier", "bar")]

S_U = []
pro_U = []
cur_su = {}
for n, u in enumerate(ufr):
    off = (u["p"] * 3 + u["kb"]) * 3072
    rel = ufr[n - D]["last"] if n >= D else -BIG
    dst = pro_U if n < D else S_U
    kb = u["kb"]
    if cur_su.get(kb) != (u["c"], off):
        cur_su[kb] = (u["c"], off)
        dst.append(Op(f"s_add_u32 s{sU + kb},s{sUC + u['c']},{off}", "salu", [("s", sUC + u["c"])], [("s", sU + kb)], release=rel - 6,
                      target=rel - 6, deadline=rel + 4))
    f, a = uslot(n)
    dst.append(Op(f"buffer_load_dwordx4 {rr(f, a, 4)},v{vU},s[{sUs}:{sUs + 3}],s{sU + kb} offen offset:{u['r'] * 1024}{' sc1' if CFG['usc'] else ''}", "vld",
                  [("v", vU), ("s", sU + kb)], R(f, a, 4), release=rel, target=rel - 100, deadline=rel + 6,
                  wtag={x: ("U", n) for x in R(f, a, 4)}))

S_V = []
pro_V = []
v_ops = []
vbase = 0
offs = [unit_of(v["P"], v["c"], v["p"]) * UNIT + v["rho"] * 256 for v in vfr]
for n, v in enumerate(vfr):
    rel = vfr[n - E]["last"] if n >= E else -BIG
    rel = max(rel, Bgap(v["P"], v["c"] - 1))
    dst = pro_V if n < E else S_V
    dl = v["first"] - 5
    if v["p"] in (0, 5):
        if v["P"] + 1 < NPASS:
            dl = min(dl, Bgap(v["P"], 6) - 1)
    elif v["c"] == 4 and v["p"] <= 2:
        dl = min(dl, Bmid(v["P"]) - 1)
    else:
        dl = min(dl, Bgap(v["P"], v["c"]) - 1)
    assert dl >= rel or n < E, (v, dl, rel)
    tg = max(rel, v["first"] - CFG["vlead"])
    if not (0 <= offs[n] - vbase <= 65535):
        lo = hi = offs[n]
        m = n
        while m < len(offs) and max(hi, offs[m]) - min(lo, offs[m]) <= 65535:
            lo, hi = min(lo, offs[m]), max(hi, offs[m])
            m += 1
        d = (lo - vbase) & 0xFFFFFFFF
        vbase = lo
        for reg in (vRA, vRB):
            dst.append(Op(f"v_add_u32 v{reg},{d:#x},v{reg}", "valu", [("v", reg)], [("v", reg)], release=rel - 3,
                          target=tg - 3, deadline=dl - 2))
    reg = vRA if v["rho"] in (0, 9) else vRB
    f, a = vslot(n)
    u = unit_of(v["P"], v["c"], v["p"])
    dst.append(Op(f"ds_read_b128 {rr(f, a, 4)},v{reg} offset:{offs[n] - vbase}", "dsr", [("v", reg)], R(f, a, 4),
                  release=rel, target=tg, deadline=dl, wtag={x: ("V", n) for x in R(f, a, 4)},
                  lds_r=LK(u, (v["P"], v["c"], v["p"]))))
    v_ops.append((dst[-1], v))


def tv(i):
    return TMP + i


def xform(t, spare):
    L = []
    t0, t1, t2, t3, t4, t5 = t
    a = spare
    L.append((f"v_fmac_f32 v{t0},s{sM125},v{t2}", [t0, t2], [t0]))
    L.append((f"v_fmac_f32 v{t5},4.0,v{t1}", [t5, t1], [t5]))
    L.append((f"v_fma_f32 v{a},-4.0,v{t2},v{t4}", [t2, t4], [a]))
    L.append((f"v_fmac_f32 v{t0},s{s025},v{t4}", [t0, t4], [t0]))
    L.append((f"v_fmac_f32 v{t5},s{sM5},v{t3}", [t5, t3], [t5]))
    L.append((f"v_sub_f32 v{t4},v{t4},v{t2}", [t4, t2], [t4]))
    L.append((f"v_fma_f32 v{t2},-4.0,v{t1},v{t3}", [t1, t3], [t2]))
    L.append((f"v_sub_f32 v{t3},v{t3},v{t1}", [t3, t1], [t3]))
    L.append((f"v_add_f32 v{t1},v{a},v{t2}", [a, t2], [t1]))
    L.append((f"v_sub_f32 v{a},v{a},v{t2}", [a, t2], [a]))
    L.append((f"v_fma_f32 v{t2},2.0,v{t3},v{t4}", [t3, t4], [t2]))
    L.append((f"v_fmac_f32 v{t4},-2.0,v{t3}", [t3, t4], [t4]))
    return L, [t0, t1, a, t2, t4, t5], t3


def V(text, rd, wr, **kw):
    return Op(text, "valu", [("v", x) for x in rd], [("v", x) for x in wr], **kw)


def touches(P, c, j, px, prom):
    ops = [Op(f"s_add_u32 s{sTo},s{sRawC + c},{(32 * P + 2 * j) * ROWB}", "salu", [("s", sRawC + c)], [("s", sTo)])]
    for fl in (" nt", "")[:1 + prom]:
        ops.append(Op(f"buffer_load_dword v{vJ},v{vT},s[{sX}:{sX + 3}],s{sTo} offen offset:{(px - 1) * 384}{fl}",
                      "vld", [("v", vT), ("s", sTo)], [("v", vJ)], name="touch"))
    return ops


def main_loads(P, c, j, buf, first=False):
    ops = []
    dep = []
    pm = CFG["same"] >= 2 and c % 2 == 0
    if CFG["same"] < 2 and ((first and CFG["ptouch"]) or (not first and CFG["same"] and c % 2 == 0)):
        ops += touches(P, c, j, 1, 0) + touches(P, c, j, 2, 0)[1:]
    ops.append(Op(f"s_add_u32 s{sRaw},s{sRawC + c},{(32 * P + 2 * j) * ROWB}", "salu", [("s", sRawC + c)], [("s", sRaw)]))
    for jj in ((1, 2, 3, 4, 0, 5) if pm else (0, 5, 1, 2, 3, 4)):
        srd, imm = (sXL, 0) if jj == 0 else (sXR, 4 * 384) if jj == 5 else (sX, (jj - 1) * 384)
        nt = CFG["ntall"] or (pm and 1 <= jj <= 4) or (CFG["ntodd"] and c % 2 == 1)
        o = Op(f"buffer_load_dwordx2 v[{buf + 2 * jj}:{buf + 2 * jj + 1}],v{vRaw},s[{srd}:{srd + 3}],s{sRaw} offen offset:{imm}{' nt' if nt else ''}",
               "vld", [("v", vRaw), ("s", sRaw)], R("v", buf + 2 * jj, 2),
               wtag={x: ("raw", P, c, j, jj) for x in R("v", buf + 2 * jj, 2)})
        ops.append(o)
        dep.append((o, jj))
        if pm and jj == (3 if CFG["same"] == 2 else 4):
            for px in ((2,) if CFG["same"] == 2 else (1, 3)):
                ops.append(Op(f"buffer_load_dword v{vJ},v{vT},s[{sX}:{sX + 3}],s{sRaw} offen offset:{(px - 1) * 384}",
                              "vld", [("v", vT), ("s", sRaw)], [("v", vJ)]))
    return ops, dep


def after_touches(P, c, j):
    if not CFG["touch"]:
        return []
    ops = []
    n = nxt(P, c)
    if c % 2 == 1 and n:
        ops += touches(n[0], n[1], j, 1, 1)
    nb = (P, c, j + 1) if j < 3 else (n + (0,) if n else None)
    if nb and nb[1] % 2 == 0 and nb[:2] != (0, 0):
        ops += touches(nb[0], nb[1], nb[2], 2, CFG["prom"])
    return ops


def main_compute(P, c, j, buf):
    ops = []
    for i in range(2):
        lo = [tv(k) for k in range(6)]
        hi = [buf + 2 * k + i for k in range(6)]
        for jj in (2, 0, 1, 5, 4, 3):
            ops.append(V(f"v_lshlrev_b32 v{lo[jj]},16,v{hi[jj]}", [hi[jj]], [lo[jj]], rtag={("v", hi[jj]): ("raw", P, c, j, jj)}))
        L, vlo, freed = xform(lo, tv(6))
        ops += [V(t, a, b) for t, a, b in L]
        for jj in (2, 0, 1, 5, 4, 3):
            ops.append(V(f"v_and_b32 v{hi[jj]},s{sMask},v{hi[jj]}", [hi[jj]], [hi[jj]], rtag={("v", hi[jj]): ("raw", P, c, j, jj)}))
        L, vhi, _ = xform(hi, freed)
        ops += [V(t, a, b) for t, a, b in L]
        for p in (0, 5, 1, 3, 2, 4):
            ops.append(V(f"v_cvt_pk_bf16_f32 v{hi[p]},v{vlo[p]},v{vhi[p]}", [vlo[p], vhi[p]], [hi[p]],
                         wtag={("v", hi[p]): ("Vp", P, c, j, p)}))
    return ops


def main_writes(P, c, j, buf, rel, rel_late):
    ops = []
    wr = {}
    nc = c if j < 2 else c + 1
    for pa, pb in (((1, 2), (3, 4), (0, 5)) if CFG["same"] >= 2 and nc % 2 == 0 and c != 5 else ((0, 5), (1, 2), (3, 4))):
        ua, ub = unit_of(P, c, pa), unit_of(P, c, pb)
        base, sh = vW, 0
        r = rel_late if pa == 3 else rel
        if max(ua, ub) * 17 + j > 255:
            sh = min(ua, ub)
            base = tv(0)
            ops.append(V(f"v_add_u32 v{base},{sh * UNIT},v{vW}", [vW], [base]))
        o = Op(f"ds_write2st64_b64 v{base},v[{buf + 2 * pa}:{buf + 2 * pa + 1}],v[{buf + 2 * pb}:{buf + 2 * pb + 1}] "
               f"offset0:{(ua - sh) * 17 + j} offset1:{(ub - sh) * 17 + j}", "dsw",
               [("v", base)] + R("v", buf + 2 * pa, 2) + R("v", buf + 2 * pb, 2), [], cost=5, release=r,
               rtag={**{x: ("Vp", P, c, j, pa) for x in R("v", buf + 2 * pa, 2)},
                     **{x: ("Vp", P, c, j, pb) for x in R("v", buf + 2 * pb, 2)}},
               lds_w=LK(ua, (P, c, pa)) + LK(ub, (P, c, pb)))
        ops.append(o)
        wr[pa] = wr[pb] = o
    return ops, wr


def halo_loads(P, c, regs):
    ops = []
    sHalo = sColC + c
    for jj in range(6):
        srd, imm = (sXL, 0) if jj == 0 else (sXR, 4 * 384) if jj == 5 else (sX, (jj - 1) * 384)
        ops.append(Op(f"buffer_load_short_d16_hi v{regs + jj},v{vHalo},s[{srd}:{srd + 3}],s{sHalo} offen offset:{imm}{' nt' if CFG['hnt'] else ''}",
                      "vld", [("v", vHalo), ("s", sHalo)], [("v", regs + jj)], wtag={("v", regs + jj): ("hraw", P, c, jj)}))
    return ops


def halo_compute(P, c, regs, rel, rel_late):
    ops = []
    L, vr, _ = xform([regs + k for k in range(6)], tv(0))
    seen = set()
    for t, a, b in L:
        rt = {("v", x): ("hraw", P, c, x - regs) for x in a if regs <= x < regs + 6 and x not in seen}
        seen.update(b)
        ops.append(V(t, a, b, rtag=rt))
    pk = {}
    for k, (pa, pb) in enumerate(((0, 5), (1, 2), (3, 4))):
        ops.append(V(f"v_cvt_pk_bf16_f32 v{tv(1 + k)},v{vr[pa]},v{vr[pb]}", [vr[pa], vr[pb]], [tv(1 + k)]))
        pk[pa] = (tv(1 + k), "")
        pk[pb] = (tv(1 + k), "_d16_hi")
    free_raw = ops[-1]
    sh_cur = None
    for p in (0, 5, 1, 2, 3, 4):
        u = unit_of(P, c, p)
        base, off = vHW, u * UNIT
        if off > 65535:
            if sh_cur is None or not (0 <= off - sh_cur <= 65535):
                sh_cur = off
                ops.append(V(f"v_add_u32 v{tv(0)},{off},v{vHW}", [vHW], [tv(0)]))
            base, off = tv(0), off - sh_cur
        ops.append(Op(f"ds_write_b16{pk[p][1]} v{base},v{pk[p][0]} offset:{off}", "dsw", [("v", base), ("v", pk[p][0])], [], cost=2,
                      release=rel_late if p in (3, 4) else rel, lds_w=LK(u, (P, c, p))))
    return ops, free_raw


def halo_addr(P):
    t0, t1 = tv(0), tv(1)
    return [V(f"v_bfe_u32 v{t0},v{vU},9,1", [vU], [t0]),
            V(f"v_mul_u32_u24 v{t0},33,v{t0}", [t0], [t0]),
            Op(f"v_add_u32 v{t0},s{sY0},v{t0}", "valu", [("v", t0), ("s", sY0)], [("v", t0)]),
            V(f"v_add_u32 v{t0},{32 * P - 1},v{t0}", [t0], [t0]),
            V(f"v_mul_u32_u24 v{t1},{ROWB},v{t0}", [t0], [t1]),
            V(f"v_cmp_gt_u32 vcc,512,v{t0}", [t0], []),
            V(f"v_bfe_u32 v{t0},v{vU},3,6", [vU], [t0]),
            V(f"v_add_u32 v{t1},v{t1},v{t0}", [t0, t1], [t1]),
            V(f"v_bfrev_b32 v{t0},1", [], [t0]),
            V(f"v_cndmask_b32 v{vHalo},v{t0},v{t1},vcc", [t0, t1], [vHalo])]


def stage_write(P, key, slot, ra, rb):
    u, h = slot
    off = u * 17 + h * 8
    assert off + 4 <= 255
    return Op(f"ds_write2st64_b64 v{vXw},v[{ra}:{ra + 1}],v[{rb}:{rb + 1}] offset0:{off} offset1:{off + 4}", "dsw",
              [("v", vXw)] + R("v", ra, 2) + R("v", rb, 2), [], cost=5,
              rtag={**{x: ("Y", P, key, 0) for x in R("v", ra, 2)}, **{x: ("Y", P, key, 1) for x in R("v", rb, 2)}},
              lds_w=[(slot, ("X", P, key))])


XT = 0
XTB = 8 * UNIT


def stage_read(P, key, slot):
    kb, kind, y = key
    if kind == "s":
        f, a = acc(1, kb, y)
        nw = (1, kb, y)
        so, imm = f"s{sStA},{(32 * P + y) * ROWB}", 384 + 128 * kb
    else:
        p = 0 if kind == 0 else 5
        if kb == 0:
            yy = y + (0 if kind == 0 else 4)
            f, a = acc(2, kb, yy)
            nw = (2, kb, yy)
        else:
            f, a = acc(p, kb, 2 * y)
            nw = (3 if p == 0 else 4, kb, 2 * y)
        so, imm = f"s{sStY},{(32 * P + 2 * y) * ROWB}", kind * 384 + 128 * kb
    off = slot[0] * UNIT + slot[1] * 4096
    base = vU
    if off > 65535:
        base, off = XT, off - XTB
    rd = Op(f"ds_read_b128 {rr(f, a, 4)},v{base} offset:{off}", "dsr", [("v", base)], R(f, a, 4),
            wtag={x: ("L", P, key) for x in R(f, a, 4)}, lds_r=[(slot, ("X", P, key))],
            rtag={("v", XT): ("XT", P)} if base == XT else None)
    dl = first_w[(P + 1,) + nw] - 2 if P + 1 < NPASS else BIG
    s = Op(f"s_add_u32 s{sSt},{so}", "salu", [], [("s", sSt)])
    if CFG["nost"]:
        st = Op("v_nop", "valu", R(f, a, 4), [], deadline=dl, after=[(rd, 5)])
    else:
        st = Op(f"buffer_store_dwordx4 {rr(f, a, 4)},v{vSt},s[{sO}:{sO + 3}],s{sSt} offen offset:{imm}{CFG['stf']}", "vst",
                R(f, a, 4) + [("v", vSt), ("s", sSt)], [], cost=6, deadline=dl, rtag={x: ("L", P, key) for x in R(f, a, 4)},
                after=[(rd, 5)])
    return rd, [s, st]


def sw_block(P, kb, y, slot):
    ops = []
    rel = last_w[(P, 4, kb, y)] + 3
    a1, a2, m3, m4 = acc(1, kb, y)[1], acc(2, kb, y)[1], acc(3, kb, y)[1], acc(4, kb, y)[1]
    pk = [tv(0), tv(2)]
    key = (kb, "s", y)
    for h in range(2):
        us, t2s = [pk[1] + h, tv(4)], [pk[0] + h, tv(5)]
        t1 = tv(6)
        for e in range(2):
            i = 2 * h + e
            u, t2 = us[e], t2s[e]
            M3, M4 = m3 + i, m4 + i
            dl0 = first_w[(P, 0, kb, y)] - 2
            dl3 = first_w[(P, 5, kb, y)] - 2
            ops.append(Op(f"v_accvgpr_read_b32 v{t1},a{a1 + i}", "valu", [("a", a1 + i)], [("v", t1)], release=rel,
                          rtag={("a", a1 + i): ("M", P, 1, kb, y, 18)}))
            ops.append(Op(f"v_accvgpr_read_b32 v{t2},a{a2 + i}", "valu", [("a", a2 + i)], [("v", t2)],
                          rtag={("a", a2 + i): ("M", P, 2, kb, y, 18)}))
            ops.append(V(f"v_add_f32 v{u},v{t1},v{t2}", [t1, t2], [u]))
            ops.append(V(f"v_sub_f32 v{t1},v{t1},v{t2}", [t1, t2], [t1]))
            ops.append(V(f"v_add_f32 v{t2},v{M3},v{M4}", [M3, M4], [t2],
                         rtag={("v", M3): ("M", P, 3, kb, y, 18), ("v", M4): ("M", P, 4, kb, y, 18)}))
            ops.append(V(f"v_sub_f32 v{M4},v{M3},v{M4}", [M3, M4], [M4]))
            ops.append(V(f"v_add_f32 v{M3},v{u},v{t2}", [u, t2], [M3], wtag={("v", M3): ("M", P, 0, kb, y, 0)}, deadline=dl0))
            ops.append(V(f"v_fmac_f32 v{u},4.0,v{t2}", [u, t2], [u]))
            ops.append(V(f"v_fma_f32 v{t2},2.0,v{M4},v{t1}", [M4, t1], [t2]))
            ops.append(Op(f"v_fma_f32 v{M4},s{s8},v{M4},v{t1}", "valu", [("v", M4), ("v", t1)], [("v", M4)],
                          wtag={("v", M4): ("M", P, 5, kb, y, 0)}, deadline=dl3))
        for m, src in ((1, t2s), (2, us)):
            d = pk[m - 1] + h
            ops.append(V(f"v_cvt_pk_bf16_f32 v{d},v{src[0]},v{src[1]}", src, [d], wtag={("v", d): ("Y", P, key, m - 1)}))
    ops.append(stage_write(P, key, slot, pk[0], pk[1]))
    return ops


def fin_block(P, kb, m, yp, slot):
    ops = []
    p = 0 if m == 0 else 5
    key = (kb, m, yp)
    for k in range(2):
        y = 2 * yp + k
        a = acc(p, kb, y)[1]
        for h in range(2):
            ops.append(V(f"v_cvt_pk_bf16_f32 v{a + h},v{a + 2 * h},v{a + 2 * h + 1}", [a + 2 * h, a + 2 * h + 1], [a + h],
                         release=last_w[(P, p, kb, y)] + 3,
                         rtag={("v", a + 2 * h + 1): ("M", P, p, kb, y, 18)}, wtag={("v", a + h): ("Y", P, key, k)}))
    ops.append(stage_write(P, key, slot, acc(p, kb, 2 * yp)[1], acc(p, kb, 2 * yp + 1)[1]))
    return ops


S_main, S_ld, S_x, S_st = [], [], [], []
pending_bars = []


def flush_bars():
    for pos, lag, b in sorted(pending_bars, key=lambda x: -x[0]):
        while lag > 0 and pos < len(S_main) and S_main[pos].kind == "valu":
            pos += 1
            lag -= 1
        S_main.insert(pos, b)
    pending_bars.clear()


PB = [0, 12, 24, 36]
PH = 48
pro_loads = []
for j in range(4):
    pro_loads += main_loads(0, 0, j, PB[j], first=True)[0]
pro_loads += halo_loads(0, 0, PH)
NPRO0 = len(pro_loads)

prev_wr = {0: None, 1: None}
prev_hfree = None
ld_ops = {}
in_ld = set()


def add_loads(P, c, j):
    b = j % 2
    o, dep = main_loads(P, c, j, BUF[b])
    ld_ops[(P, c, j)] = o[-1]
    pw = prev_wr[b]
    tch = after_touches(P, c, j)
    if pw is None:
        pro_loads.extend(o + tch)
        return
    for op in tch:
        op.target = -BIG
        op.after = [(o[-1], CFG["tlag"])]
    o[0].after = [(pw[dep[0][1]], -1)]
    for op in o:
        if op.name == "touch":
            op.after = [(pw[0], 0)]
    for op, slot in dep:
        op.after = [(pw[slot], 0)]
    prev = None
    for op in o:
        op.target = -BIG
        if op.kind == "vld":
            if prev is not None and CFG["ldsp"] and not (prev.name == "touch" and "nt" in prev.text):
                op.after.append((prev, CFG["ldsp"]))
            prev = op
    S_ld.extend(o + tch)
    in_ld.add(id(o[-1]))


def add_halo_loads(P, c, extra_after=()):
    o = halo_loads(P, c, HAL)
    ld_ops[(P, c, "h")] = o[-1]
    if prev_hfree is None:
        pro_loads.extend(o)
        return
    for op in o:
        op.after = [(prev_hfree, 1)] + list(extra_after)
        op.target = -BIG
    S_ld.extend(o)
    in_ld.add(id(o[-1]))


def add_round(P, c, j, rel, rel_late, dl, compute=True, write=True):
    b = j % 2
    if compute:
        ops = main_compute(P, c, j, BUF[b])
        if id(ld_ops[(P, c, j)]) in in_ld:
            ops[0].after = [(ld_ops[(P, c, j)], CFG["LATG"])]
        S_main.extend(ops)
    if write:
        ops, wr = main_writes(P, c, j, BUF[b], rel, rel_late)
        ops[-1].deadline = dl
        S_main.extend(ops)
        prev_wr[b] = wr


def add_halo(P, c, rel, rel_late, dl):
    global prev_hfree
    ops, fr = halo_compute(P, c, HAL, rel, rel_late)
    if id(ld_ops[(P, c, "h")]) in in_ld:
        ops[0].after = [(ld_ops[(P, c, "h")], CFG["LATG"])]
    ops[-1].deadline = dl
    S_main.extend(ops)
    prev_hfree = fr


reads_prev = []
unread = []
stores = []


def unit(P, key, slot, rel=-BIG):
    ops = sw_block(P, key[0], key[2], slot) if key[1] == "s" else fin_block(P, key[0], key[1], key[2], slot)
    ops[-1].release = max(ops[-1].release, rel)
    S_main.extend(ops)
    unread.append((key, slot, ops[-1]))


def xbar(P, release=-BIG, extra_needs=(), lag=6):
    global reads_prev, unread
    b = Op("s_barrier", "bar", needs=[w for _, _, w in unread] + reads_prev + list(extra_needs), release=release,
           after=[(o, 4) for o in reads_prev + list(extra_needs)] + [(w, 3) for _, _, w in unread])
    pending_bars.append((len(S_main), lag, b))
    reads_prev = []
    for key, slot, _ in unread:
        rd, st = stage_read(P, key, slot)
        rd.after = [(b, 0)]
        rd.target = -BIG
        S_x.append(rd)
        reads_prev.append(rd)
        stores.append(st)
    unread = []
    if lag == 0:
        flush_bars()
    return b


add_loads(0, 1, 0)
add_loads(0, 1, 1)
add_halo_loads(0, 1)
for P in range(NPASS):
    for c in range(1, 6):
        rel = Bgap(P, c - 2)
        rel_late = Bmid(P) if c == 5 else rel
        dl = Bgap(P, c - 1) - 3
        n = nxt(P, c)
        for j in [0, 1, "h", 2, 3]:
            if j == "h":
                add_halo(P, c, rel, rel_late, dl)
                if n:
                    if n[1] == 0:
                        ha = halo_addr(n[0])
                        S_main.extend(ha)
                        add_halo_loads(n[0], n[1], [(ha[-1], 1)])
                    else:
                        add_halo_loads(*n)
            else:
                add_round(P, c, j, rel, rel_late, dl)
                if j < 2:
                    add_loads(P, c, j + 2)
                elif n:
                    add_loads(n[0], n[1], j - 2)
    more = P + 1 < NPASS
    dl = Bgap(P, 6) - 3
    ringA = [(4, 0), (4, 1), (5, 0), (5, 1)]
    ringB = [(u, h) for u in (2, 3) + X45(P) + (4, 5) for h in (0, 1)]
    reads_prev, stores = [], []
    if more:
        add_round(P + 1, 0, 0, None, None, dl, write=False)
    for k in range(4):
        for y in (2 * k, 2 * k + 1):
            unit(P, (0, "s", y), ringA[y % 4])
        xbar(P)
    nb = 0
    for batch in ([(1, "s", y) for y in range(4)], [(0, 0, y) for y in range(4)] + [(1, "s", 4), (1, "s", 5)],
                  [(1, "s", 6), (1, "s", 7)] + [(0, 3, y) for y in range(4)],
                  [(2, "s", y) for y in range(4)], [(1, 0, y) for y in range(4)] + [(2, "s", 4), (2, "s", 5)],
                  [(2, "s", 6), (2, "s", 7)] + [(1, 3, y) for y in range(4)]):
        for k, key in enumerate(batch):
            unit(P, key, ringB[6 * (nb % 2) + k], Bgap(P, 5))
        nb += 1
        xbar(P)
        if nb == 3 and more:
            S_x.append(V(f"v_add_u32 v{XT},{XTB},v{vU}", [vU], [XT], wtag={("v", XT): ("XT", P)}))
    if more:
        p0_reads = [op for op, v in v_ops if v["P"] == P and v["p"] == 0 and v["first"] >= P * NP + NP - 288]
        add_round(P + 1, 0, 1, None, None, dl, write=False)
        xbar(P, lag=0)
        for j in (0, 1):
            add_round(P + 1, 0, j, -BIG, -BIG, dl, compute=False)
            add_loads(P + 1, 0, j + 2)
        add_halo(P + 1, 0, -BIG, -BIG, dl)
        add_halo_loads(P + 1, 1)
        add_round(P + 1, 0, 2, -BIG, -BIG, dl)
        add_loads(P + 1, 1, 0)
        xbar(P, extra_needs=p0_reads[-1:], lag=0)
        for y in range(4):
            unit(P, (2, 0, y), [(8, 0), (8, 1), (10, 0), (10, 1)][y])
        xbar(P)
        for op in reads_prev:
            op.deadline = dl
        add_round(P + 1, 0, 3, -BIG, -BIG, dl)
        add_loads(P + 1, 1, 1)
        for y in range(4):
            unit(P, (2, 3, y), [(12, 0), (12, 1), (14, 0), (14, 1)][y])
        xbar(P)
        for op in reads_prev:
            op.deadline = Bgap(P + 1, 0) - 3
    else:
        flush_bars()
        for y in range(4):
            unit(P, (2, 0, y), ringB[y])
        xbar(P, lag=0)
        for y in range(4):
            unit(P, (2, 3, y), ringB[6 + y])
        xbar(P, lag=0)
    t = P * NP + float(CFG["st0"])
    gap = CFG["st_gap"] if more else (NP - 30 - CFG["st0"]) / 44.0
    for s, st in stores:
        s.release = st.release = int(t) if t < NM - 8 else -BIG
        s.target = st.target = int(t)
        s.after = list(st.after)
        t += gap
        S_st.extend([s, st])
flush_bars()


def propagate(st, rate):
    nd = BIG
    for op in reversed(st):
        if nd < BIG:
            nd -= (op.cost if op.cost else 0.0) / rate + (0.34 if op.mem or op.kind == "bar" else 0)
        op.deadline = min(op.deadline, nd)
        nd = min(nd, op.deadline)
    for op in st:
        if op.deadline < BIG:
            op.deadline = int(op.deadline // 1)


propagate(S_st, 8.0)
for st in (S_st, S_x):
    for s in st:
        for a, d in s.after:
            a.deadline = min(a.deadline, s.deadline - d)
    propagate(S_x, 4.0)
propagate(S_main, 4.0)
for op in S_main:
    if op.target is None:
        op.target = op.deadline + 1000

streams = [S_U, S_V, S_ld, S_x, S_st, S_main]
bud = [2.0] * (NM // 288)
best = None
for it in range(6):
    for st in streams:
        for op in st:
            op.gap = None
    for op in pro_loads + pro_U + pro_V:
        op.gap = -BIG
    gaps, late = schedule(NM, streams, fixed, lambda g: bud[g // 288])
    tot = [0] * (NM // 288)
    und = [0] * (NM // 288)
    for g, cur in enumerate(gaps[:-1]):
        tot[g // 288] += max(2, cur["used"])
        und[g // 288] += max(0, 2 - cur["used"])
    est = sum(8 + 4 * max(2, c["used"]) for c in gaps[:-1])
    print(f"; iter {it}: est {est} cycles, late {len(late)}, tail ops {len(gaps[-1]['valu'])}, phases {[round(t / 288, 2) for t in tot]} "
          f"underfill {und}", file=sys.stderr)
    for w in range(len(bud)):
        bud[w] = max(2.0, 0.5 * bud[w] + 0.5 * (tot[w] - und[w]) / 288)
for op, g in late[:20]:
    print("; late", op.text, op.deadline, g, file=sys.stderr)

em = Emitter()
S = lambda t, rd=(), wr=(): em.raw(t, "salu", [("s", x) for x in rd], [("s", x) for x in wr])
VV = lambda t, rd=(), wr=(), srd=(), swr=(): em.raw(t, "valu", [("v", x) for x in rd] + [("s", x) for x in srd],
                                                    [("v", x) for x in wr] + [("s", x) for x in swr])
nst = [0]
vDBG = vJ + 1
assert vDBG <= 255 or not CFG['dbg']


def stamp():
    if not CFG["dbg"]:
        return
    if nst[0] > 0:
        S(f"v_writelane_b32 v{vDBG},s98,{nst[0] - 1}")
    S("s_memrealtime s[98:99]" if CFG["dbg"] == 4 else "s_memtime s[98:99]")
    nst[0] += 1


def pstamp():
    if CFG["dbg"] == 4:
        S("s_waitcnt lgkmcnt(0)")
        stamp()


def u_item(tag, loop):
    L = [f"L_item{tag}:"]
    A = L.append
    A("s_and_b32 s85,s84,3\ns_lshr_b32 s86,s84,2")
    A("s_mul_hi_u32 s87,s86,0x55555556\ns_mul_i32 s88,s87,3\ns_sub_u32 s86,s86,s88")
    A("s_mul_hi_u32 s88,s87,0x2aaaaaab\ns_mul_i32 s89,s88,6\ns_sub_u32 s87,s87,s89")
    A("s_mul_i32 s89,s86,221184\ns_mul_i32 s90,s87,12288\ns_add_u32 s89,s89,s90\ns_mul_i32 s90,s85,3072\ns_add_u32 s89,s89,s90")
    A("s_lshl_b32 s90,s88,7\ns_add_u32 s89,s89,s90\ns_add_u32 s90,s89,73728\ns_add_u32 s91,s90,73728")
    A(f"v_lshlrev_b32 v149,1,v{ln}")
    for s in range(3):
        for e in range(8):
            A(f"buffer_load_short_d16_hi v{68 + s * 8 + e},v149,s[36:39],s{89 + s} offen offset:{e * 384}")
    A(f"v_lshrrev_b32 v150,4,v{ln}\nv_mul_u32_u24 v150,{UWAVE},v150\nv_and_b32 v148,15,v{ln}\nv_lshl_add_u32 v150,v148,4,v150")
    A(f"s_mul_i32 s87,s87,{18 * 3072}\ns_mul_i32 s88,s88,3072\ns_add_u32 s87,s87,s88\ns_lshl_b32 s86,s86,10\ns_add_u32 s87,s87,s86")
    A("s_lshl_b32 s85,s85,8\ns_add_u32 s87,s87,s85")
    A(f"s_mov_b32 s85,{fbits(-1 / 6):#x}\ns_mov_b32 s86,{fbits(1 / 24):#x}\ns_mov_b32 s88,{fbits(1 / 6):#x}\ns_mov_b32 s92,{fbits(1 / 12):#x}")
    A("s_waitcnt vmcnt(0)")
    for e in range(8):
        g0, g1, g2 = 68 + e, 76 + e, 84 + e
        A(f"v_add_f32 v148,v{g0},v{g2}\nv_add_f32 v{92 + e},v148,v{g1}\nv_sub_f32 v{100 + e},v148,v{g1}")
        A(f"v_mul_f32 v{92 + e},s85,v{92 + e}\nv_mul_f32 v{100 + e},s85,v{100 + e}")
        A(f"v_mul_f32 v148,s86,v{g0}\nv_fmac_f32 v148,s88,v{g2}\nv_fma_f32 v{108 + e},s92,v{g1},v148\nv_fma_f32 v{116 + e},-s92,v{g1},v148")
    for p, src in ((0, 68), (5, 84), (1, 92), (2, 100), (3, 108), (4, 116)):
        for e in range(4):
            A(f"v_cvt_pk_bf16_f32 v{124 + 4 * p + e},v{src + 2 * e},v{src + 2 * e + 1}")
        A(f"s_add_u32 s89,s87,{p * 9216}")
        A(f"buffer_store_dwordx4 v[{124 + 4 * p}:{127 + 4 * p}],v150,s[{sUs}:{sUs + 3}],s89 offen sc1")
    if loop:
        A(f"s_waitcnt vmcnt(0)\ns_add_u32 s84,s84,1\ns_cmp_lt_u32 s84,216\ns_cbranch_scc1 L_item{tag}")
    return "\n".join(L)


t0, t1, t2, t3, ln = 60, 61, 62, 63, 64
S("s_cmp_ge_u32 s2,256")
S("s_cbranch_scc0 L_go\ns_endpgm\nL_go:")
if CFG["dbg"]:
    S("s_memrealtime s[96:97]")
stamp()
if CFG["padus"]:
    S("s_memrealtime s[96:97]")


def pad():
    S(f"s_waitcnt vmcnt(0) lgkmcnt(0)\nL_pad:\ns_memrealtime s[94:95]\ns_waitcnt lgkmcnt(0)\ns_sub_u32 s94,s94,s96\ns_cmp_lt_u32 s94,{100 * CFG['padus']}\ns_cbranch_scc1 L_pad")


S("s_load_dwordx4 s[4:7],s[0:1],0")
S(f"s_load_dwordx4 s[{sO}:{sO + 3}],s[0:1],16")
S("s_load_dwordx2 s[52:53],s[0:1],32")
VV(f"v_lshrrev_b32 v{t0},6,v0", [0], [t0])
VV(f"v_and_b32 v{ln},63,v0", [0], [ln])
VV(f"v_readfirstlane_b32 s{sWv},v{t0}", [t0], [], [], [sWv])
VV(f"v_lshrrev_b32 v{t0},4,v{ln}", [ln], [t0])
VV(f"v_bfe_u32 v{t1},v{ln},3,1", [ln], [t1])
VV(f"v_lshl_add_u32 v{t1},v{t0},3,v{t1}", [t0, t1], [t1])
VV(f"v_and_b32 v{t2},7,v{ln}", [ln], [t2])
VV(f"v_mul_u32_u24 v{vRaw},{ROWB},v{t1}", [t1], [vRaw])
VV(f"v_lshl_add_u32 v{vRaw},v{t2},3,v{vRaw}", [t2, vRaw], [vRaw])
VV(f"v_lshlrev_b32 v{vU},4,v0", [0], [vU])
VV(f"v_bfe_u32 v{t3},v{ln},2,1", [ln], [t3])
VV(f"v_mul_u32_u24 v{t3},{384 if CFG['same'] >= 2 else 768},v{t3}", [t3], [t3])
VV(f"v_mul_u32_u24 v{vT},{ROWB},v{t1}", [t1], [vT])
VV(f"v_add_u32 v{vT},v{vT},v{t3}", [t3, vT], [vT])
S("s_and_b32 s54,s2,7", [2], [54])
S("s_lshr_b32 s55,s2,3", [2], [55])
S(f"s_lshl_b32 s{sY0},s54,6", [54], [sY0])
S("s_lshl_b32 s55,s55,4", [55], [55])
S(f"s_lshl_b32 s56,s{sWv},2", [sWv], [56])
S("s_add_u32 s56,s56,s55", [55, 56], [56])
S(f"s_mul_i32 s{sCol},s56,384", [56], [sCol])
S(f"s_mul_i32 s57,s{sY0},{ROWB}", [sY0], [57])
S(f"s_add_u32 s{sRawB},s57,s{sCol}", [57, sCol], [sRawB])
S(f"s_mul_i32 s{sUW},s{sWv},{UWAVE - 1024}", [sWv], [sUW])
if CFG["par"]:
    S(f"s_bfe_u32 s58,s2,{0x10000 + (0 if CFG['par'] == 1 else 3)}")
else:
    S("s_mov_b32 s58,0")
for c in range(6):
    S(f"s_add_u32 s59,s58,{c}")
    if c == 5:
        S("s_cmp_eq_u32 s59,6\ns_cselect_b32 s59,0,s59")
    S(f"s_mul_i32 s60,s59,{18 * 3072}\ns_lshl_b32 s59,s59,6")
    S(f"s_add_u32 s{sRawC + c},s{sRawB},s59\ns_add_u32 s{sColC + c},s{sCol},s59\ns_add_u32 s{sUC + c},s{sUW},s60")
S("s_waitcnt lgkmcnt(0)")
S(f"s_mov_b32 s{sUs},s52"); S(f"s_and_b32 s{sUs + 1},s53,0xffff"); S(f"s_mov_b32 s{sUs + 2},{4 * UWAVE}"); S(f"s_mov_b32 s{sUs + 3},0x20000")
if CFG["fuse"]:
    S("s_mov_b32 s36,s6\ns_and_b32 s37,s7,0xffff\ns_mov_b32 s38,663552\ns_mov_b32 s39,0x20000")
    S(f"s_mov_b32 s60,s{sO + 2}\ns_and_b32 s61,s{sO + 3},0xffff\ns_mov_b32 s62,0\ns_mov_b32 s63,0x20000")
    S(f"s_mov_b32 s52,s{sO + 2}\ns_mov_b32 s53,s{sO + 3}")
    pstamp()
    S("v_mov_b32 v66,1\ns_cmp_lt_u32 s2,54\ns_cbranch_scc0 L_noitem")
    S(f"s_lshl_b32 s84,s2,2\ns_add_u32 s84,s84,s{sWv}\ns_mov_b32 s62,256\n" + u_item("P", False) + "\ns_waitcnt vmcnt(0)\nL_noitem:")
    pstamp()
    S(f"s_and_b32 s84,s{sWv},1\ns_lshl_b32 s85,s84,6\ns_lshl_b32 s84,s84,2\ns_mov_b64 exec,1")
    em.put(Op("buffer_atomic_add v66,off,s[60:63],s85 sc0 sc1", "vld", [("v", 66)], [("v", 66)], cost=0))
    S("s_mov_b64 exec,-1")
S(f"s_mov_b32 s{sX},s4"); S(f"s_and_b32 s{sX + 1},s5,0xffff"); S(f"s_mov_b32 s{sX + 2},{XB}"); S(f"s_mov_b32 s{sX + 3},0x20000")
S(f"s_sub_u32 s{sXL},s4,384"); S(f"s_subb_u32 s{sXL + 1},s{sX + 1},0")
S("s_cmp_eq_u32 s56,0"); S(f"s_cselect_b32 s{sXL + 2},0,{XB + 384}"); S(f"s_mov_b32 s{sXL + 3},0x20000")
S(f"s_mov_b32 s{sXR},s4"); S(f"s_mov_b32 s{sXR + 1},s{sX + 1}")
S("s_cmp_eq_u32 s56,508"); S(f"s_cselect_b32 s{sXR + 2},0,{XB}"); S(f"s_mov_b32 s{sXR + 3},0x20000")
for op in halo_addr(0):
    em.put(op)
nb0 = [i for i, op in enumerate(pro_loads) if op.kind == "salu" and f"s{sRaw}," in op.text][CFG["aw"]]
for i, op in enumerate(pro_loads[:NPRO0]):
    em.put(op)
    if i + 1 == nb0 and CFG["fuse"]:
        S("s_mov_b64 exec,1")
        VV("v_cmp_eq_u32 vcc,107,v66", [66], [])
        VV("v_mov_b32 v65,1", [], [65])
        S("s_nop 2\ns_and_b64 exec,exec,vcc\ns_cselect_b32 s62,s62,0\ns_mov_b64 exec,1")
        em.put(Op("buffer_store_dword v65,off,s[60:63],s84 offset:128 sc1", "vst", [("v", 65)], [], cost=0))
        S("s_mov_b64 exec,-1")
        pstamp()
if CFG["ctouch"]:
    S("s_getpc_b64 s[58:59]")
    S(f"s_lshr_b32 s84,s2,3\ns_lshl_b32 s84,s84,2\ns_add_u32 s84,s84,s{sWv}\ns_lshl_b32 s84,s84,10")
    VV(f"v_and_b32 v65,7,v{ln}", [ln], [65])
    VV(f"v_lshl_add_u32 v65,v65,7,s84", [65], [65])
    VV(f"v_min_u32 v65,L_code_end-L_go-4096,v65", [65], [65])
    em.put(Op("global_load_dword v67,v65,s[58:59]", "vld", [("v", 65)], [("v", 67)]))
if not CFG["fuse"]:
    for op in pro_U:
        em.put(op)
S(f"s_and_b32 s{sO + 1},s{sO + 1},0xffff"); S(f"s_mov_b32 s{sO + 2},{XB}"); S(f"s_mov_b32 s{sO + 3},0x20000")
S(f"s_mov_b32 s{sM5},{fbits(-5.0):#x}"); S(f"s_mov_b32 s{s8},{fbits(8.0):#x}"); S(f"s_mov_b32 s{sMask},0xffff0000")
S(f"s_mov_b32 s{sM125},{fbits(-1.25):#x}"); S(f"s_mov_b32 s{s025},{fbits(0.25):#x}")
S("s_mul_i32 s58,s55,384", [55], [58])
S("s_add_u32 s58,s57,s58", [57, 58], [58])
S(f"s_lshr_b32 s59,s{sWv},1", [sWv], [59])
S(f"s_mul_i32 s{sStA},s59,384", [59], [sStA])
S(f"s_mul_i32 s{sStY},s59,{ROWB}", [59], [sStY])
S(f"s_add_u32 s{sStA},s{sStA},s58", [58, sStA], [sStA])
S(f"s_add_u32 s{sStY},s{sStY},s58", [58, sStY], [sStY])
S(f"s_lshl_b32 s59,s{sWv},6", [sWv], [59])
VV(f"v_lshlrev_b32 v{vW},8,v{t1}", [t1], [vW])
VV(f"v_and_b32 v{t3},1,v{t0}", [t0], [t3])
VV(f"v_xor_b32 v{t3},1,v{t3}", [t3], [t3])
VV(f"v_lshlrev_b32 v{t3},2,v{t3}", [t3], [t3])
VV(f"v_xor_b32 v{t3},v{t3},v{t2}", [t3, t2], [t3])
VV(f"v_lshl_add_u32 v{vW},v{t3},3,v{vW}", [t3, vW], [vW])
VV(f"v_add_u32 v{vW},s59,v{vW}", [vW], [vW], [59])
VV(f"v_add_u32 v{vW},256,v{vW}", [vW], [vW])
VV(f"v_lshrrev_b32 v{t0},5,v{ln}", [ln], [t0])
VV(f"v_mul_u32_u24 v{vHW},{33 * 256},v{t0}", [t0], [vHW])
VV(f"v_lshlrev_b32 v{t0},5,v{t0}", [t0], [t0])
VV(f"v_bfe_u32 v{t1},v{vU},3,6", [vU], [t1])
VV(f"v_xor_b32 v{t1},v{t1},v{t0}", [t0, t1], [t1])
VV(f"v_add3_u32 v{vHW},v{vHW},v{t1},s59", [vHW, t1], [vHW], [59])
VV(f"v_bfe_u32 v{t0},v{ln},2,2", [ln], [t0])
VV(f"v_and_b32 v{t1},3,v{ln}", [ln], [t1])
VV(f"v_lshrrev_b32 v{t2},4,v{ln}", [ln], [t2])
VV(f"v_lshlrev_b32 v{vRA},11,v{t0}", [t0], [vRA])
VV(f"v_lshl_add_u32 v{vRA},v{t1},6,v{vRA}", [t1, vRA], [vRA])
VV(f"v_and_b32 v{t3},1,v{t0}", [t0], [t3])
VV(f"v_lshlrev_b32 v{t3},1,v{t3}", [t3], [t3])
VV(f"v_xor_b32 v{t3},v{t3},v{t2}", [t3, t2], [t3])
VV(f"v_lshl_add_u32 v{vRA},v{t3},4,v{vRA}", [t3, vRA], [vRA])
VV(f"v_xor_b32 v{vRB},32,v{vRA}", [vRA], [vRB])
VV(f"v_lshrrev_b32 v{t0},1,v{t2}", [t2], [t0])
VV(f"v_lshl_add_u32 v{t0},s{sWv},1,v{t0}", [t0], [t0], [sWv])
VV(f"v_and_b32 v{t1},7,v{ln}", [ln], [t1])
VV(f"v_xor_b32 v{t0},v{t0},v{t1}", [t0, t1], [t0])
VV(f"v_and_b32 v{t3},15,v{ln}", [ln], [t3])
VV(f"v_lshlrev_b32 v{vXw},7,v{t3}", [t3], [vXw])
VV(f"v_lshl_add_u32 v{vXw},v{t0},4,v{vXw}", [t0, vXw], [vXw])
VV(f"v_and_b32 v{t3},1,v{t2}", [t2], [t3])
VV(f"v_lshl_add_u32 v{vXw},v{t3},3,v{vXw}", [t3, vXw], [vXw])
VV(f"v_bfe_u32 v{t0},v{vU},7,4", [vU], [t0])
VV(f"v_lshrrev_b32 v{t2},2,v{t0}", [t0], [t2])
VV(f"v_mul_u32_u24 v{vSt},{8 * ROWB},v{t2}", [t2], [vSt])
VV(f"v_and_b32 v{t2},3,v{t0}", [t0], [t2])
VV(f"v_mul_u32_u24 v{t2},1536,v{t2}", [t2], [t2])
VV(f"v_and_b32 v{t0},7,v{t0}", [t0], [t0])
VV(f"v_xor_b32 v{t0},v{t0},v{t1}", [t0, t1], [t0])
VV(f"v_lshl_add_u32 v{t0},v{t0},4,v{t2}", [t0, t2], [t0])
VV(f"v_add_u32 v{vSt},v{vSt},v{t0}", [t0, vSt], [vSt])
stamp()
rest = pro_loads[NPRO0:]


def poll_and_rest():
    if CFG["fuse"]:
        VV(f"v_and_b32 v65,1,v{ln}", [ln], [65])
        VV("v_lshlrev_b32 v65,2,v65", [65], [65])
        pstamp()
        S("s_mov_b32 s84,0\nL_poll:\nglobal_load_dword v66,v65,s[52:53] offset:128 sc1\ns_add_u32 s84,s84,1\ns_waitcnt vmcnt(0)")
        S("v_cmp_eq_u32 vcc,0,v66\ns_cmp_gt_u32 s84,0x4000\ns_cbranch_scc1 L_fallback\ns_cbranch_vccnz L_poll\nL_uready:")
        em.vm_done = len(em.vm)
        stamp()
        for op in pro_U:
            em.put(op)
    for op in rest:
        em.put(op)


for j in range(4):
    for k, op in enumerate(main_compute(0, 0, j, PB[j])):
        em.put(op)
        if j == 0 and k == 17:
            stamp()
    for op in main_writes(0, 0, j, PB[j], -BIG, -BIG)[0]:
        em.put(op)
    if j == CFG["pollj"]:
        poll_and_rest()
for op in halo_compute(0, 0, PH, -BIG, -BIG)[0]:
    em.put(op)
if CFG["pollj"] == 4:
    poll_and_rest()
stamp()
em.put(Op("s_barrier", "bar"))
for op in pro_V:
    em.put(op)
stamp()
nfree = 0
stamp_gaps = set(P * NP + 288 * k - 1 for P in range(NPASS) for k in range(1, 10))
probe = set()
if CFG["dbg"] == 3:
    stamp_gaps = set()
    probe = set(id(ld_ops[k]) for k in [(0, 2, 1), (0, 2, 3), (0, 3, 1), (0, 3, 3), (0, 4, 2), (1, 0, 3), (1, 2, 2), (1, 3, 2), (1, 4, 1)])
if CFG["padus"] and CFG["padat"] == -1:
    pad()
for g in range(NM):
    em.put(mf[g])
    if CFG["padus"] and g == CFG["padat"]:
        pad()
    if g in stamp_gaps and g < NM - 1:
        stamp()
    cur = gaps[g]
    body = cur["sc"] + cur["mem"] + cur["valu"]
    if g < NM - 1:
        w = em.wait_for(body + [mf[g + 1]])
        if w and cur["sc"] and cur["sc"][0].kind != "bar":
            nfree += 1
    for op in body:
        em.put(op)
        if id(op) in probe:
            S("s_waitcnt lgkmcnt(0)")
            stamp()
            S("s_waitcnt vmcnt(0) lgkmcnt(0)")
            stamp()
            S("s_waitcnt lgkmcnt(0)")
if CFG["padus"] and CFG["padat"] == -2:
    pad()
if CFG["dbg"]:
    stamp()
    S("s_waitcnt vmcnt(0) lgkmcnt(0)")
    stamp()
    S("s_memrealtime s[94:95]")
    S("s_waitcnt lgkmcnt(0)")
    S(f"v_writelane_b32 v{vDBG},s98,{nst[0] - 1}")
    S(f"s_sub_u32 s94,s94,s96\nv_writelane_b32 v{vDBG},s94,{nst[0]}\nv_writelane_b32 v{vDBG},s96,{nst[0] + 1}")
    S(f"s_getreg_b32 s95,hwreg(HW_REG_XCC_ID)\nv_writelane_b32 v{vDBG},s95,{nst[0] + 2}")
    S(f"s_mov_b32 s{sUs + 2},0x1000000")
    S(f"s_lshl_b32 s54,s2,2\ns_add_u32 s54,s54,s{sWv}\ns_lshl_b32 s54,s54,7\ns_add_u32 s54,s54,0x400000")
    S(f"v_bfe_u32 v1,v{vU},4,6\nv_lshlrev_b32 v1,2,v1\ns_mov_b64 exec,0xffffffff\ns_mov_b32 exec_hi,0")
    S(f"buffer_store_dword v{vDBG},v1,s[{sUs}:{sUs + 3}],s54 offen")
    if CFG["dbg"] == 2:
        S("s_load_dwordx2 s[4:5],s[0:1],24\ns_waitcnt lgkmcnt(0)")
        S(f"s_lshl_b32 s54,s2,2\ns_add_u32 s54,s54,s{sWv}\ns_cmp_eq_u32 s54,400\ns_cbranch_scc0 L_nodbg")
        S(f"v_mov_b32 v2,v{vDBG}\ns_nop 1\nv_sub_u32_dpp v2,v{vDBG},v{vDBG} row_shl:1 row_mask:0xf bank_mask:0xf\ns_nop 1\nv_writelane_b32 v2,s94,15\ns_mov_b64 exec,0xffff")
        S("global_store_dword v1,v2,s[4:5]")
        S("L_nodbg:")
    print("; stamps", nst[0], file=sys.stderr)
print(f"; waits {em.nwait} nops {em.nnop} wait+scalar clashes {nfree} instrs {len(em.out)}", file=sys.stderr)
main_lines = em.lines()

U = []
A = U.append
A("s_cmp_ge_u32 s2,216\ns_cbranch_scc1 L_uend")
A("s_load_dwordx2 s[4:5],s[0:1],8\ns_load_dwordx2 s[6:7],s[0:1],32")
A("s_mul_hi_u32 s20,s2,0x55555556\ns_mul_i32 s21,s20,3\ns_sub_u32 s21,s2,s21")
A("s_mul_hi_u32 s22,s20,0x55555556\ns_mul_i32 s23,s22,3\ns_sub_u32 s23,s20,s23")
A("s_mul_hi_u32 s24,s22,0x2aaaaaab\ns_mul_i32 s25,s24,6\ns_sub_u32 s25,s22,s25")
A("v_and_b32 v1,15,v0\nv_lshrrev_b32 v2,4,v0")
A("s_lshl_b32 s26,s23,6\ns_lshl_b32 s27,s24,4\ns_add_u32 s26,s26,s27\nv_add_u32 v3,s26,v1\nv_lshlrev_b32 v3,1,v3")
A("v_mul_u32_u24 v4,3072,v2\nv_add_u32 v3,v3,v4")
A("s_mul_i32 s26,s21,221184\ns_mul_i32 s27,s25,12288\ns_add_u32 s26,s26,s27\ns_add_u32 s27,s26,73728\ns_add_u32 s28,s27,73728")
A("s_waitcnt lgkmcnt(0)")
A("s_mov_b32 s8,s4\ns_and_b32 s9,s5,0xffff\ns_mov_b32 s10,663552\ns_mov_b32 s11,0x20000")
A(f"s_mov_b32 s12,s6\ns_and_b32 s13,s7,0xffff\ns_mov_b32 s14,{4 * UWAVE}\ns_mov_b32 s15,0x20000")
for s in range(3):
    for e in range(8):
        A(f"buffer_load_short_d16_hi v{8 + s * 8 + e},v3,s[8:11],s{26 + s} offen offset:{e * 384}")
A(f"s_mul_i32 s30,s24,{UWAVE}\ns_mul_i32 s31,s25,{18 * 3072}\ns_add_u32 s30,s30,s31\ns_mul_i32 s31,s23,3072\ns_add_u32 s30,s30,s31\n"
  "s_lshl_b32 s31,s21,10\ns_add_u32 s30,s30,s31")
A("v_lshlrev_b32 v5,4,v0")
A(f"s_mov_b32 s33,{fbits(-1 / 6):#x}\ns_mov_b32 s34,{fbits(1 / 24):#x}\ns_mov_b32 s35,{fbits(1 / 6):#x}\ns_mov_b32 s36,{fbits(1 / 12):#x}")
A("s_waitcnt vmcnt(0)")
for e in range(8):
    g0, g1, g2 = 8 + e, 16 + e, 24 + e
    A(f"v_add_f32 v6,v{g0},v{g2}\nv_add_f32 v{32 + e},v6,v{g1}\nv_sub_f32 v{40 + e},v6,v{g1}")
    A(f"v_mul_f32 v{32 + e},s33,v{32 + e}\nv_mul_f32 v{40 + e},s33,v{40 + e}")
    A(f"v_mul_f32 v6,s34,v{g0}\nv_fmac_f32 v6,s35,v{g2}\nv_fma_f32 v{48 + e},s36,v{g1},v6\nv_fma_f32 v{56 + e},-s36,v{g1},v6")
for p, src in ((0, 8), (1, 32), (2, 40), (3, 48), (4, 56), (5, 24)):
    for e in range(4):
        A(f"v_cvt_pk_bf16_f32 v{64 + 4 * p + e},v{src + 2 * e},v{src + 2 * e + 1}")
    A(f"s_add_u32 s31,s30,{p * 9216}")
    A(f"buffer_store_dwordx4 v[{64 + 4 * p}:{67 + 4 * p}],v5,s[12:15],s31 offen")
A("L_uend:\ns_endpgm")

KD = """.amdhsa_kernel {n}
  .amdhsa_next_free_vgpr {v}
  .amdhsa_next_free_sgpr {s}
  .amdhsa_accum_offset {a}
  .amdhsa_group_segment_fixed_size 0
  .amdhsa_kernarg_size 40
  .amdhsa_user_sgpr_count 2
  .amdhsa_user_sgpr_kernarg_segment_ptr 1
  .amdhsa_system_sgpr_workgroup_id_x 1
  .amdhsa_float_denorm_mode_32 3
.end_amdhsa_kernel"""
out = []
if CFG["fuse"]:
    out.append(f"; @launch grid=(256,1,1) block=(256,1,1) lds={18 * UNIT}")
else:
    out.append("; @launch kernel=wtrans_kernel grid=(216,1,1) block=(64,1,1) lds=0")
    out.append(f"; @launch kernel=standalone__winograd__vision_kernel grid=(256,1,1) block=(256,1,1) lds={18 * UNIT}")
out.append('.amdgcn_target "amdgcn-amd-amdhsa--gfx950"')
out.append(".macro M d,a,b,c\nv_mfma_f32_16x16x32_bf16 \\d,\\a,\\b,\\c\n.endm")
out.append(".text")
if not CFG["fuse"]:
    out.append(".globl wtrans_kernel\n.p2align 8\n.type wtrans_kernel,@function\nwtrans_kernel:")
    out += U
out.append(".globl standalone__winograd__vision_kernel\n.p2align 8\n.type standalone__winograd__vision_kernel,@function")
out.append("standalone__winograd__vision_kernel:")
out += main_lines
out.append("s_endpgm\nL_code_end:")
if CFG["fuse"]:
    out.append("L_fallback:\ns_mov_b32 s84,0\n" + u_item("F", True) + "\ns_branch L_uready")
out.append('.section .rodata,"a"\n.p2align 6')
if not CFG["fuse"]:
    out.append(KD.format(n="wtrans_kernel", v=96, s=48, a=96))
    out.append(".p2align 6")
out.append(KD.format(n="standalone__winograd__vision_kernel", v=512, s=102 if CFG["dbg"] or CFG["padus"] else 94, a=256))
print("\n".join(out))
```

```python
import sys
import struct
from sched import Op, R, schedule, Emitter, BIG

CFG = dict(D=11, E=8, LATG=30, st_gap=25.0, st0=1590, vlead=7, dbg=0, stf=" nt", nost=0, touch=0, ctouch=1, ptouch=0,
           ldsp=0, prom=1, tlag=0, par=0, fuse=1, aw=1, usc=1, pollj=1, ntall=0, same=0, ntodd=0, hnt=0, padat=-2, padus=0, noxb=0, xlag=6, utouch=0, ut0=1440, utsp=20, early=1450, cref=288, stf0='x', burst=1, drop0=0, drop1=0, sg0=0, sgs=24, nowait=0, earlysp=40, ak=0, nprod=54, npu=4)
for a in sys.argv[1:]:
    k, v = a.split("=")
    CFG[k] = type(CFG[k])(v)

XB = 100663296
ROWB = 196608
UNIT = 8704
NP = 2592
NPASS = 2
UWAVE = 324 * 1024
fbits = lambda x: struct.unpack("<I", struct.pack("<f", x))[0]

if CFG["dbg"]:
    CFG["D"] = min(CFG["D"], 11)
D, E = CFG["D"], CFG["E"]
BUF = [192, 204]
UV0 = 216
AV0, AU0 = 192, 192 + 4 * E
NUA = (256 - AU0) // 4
NUV = D - NUA
TMP = UV0 + 4 * NUV
HAL = TMP + 7
vRaw, vHalo, vW, vHW, vRA, vRB, vU, vSt, vXw, vT, vJ, vC, vTU = range(HAL + 6, HAL + 19)
assert vTU <= 255
sX, sXL, sXR, sUs, sO = 8, 12, 16, 20, 24
sRaw, sHalo, sRawB, sCol = 28, 29, 30, 31
sStA, sStY, sSt, sTo = 32, 33, 34, 35
sM5, s8, sMask, sM125, sUW, s025 = 40, 41, 42, 43, 44, 45
sU = 46
sY0, sWv, sUT = 49, 50, 51
sRawC, sColC, sUC = 64, 70, 76
sTU = 93


def acc(p, kb, y):
    o = (kb * 8 + y) * 4
    return {1: ("a", o), 2: ("a", 96 + o), 3: ("v", o), 4: ("v", 96 + o), 0: ("v", o), 5: ("v", 96 + o)}[p]


def uslot(n):
    s = n % D
    return ("a", AU0 + 4 * s) if s < NUA else ("v", UV0 + 4 * (s - NUA))


def vslot(n):
    return ("a", AV0 + 4 * (n % E))


rr = lambda f, a, n: f"{f}[{a}:{a + n - 1}]" if n > 1 else f"{f}{a}"


def LK(u, tag):
    return [((u, 0), tag), ((u, 1), tag)]


def X45(P):
    return (6, 7) if P % 2 == 0 else (0, 1)


def unit_of(P, c, p):
    x45 = X45(P)
    if p in (0, 5):
        i = 0 if p == 0 else 1
        if c == 0:
            return X45(P + 1)[i]
        if c == 5:
            return 8 + i
        return 10 + 2 * (c - 1) + i
    if c % 2 == 0:
        return 2 + (p - 1)
    if c < 5:
        return (x45[0], x45[1], 8, 9)[p - 1]
    return (x45[0], x45[1], 2, 3)[p - 1]


def nxt(P, c):
    return (P, c + 1) if c < 5 else ((P + 1, 0) if P + 1 < NPASS else None)


groups = []
for P in range(NPASS):
    for c in range(5):
        for p in (1, 2, 3, 4):
            groups.append((P, c, p, (0, 1, 2)))
    for p in (1, 2, 3, 4):
        groups.append((P, 5, p, (0,)))
    for p in (1, 2, 3, 4):
        groups.append((P, 5, p, (1, 2)))
    for kb in range(3):
        for p in (0, 5):
            for c in range(6):
                groups.append((P, c, p, (kb,)))

mf = []
ufr = []
vfr = []
cnt = {}
last_w = {}
first_w = {}
for (P, c, p, kbs) in groups:
    v0 = len(vfr)
    for rho in range(10):
        vfr.append(dict(P=P, c=c, p=p, rho=rho, first=None, last=None))
    for r in range(3):
        for kb in kbs:
            un = len(ufr)
            ufr.append(dict(P=P, c=c, p=p, kb=kb, r=r, first=len(mf), last=len(mf) + 7))
            for y in range(8):
                i = len(mf)
                vn = v0 + y + r
                if vfr[vn]["first"] is None:
                    vfr[vn]["first"] = i
                vfr[vn]["last"] = i
                f, a = acc(p, kb, y)
                uf, ua = uslot(un)
                vf, va = vslot(vn)
                key = (P, p, kb, y)
                n = cnt.get(key, 0)
                cnt[key] = n + 1
                init = n == 0 and p in (1, 2, 3, 4)
                csrc = "0" if init else rr(f, a, 4)
                rd = R(uf, ua, 4) + R(vf, va, 4) + ([] if init else R(f, a, 4))
                rtag = {x: ("U", un) for x in R(uf, ua, 4)}
                rtag.update({x: ("V", vn) for x in R(vf, va, 4)})
                if not init:
                    rtag.update({x: ("M", P, p, kb, y, n) for x in R(f, a, 4)})
                mf.append(Op(f"M {rr(f, a, 4)},{rr(uf, ua, 4)},{rr(vf, va, 4)},{csrc}", "mfma", rd, R(f, a, 4),
                             rtag=rtag, wtag={x: ("M", P, p, kb, y, n + 1) for x in R(f, a, 4)}))
                last_w[key] = i
                first_w.setdefault(key, i)
NM = len(mf)
assert NM == NP * NPASS


def Bgap(P, c):
    if c < 0:
        return Bgap(P - 1, 6) if P > 0 else -1
    if c <= 4:
        return P * NP + 288 * c + 278
    if c == 5:
        return P * NP + 1728 - 6
    return P * NP + NP - 10


def Bmid(P):
    return P * NP + 288 * 4 + 129


fixed = {}
for P in range(NPASS):
    lst = [Bgap(P, c) for c in range(6)] + [Bmid(P)]
    if P + 1 < NPASS:
        lst.append(Bgap(P, 6))
    for g in lst:
        fixed[g] = [Op("s_barrier", "bar")]

S_U = []
pro_U = []
cur_su = {}
for n, u in enumerate(ufr):
    off = (u["p"] * 3 + u["kb"]) * 3072
    rel = ufr[n - D]["last"] if n >= D else 2 * (n - CFG["npu"])
    dst = pro_U if n < (CFG["npu"] if CFG["fuse"] else D) else S_U
    kb = u["kb"]
    if cur_su.get(kb) != (u["c"], off):
        cur_su[kb] = (u["c"], off)
        dst.append(Op(f"s_add_u32 s{sU + kb},s{sUC + u['c']},{off}", "salu", [("s", sUC + u["c"])], [("s", sU + kb)], release=rel - 6,
                      target=rel - 6, deadline=rel + 4))
    f, a = uslot(n)
    dst.append(Op(f"buffer_load_dwordx4 {rr(f, a, 4)},v{vU},s[{sUs}:{sUs + 3}],s{sU + kb} offen offset:{u['r'] * 1024}{' sc1' if CFG['usc'] else ''}", "vld",
                  [("v", vU), ("s", sU + kb)], R(f, a, 4), release=rel, target=rel - 100, deadline=rel + 6,
                  wtag={x: ("U", n) for x in R(f, a, 4)}))

S_V = []
pro_V = []
v_ops = []
vbase = 0
offs = [unit_of(v["P"], v["c"], v["p"]) * UNIT + v["rho"] * 256 for v in vfr]
for n, v in enumerate(vfr):
    rel = vfr[n - E]["last"] if n >= E else -BIG
    rel = max(rel, Bgap(v["P"], v["c"] - 1))
    dst = pro_V if n < E else S_V
    dl = v["first"] - 5
    if v["p"] in (0, 5):
        if v["P"] + 1 < NPASS:
            dl = min(dl, Bgap(v["P"], 6) - 1)
    elif v["c"] == 4 and v["p"] <= 2:
        dl = min(dl, Bmid(v["P"]) - 1)
    else:
        dl = min(dl, Bgap(v["P"], v["c"]) - 1)
    assert dl >= rel or n < E, (v, dl, rel)
    tg = max(rel, v["first"] - CFG["vlead"])
    if not (0 <= offs[n] - vbase <= 65535):
        lo = hi = offs[n]
        m = n
        while m < len(offs) and max(hi, offs[m]) - min(lo, offs[m]) <= 65535:
            lo, hi = min(lo, offs[m]), max(hi, offs[m])
            m += 1
        d = (lo - vbase) & 0xFFFFFFFF
        vbase = lo
        for reg in (vRA, vRB):
            dst.append(Op(f"v_add_u32 v{reg},{d:#x},v{reg}", "valu", [("v", reg)], [("v", reg)], release=rel - 3,
                          target=tg - 3, deadline=dl - 2))
    reg = vRA if v["rho"] in (0, 9) else vRB
    f, a = vslot(n)
    u = unit_of(v["P"], v["c"], v["p"])
    dst.append(Op(f"ds_read_b128 {rr(f, a, 4)},v{reg} offset:{offs[n] - vbase}", "dsr", [("v", reg)], R(f, a, 4),
                  release=rel, target=tg, deadline=dl, wtag={x: ("V", n) for x in R(f, a, 4)},
                  lds_r=LK(u, (v["P"], v["c"], v["p"]))))
    v_ops.append((dst[-1], v))


def tv(i):
    return TMP + i


def xform(t, spare):
    L = []
    t0, t1, t2, t3, t4, t5 = t
    a = spare
    L.append((f"v_fmac_f32 v{t0},s{sM125},v{t2}", [t0, t2], [t0]))
    L.append((f"v_fmac_f32 v{t5},4.0,v{t1}", [t5, t1], [t5]))
    L.append((f"v_fma_f32 v{a},-4.0,v{t2},v{t4}", [t2, t4], [a]))
    L.append((f"v_fmac_f32 v{t0},s{s025},v{t4}", [t0, t4], [t0]))
    L.append((f"v_fmac_f32 v{t5},s{sM5},v{t3}", [t5, t3], [t5]))
    L.append((f"v_sub_f32 v{t4},v{t4},v{t2}", [t4, t2], [t4]))
    L.append((f"v_fma_f32 v{t2},-4.0,v{t1},v{t3}", [t1, t3], [t2]))
    L.append((f"v_sub_f32 v{t3},v{t3},v{t1}", [t3, t1], [t3]))
    L.append((f"v_add_f32 v{t1},v{a},v{t2}", [a, t2], [t1]))
    L.append((f"v_sub_f32 v{a},v{a},v{t2}", [a, t2], [a]))
    L.append((f"v_fma_f32 v{t2},2.0,v{t3},v{t4}", [t3, t4], [t2]))
    L.append((f"v_fmac_f32 v{t4},-2.0,v{t3}", [t3, t4], [t4]))
    return L, [t0, t1, a, t2, t4, t5], t3


def V(text, rd, wr, **kw):
    return Op(text, "valu", [("v", x) for x in rd], [("v", x) for x in wr], **kw)


def touches(P, c, j, px, prom):
    ops = [Op(f"s_add_u32 s{sTo},s{sRawC + c},{(32 * P + 2 * j) * ROWB}", "salu", [("s", sRawC + c)], [("s", sTo)])]
    for fl in (" nt", "")[:1 + prom]:
        ops.append(Op(f"buffer_load_dword v{vJ},v{vT},s[{sX}:{sX + 3}],s{sTo} offen offset:{(px - 1) * 384}{fl}",
                      "vld", [("v", vT), ("s", sTo)], [("v", vJ)], name="touch"))
    return ops


def main_loads(P, c, j, buf, first=False):
    ops = []
    dep = []
    pm = CFG["same"] >= 2 and c % 2 == 0
    if CFG["same"] < 2 and ((first and CFG["ptouch"]) or (not first and CFG["same"] and c % 2 == 0)):
        ops += touches(P, c, j, 1, 0) + touches(P, c, j, 2, 0)[1:]
    ops.append(Op(f"s_add_u32 s{sRaw},s{sRawC + c},{(32 * P + 2 * j) * ROWB}", "salu", [("s", sRawC + c)], [("s", sRaw)]))
    for jj in ((1, 2, 3, 4, 0, 5) if pm else (0, 5, 1, 2, 3, 4)):
        srd, imm = (sXL, 0) if jj == 0 else (sXR, 4 * 384) if jj == 5 else (sX, (jj - 1) * 384)
        nt = CFG["ntall"] or (pm and 1 <= jj <= 4) or (c % 2 == 1 and (CFG["ntodd"] == 1 or (CFG["ntodd"] == 2 and jj in (2, 3))))
        o = Op(f"buffer_load_dwordx2 v[{buf + 2 * jj}:{buf + 2 * jj + 1}],v{vRaw},s[{srd}:{srd + 3}],s{sRaw} offen offset:{imm}{' nt' if nt else ''}",
               "vld", [("v", vRaw), ("s", sRaw)], R("v", buf + 2 * jj, 2),
               wtag={x: ("raw", P, c, j, jj) for x in R("v", buf + 2 * jj, 2)})
        ops.append(o)
        dep.append((o, jj))
        if pm and jj == (3 if CFG["same"] == 2 else 4):
            for px in ((2,) if CFG["same"] == 2 else (1, 3)):
                ops.append(Op(f"buffer_load_dword v{vJ},v{vT},s[{sX}:{sX + 3}],s{sRaw} offen offset:{(px - 1) * 384}",
                              "vld", [("v", vT), ("s", sRaw)], [("v", vJ)]))
    return ops, dep


def after_touches(P, c, j):
    if not CFG["touch"]:
        return []
    ops = []
    n = nxt(P, c)
    if c % 2 == 1 and n:
        ops += touches(n[0], n[1], j, 1, 1)
    nb = (P, c, j + 1) if j < 3 else (n + (0,) if n else None)
    if nb and nb[1] % 2 == 0 and nb[:2] != (0, 0):
        ops += touches(nb[0], nb[1], nb[2], 2, CFG["prom"])
    return ops


def main_compute(P, c, j, buf):
    ops = []
    for i in range(2):
        lo = [tv(k) for k in range(6)]
        hi = [buf + 2 * k + i for k in range(6)]
        for jj in (2, 0, 1, 5, 4, 3):
            ops.append(V(f"v_lshlrev_b32 v{lo[jj]},16,v{hi[jj]}", [hi[jj]], [lo[jj]], rtag={("v", hi[jj]): ("raw", P, c, j, jj)}))
        L, vlo, freed = xform(lo, tv(6))
        ops += [V(t, a, b) for t, a, b in L]
        for jj in (2, 0, 1, 5, 4, 3):
            ops.append(V(f"v_and_b32 v{hi[jj]},s{sMask},v{hi[jj]}", [hi[jj]], [hi[jj]], rtag={("v", hi[jj]): ("raw", P, c, j, jj)}))
        L, vhi, _ = xform(hi, freed)
        ops += [V(t, a, b) for t, a, b in L]
        for p in (0, 5, 1, 3, 2, 4):
            ops.append(V(f"v_cvt_pk_bf16_f32 v{hi[p]},v{vlo[p]},v{vhi[p]}", [vlo[p], vhi[p]], [hi[p]],
                         wtag={("v", hi[p]): ("Vp", P, c, j, p)}))
    return ops


def main_writes(P, c, j, buf, rel, rel_late):
    ops = []
    wr = {}
    nc = c if j < 2 else c + 1
    for pa, pb in (((1, 2), (3, 4), (0, 5)) if CFG["same"] >= 2 and nc % 2 == 0 and c != 5 else ((0, 5), (1, 2), (3, 4))):
        ua, ub = unit_of(P, c, pa), unit_of(P, c, pb)
        base, sh = vW, 0
        r = rel_late if pa == 3 else rel
        if max(ua, ub) * 17 + j > 255:
            sh = min(ua, ub)
            base = tv(0)
            ops.append(V(f"v_add_u32 v{base},{sh * UNIT},v{vW}", [vW], [base]))
        o = Op(f"ds_write2st64_b64 v{base},v[{buf + 2 * pa}:{buf + 2 * pa + 1}],v[{buf + 2 * pb}:{buf + 2 * pb + 1}] "
               f"offset0:{(ua - sh) * 17 + j} offset1:{(ub - sh) * 17 + j}", "dsw",
               [("v", base)] + R("v", buf + 2 * pa, 2) + R("v", buf + 2 * pb, 2), [], cost=5, release=r,
               rtag={**{x: ("Vp", P, c, j, pa) for x in R("v", buf + 2 * pa, 2)},
                     **{x: ("Vp", P, c, j, pb) for x in R("v", buf + 2 * pb, 2)}},
               lds_w=LK(ua, (P, c, pa)) + LK(ub, (P, c, pb)))
        ops.append(o)
        wr[pa] = wr[pb] = o
    return ops, wr


def halo_loads(P, c, regs):
    ops = []
    sHalo = sColC + c
    for jj in range(6):
        srd, imm = (sXL, 0) if jj == 0 else (sXR, 4 * 384) if jj == 5 else (sX, (jj - 1) * 384)
        ops.append(Op(f"buffer_load_short_d16_hi v{regs + jj},v{vHalo},s[{srd}:{srd + 3}],s{sHalo} offen offset:{imm}{' nt' if CFG['hnt'] else ''}",
                      "vld", [("v", vHalo), ("s", sHalo)], [("v", regs + jj)], wtag={("v", regs + jj): ("hraw", P, c, jj)}))
    return ops


def halo_compute(P, c, regs, rel, rel_late):
    ops = []
    L, vr, _ = xform([regs + k for k in range(6)], tv(0))
    seen = set()
    for t, a, b in L:
        rt = {("v", x): ("hraw", P, c, x - regs) for x in a if regs <= x < regs + 6 and x not in seen}
        seen.update(b)
        ops.append(V(t, a, b, rtag=rt))
    pk = {}
    for k, (pa, pb) in enumerate(((0, 5), (1, 2), (3, 4))):
        ops.append(V(f"v_cvt_pk_bf16_f32 v{tv(1 + k)},v{vr[pa]},v{vr[pb]}", [vr[pa], vr[pb]], [tv(1 + k)]))
        pk[pa] = (tv(1 + k), "")
        pk[pb] = (tv(1 + k), "_d16_hi")
    free_raw = ops[-1]
    sh_cur = None
    for p in (0, 5, 1, 2, 3, 4):
        u = unit_of(P, c, p)
        base, off = vHW, u * UNIT
        if off > 65535:
            if sh_cur is None or not (0 <= off - sh_cur <= 65535):
                sh_cur = off
                ops.append(V(f"v_add_u32 v{tv(0)},{off},v{vHW}", [vHW], [tv(0)]))
            base, off = tv(0), off - sh_cur
        ops.append(Op(f"ds_write_b16{pk[p][1]} v{base},v{pk[p][0]} offset:{off}", "dsw", [("v", base), ("v", pk[p][0])], [], cost=2,
                      release=rel_late if p in (3, 4) else rel, lds_w=LK(u, (P, c, p))))
    return ops, free_raw


def halo_addr(P):
    t0, t1 = tv(0), tv(1)
    return [V(f"v_bfe_u32 v{t0},v{vU},9,1", [vU], [t0]),
            V(f"v_mul_u32_u24 v{t0},33,v{t0}", [t0], [t0]),
            Op(f"v_add_u32 v{t0},s{sY0},v{t0}", "valu", [("v", t0), ("s", sY0)], [("v", t0)]),
            V(f"v_add_u32 v{t0},{32 * P - 1},v{t0}", [t0], [t0]),
            V(f"v_mul_u32_u24 v{t1},{ROWB},v{t0}", [t0], [t1]),
            V(f"v_cmp_gt_u32 vcc,512,v{t0}", [t0], []),
            V(f"v_bfe_u32 v{t0},v{vU},3,6", [vU], [t0]),
            V(f"v_add_u32 v{t1},v{t1},v{t0}", [t0, t1], [t1]),
            V(f"v_bfrev_b32 v{t0},1", [], [t0]),
            V(f"v_cndmask_b32 v{vHalo},v{t0},v{t1},vcc", [t0, t1], [vHalo])]


def stage_write(P, key, slot, ra, rb):
    u, h = slot
    off = u * 17 + h * 8
    assert off + 4 <= 255
    return Op(f"ds_write2st64_b64 v{vXw},v[{ra}:{ra + 1}],v[{rb}:{rb + 1}] offset0:{off} offset1:{off + 4}", "dsw",
              [("v", vXw)] + R("v", ra, 2) + R("v", rb, 2), [], cost=5,
              rtag={**{x: ("Y", P, key, 0) for x in R("v", ra, 2)}, **{x: ("Y", P, key, 1) for x in R("v", rb, 2)}},
              lds_w=[(slot, ("X", P, key))])


XT = 0
XTB = 8 * UNIT


def stage_read(P, key, slot):
    kb, kind, y = key
    if kind == "s":
        f, a = acc(1, kb, y)
        nw = (1, kb, y)
        so, imm = f"s{sStA},{(32 * P + y) * ROWB}", 384 + 128 * kb
    else:
        p = 0 if kind == 0 else 5
        if kb == 0:
            yy = y + (0 if kind == 0 else 4)
            f, a = acc(2, kb, yy)
            nw = (2, kb, yy)
        else:
            f, a = acc(p, kb, 2 * y)
            nw = (3 if p == 0 else 4, kb, 2 * y)
        so, imm = f"s{sStY},{(32 * P + 2 * y) * ROWB}", kind * 384 + 128 * kb
    off = slot[0] * UNIT + slot[1] * 4096
    base = vU
    if off > 65535:
        base, off = XT, off - XTB
    rd = Op(f"ds_read_b128 {rr(f, a, 4)},v{base} offset:{off}", "dsr", [("v", base)], R(f, a, 4),
            wtag={x: ("L", P, key) for x in R(f, a, 4)}, lds_r=[(slot, ("X", P, key))],
            rtag={("v", XT): ("XT", P)} if base == XT else None)
    dl = first_w[(P + 1,) + nw] - 2 if P + 1 < NPASS else BIG
    s = Op(f"s_add_u32 s{sSt},{so}", "salu", [], [("s", sSt)])
    if CFG["nost"]:
        st = Op("v_nop", "valu", R(f, a, 4), [], deadline=dl, after=[(rd, 5)])
    else:
        st = Op(f"buffer_store_dwordx4 {rr(f, a, 4)},v{vSt},s[{sO}:{sO + 3}],s{sSt} offen offset:{imm}{CFG['stf'] if P + 1 == NPASS or CFG['stf0'] == 'x' else CFG['stf0']}", "vst",
                R(f, a, 4) + [("v", vSt), ("s", sSt)], [], cost=6, deadline=dl, rtag={x: ("L", P, key) for x in R(f, a, 4)},
                after=[(rd, 5)])
    return rd, [s, st]


def sw_block(P, kb, y, slot):
    ops = []
    rel = last_w[(P, 4, kb, y)] + 3
    a1, a2, m3, m4 = acc(1, kb, y)[1], acc(2, kb, y)[1], acc(3, kb, y)[1], acc(4, kb, y)[1]
    pk = [tv(0), tv(2)]
    key = (kb, "s", y)
    for h in range(2):
        us, t2s = [pk[1] + h, tv(4)], [pk[0] + h, tv(5)]
        t1 = tv(6)
        for e in range(2):
            i = 2 * h + e
            u, t2 = us[e], t2s[e]
            M3, M4 = m3 + i, m4 + i
            dl0 = first_w[(P, 0, kb, y)] - 2
            dl3 = first_w[(P, 5, kb, y)] - 2
            ops.append(Op(f"v_accvgpr_read_b32 v{t1},a{a1 + i}", "valu", [("a", a1 + i)], [("v", t1)], release=rel,
                          rtag={("a", a1 + i): ("M", P, 1, kb, y, 18)}))
            ops.append(Op(f"v_accvgpr_read_b32 v{t2},a{a2 + i}", "valu", [("a", a2 + i)], [("v", t2)],
                          rtag={("a", a2 + i): ("M", P, 2, kb, y, 18)}))
            ops.append(V(f"v_add_f32 v{u},v{t1},v{t2}", [t1, t2], [u]))
            ops.append(V(f"v_sub_f32 v{t1},v{t1},v{t2}", [t1, t2], [t1]))
            ops.append(V(f"v_add_f32 v{t2},v{M3},v{M4}", [M3, M4], [t2],
                         rtag={("v", M3): ("M", P, 3, kb, y, 18), ("v", M4): ("M", P, 4, kb, y, 18)}))
            ops.append(V(f"v_sub_f32 v{M4},v{M3},v{M4}", [M3, M4], [M4]))
            ops.append(V(f"v_add_f32 v{M3},v{u},v{t2}", [u, t2], [M3], wtag={("v", M3): ("M", P, 0, kb, y, 0)}, deadline=dl0))
            ops.append(V(f"v_fmac_f32 v{u},4.0,v{t2}", [u, t2], [u]))
            ops.append(V(f"v_fma_f32 v{t2},2.0,v{M4},v{t1}", [M4, t1], [t2]))
            ops.append(Op(f"v_fma_f32 v{M4},s{s8},v{M4},v{t1}", "valu", [("v", M4), ("v", t1)], [("v", M4)],
                          wtag={("v", M4): ("M", P, 5, kb, y, 0)}, deadline=dl3))
        for m, src in ((1, t2s), (2, us)):
            d = pk[m - 1] + h
            ops.append(V(f"v_cvt_pk_bf16_f32 v{d},v{src[0]},v{src[1]}", src, [d], wtag={("v", d): ("Y", P, key, m - 1)}))
    ops.append(stage_write(P, key, slot, pk[0], pk[1]))
    return ops


def fin_block(P, kb, m, yp, slot):
    ops = []
    p = 0 if m == 0 else 5
    key = (kb, m, yp)
    for k in range(2):
        y = 2 * yp + k
        a = acc(p, kb, y)[1]
        for h in range(2):
            ops.append(V(f"v_cvt_pk_bf16_f32 v{a + h},v{a + 2 * h},v{a + 2 * h + 1}", [a + 2 * h, a + 2 * h + 1], [a + h],
                         release=last_w[(P, p, kb, y)] + 3,
                         rtag={("v", a + 2 * h + 1): ("M", P, p, kb, y, 18)}, wtag={("v", a + h): ("Y", P, key, k)}))
    ops.append(stage_write(P, key, slot, acc(p, kb, 2 * yp)[1], acc(p, kb, 2 * yp + 1)[1]))
    return ops


S_main, S_ld, S_x, S_st = [], [], [], []
pending_bars = []


def flush_bars():
    for pos, lag, b in sorted(pending_bars, key=lambda x: -x[0]):
        while lag > 0 and pos < len(S_main) and S_main[pos].kind == "valu":
            pos += 1
            lag -= 1
        S_main.insert(pos, b)
    pending_bars.clear()


PB = [0, 12, 24, 36]
PH = 48
pro_loads = []
for j in range(4):
    pro_loads += main_loads(0, 0, j, PB[j], first=True)[0]
pro_loads += halo_loads(0, 0, PH)
NPRO0 = len(pro_loads)

prev_wr = {0: None, 1: None}
prev_hfree = None
ld_ops = {}
in_ld = set()


def add_loads(P, c, j):
    b = j % 2
    o, dep = main_loads(P, c, j, BUF[b])
    ld_ops[(P, c, j)] = o[-1]
    pw = prev_wr[b]
    tch = after_touches(P, c, j)
    if pw is None:
        pro_loads.extend(o + tch)
        return
    for op in tch:
        op.target = -BIG
        op.after = [(o[-1], CFG["tlag"])]
    o[0].after = [(pw[dep[0][1]], -1)]
    for op in o:
        if op.name == "touch":
            op.after = [(pw[0], 0)]
    for op, slot in dep:
        op.after = [(pw[slot], 0)]
    prev = None
    for op in o:
        op.target = -BIG
        if op.kind == "vld":
            if prev is not None and CFG["ldsp"] and not (prev.name == "touch" and "nt" in prev.text):
                op.after.append((prev, CFG["ldsp"]))
            prev = op
    S_ld.extend(o + tch)
    in_ld.add(id(o[-1]))


def add_halo_loads(P, c, extra_after=()):
    o = halo_loads(P, c, HAL)
    ld_ops[(P, c, "h")] = o[-1]
    if prev_hfree is None:
        pro_loads.extend(o)
        return
    for op in o:
        op.after = [(prev_hfree, 1)] + list(extra_after)
        op.target = -BIG
    S_ld.extend(o)
    in_ld.add(id(o[-1]))


def add_round(P, c, j, rel, rel_late, dl, compute=True, write=True):
    b = j % 2
    if compute:
        ops = main_compute(P, c, j, BUF[b])
        if id(ld_ops[(P, c, j)]) in in_ld:
            ops[0].after = [(ld_ops[(P, c, j)], CFG["LATG"])]
        S_main.extend(ops)
    if write:
        ops, wr = main_writes(P, c, j, BUF[b], rel, rel_late)
        ops[-1].deadline = dl
        S_main.extend(ops)
        prev_wr[b] = wr


def add_halo(P, c, rel, rel_late, dl):
    global prev_hfree
    ops, fr = halo_compute(P, c, HAL, rel, rel_late)
    if id(ld_ops[(P, c, "h")]) in in_ld:
        ops[0].after = [(ld_ops[(P, c, "h")], CFG["LATG"])]
    ops[-1].deadline = dl
    S_main.extend(ops)
    prev_hfree = fr


reads_prev = []
unread = []
stores = []


def unit(P, key, slot, rel=-BIG):
    ops = sw_block(P, key[0], key[2], slot) if key[1] == "s" else fin_block(P, key[0], key[1], key[2], slot)
    ops[-1].release = max(ops[-1].release, rel)
    S_main.extend(ops)
    unread.append((key, slot, ops[-1]))


def xbar(P, release=-BIG, extra_needs=(), lag=6):
    global reads_prev, unread
    if lag:
        lag = CFG["xlag"]
    b = Op("s_nop 0" if CFG["noxb"] else "s_barrier", "bar", needs=[w for _, _, w in unread] + reads_prev + list(extra_needs), release=release,
           after=[(o, 4) for o in reads_prev + list(extra_needs)] + [(w, 3) for _, _, w in unread])
    pending_bars.append((len(S_main), lag, b))
    reads_prev = []
    for key, slot, _ in unread:
        rd, st = stage_read(P, key, slot)
        rd.after = [(b, 0)]
        rd.target = -BIG
        S_x.append(rd)
        reads_prev.append(rd)
        stores.append(st)
    unread = []
    if lag == 0:
        flush_bars()
    return b


add_loads(0, 1, 0)
add_loads(0, 1, 1)
add_halo_loads(0, 1)
for P in range(NPASS):
    for c in range(1, 6):
        rel = Bgap(P, c - 2)
        rel_late = Bmid(P) if c == 5 else rel
        dl = Bgap(P, c - 1) - 3
        n = nxt(P, c)
        for j in [0, 1, "h", 2, 3]:
            if j == "h":
                add_halo(P, c, rel, rel_late, dl)
                if n:
                    if n[1] == 0:
                        ha = halo_addr(n[0])
                        S_main.extend(ha)
                        add_halo_loads(n[0], n[1], [(ha[-1], 1)])
                    else:
                        add_halo_loads(*n)
            else:
                add_round(P, c, j, rel, rel_late, dl)
                if j < 2:
                    add_loads(P, c, j + 2)
                elif n:
                    add_loads(n[0], n[1], j - 2)
    more = P + 1 < NPASS
    dl = Bgap(P, 6) - 3
    ringA = [(4, 0), (4, 1), (5, 0), (5, 1)]
    ringB = [(u, h) for u in (2, 3) + X45(P) + (4, 5) for h in (0, 1)]
    reads_prev, stores = [], []
    if more:
        add_round(P + 1, 0, 0, None, None, dl, write=False)
    for k in range(4):
        for y in (2 * k, 2 * k + 1):
            unit(P, (0, "s", y), ringA[y % 4])
        xbar(P)
    nb = 0
    for batch in ([(1, "s", y) for y in range(4)], [(0, 0, y) for y in range(4)] + [(1, "s", 4), (1, "s", 5)],
                  [(1, "s", 6), (1, "s", 7)] + [(0, 3, y) for y in range(4)],
                  [(2, "s", y) for y in range(4)], [(1, 0, y) for y in range(4)] + [(2, "s", 4), (2, "s", 5)],
                  [(2, "s", 6), (2, "s", 7)] + [(1, 3, y) for y in range(4)]):
        for k, key in enumerate(batch):
            unit(P, key, ringB[6 * (nb % 2) + k], Bgap(P, 5))
        nb += 1
        xbar(P)
        if nb == 3 and more:
            S_x.append(V(f"v_add_u32 v{XT},{XTB},v{vU}", [vU], [XT], wtag={("v", XT): ("XT", P)}))
    if more:
        p0_reads = [op for op, v in v_ops if v["P"] == P and v["p"] == 0 and v["first"] >= P * NP + NP - 288]
        add_round(P + 1, 0, 1, None, None, dl, write=False)
        xbar(P, lag=0)
        for j in (0, 1):
            add_round(P + 1, 0, j, -BIG, -BIG, dl, compute=False)
            add_loads(P + 1, 0, j + 2)
        add_halo(P + 1, 0, -BIG, -BIG, dl)
        add_halo_loads(P + 1, 1)
        add_round(P + 1, 0, 2, -BIG, -BIG, dl)
        add_loads(P + 1, 1, 0)
        xbar(P, extra_needs=p0_reads[-1:], lag=0)
        for y in range(4):
            unit(P, (2, 0, y), [(8, 0), (8, 1), (10, 0), (10, 1)][y])
        xbar(P)
        for op in reads_prev:
            op.deadline = dl
        add_round(P + 1, 0, 3, -BIG, -BIG, dl)
        add_loads(P + 1, 1, 1)
        for y in range(4):
            unit(P, (2, 3, y), [(12, 0), (12, 1), (14, 0), (14, 1)][y])
        xbar(P)
        for op in reads_prev:
            op.deadline = Bgap(P + 1, 0) - 3
    else:
        flush_bars()
        for y in range(4):
            unit(P, (2, 0, y), ringB[y])
        xbar(P, lag=0)
        for y in range(4):
            unit(P, (2, 3, y), ringB[6 + y])
        xbar(P, lag=0)
    t = P * NP + float(CFG["st0"])
    gap = CFG["st_gap"] if more else (NP - 30 - CFG["st0"]) / 44.0
    for k, (s, st) in enumerate(stores):
        if CFG["drop0"] <= k < CFG["drop1"]:
            st.text, st.kind, st.cost = "v_nop", "valu", 1
        tb = t + gap * (k // CFG["burst"] * CFG["burst"] + CFG["burst"] - 1)
        s.release = st.release = int(tb) if tb < NM - 8 else -BIG
        s.target = st.target = int(tb)
        s.after = list(st.after)
        S_st.extend([s, st])
flush_bars()


S_t, S_c = [], []
if CFG["utouch"]:
    for P in range(NPASS):
        t = P * NP + CFG["ut0"]
        for c in range(6):
            S_t.append(Op(f"s_add_u32 s{sTU},s{sUC + c},s{sUT}", "salu", [], [("s", sTU)], release=t - 3, target=t - 3))
            S_t.append(Op(f"buffer_load_dword v{vJ},v{vTU},s[{sUs}:{sUs + 3}],s{sTU} offen sc1", "vld", [("v", vTU), ("s", sTU)],
                          [("v", vJ)], release=t, target=t))
            t += CFG["utsp"]
if CFG["early"]:
    for P in range(NPASS - 1):
        t = P * NP + CFG["early"]
        for j in (2, 3):
            for px in (1, 2):
                ops = touches(P + 1, 0, j, px, 0)
                ops[1].text = ops[1].text.replace(" nt", "")
                for o in ops:
                    o.release = o.target = t
                S_t.extend(ops)
                t += CFG["earlysp"]
if CFG["cref"]:
    for t in range(CFG["cref"] - 140, NM - 200, CFG["cref"]):
        S_c.append(Op(f"global_load_dword v{vJ},v{vC},s[82:83]", "vld", [("v", vC)], [("v", vJ)], release=t, target=t))


def propagate(st, rate):
    nd = BIG
    for op in reversed(st):
        if nd < BIG:
            nd -= (op.cost if op.cost else 0.0) / rate + (0.34 if op.mem or op.kind == "bar" else 0)
        op.deadline = min(op.deadline, nd)
        nd = min(nd, op.deadline)
    for op in st:
        if op.deadline < BIG:
            op.deadline = int(op.deadline // 1)


propagate(S_st, 8.0)
for st in (S_st, S_x):
    for s in st:
        for a, d in s.after:
            a.deadline = min(a.deadline, s.deadline - d)
    propagate(S_x, 4.0)
propagate(S_main, 4.0)
for op in S_main:
    if op.target is None:
        op.target = op.deadline + 1000

streams = [S_U, S_V, S_ld, S_x, S_st, S_t, S_c, S_main]
bud = [2.0] * (NM // 288)
best = None
for it in range(6):
    for st in streams:
        for op in st:
            op.gap = None
    for op in pro_loads + pro_U + pro_V:
        op.gap = -BIG
    gaps, late = schedule(NM, streams, fixed, lambda g: bud[g // 288])
    tot = [0] * (NM // 288)
    und = [0] * (NM // 288)
    for g, cur in enumerate(gaps[:-1]):
        tot[g // 288] += max(2, cur["used"])
        und[g // 288] += max(0, 2 - cur["used"])
    est = sum(8 + 4 * max(2, c["used"]) for c in gaps[:-1])
    print(f"; iter {it}: est {est} cycles, late {len(late)}, tail ops {len(gaps[-1]['valu'])}, phases {[round(t / 288, 2) for t in tot]} "
          f"underfill {und}", file=sys.stderr)
    for w in range(len(bud)):
        bud[w] = max(2.0, 0.5 * bud[w] + 0.5 * (tot[w] - und[w]) / 288)
for op, g in late[:20]:
    print("; late", op.text, op.deadline, g, file=sys.stderr)

em = Emitter()
S = lambda t, rd=(), wr=(): em.raw(t, "salu", [("s", x) for x in rd], [("s", x) for x in wr])
VV = lambda t, rd=(), wr=(), srd=(), swr=(): em.raw(t, "valu", [("v", x) for x in rd] + [("s", x) for x in srd],
                                                    [("v", x) for x in wr] + [("s", x) for x in swr])
nst = [0]
vDBG = vTU + 1
assert vDBG <= 255 or not CFG['dbg']


def stamp():
    if not CFG["dbg"]:
        return
    if nst[0] > 0:
        S(f"v_writelane_b32 v{vDBG},s98,{nst[0] - 1}")
    S("s_memrealtime s[98:99]" if CFG["dbg"] == 4 else "s_memtime s[98:99]")
    nst[0] += 1


def pstamp():
    if CFG["dbg"] == 4:
        S("s_waitcnt lgkmcnt(0)")
        stamp()


def u_item(tag, loop):
    L = [f"L_item{tag}:"]
    A = L.append
    A("s_and_b32 s85,s84,3\ns_lshr_b32 s86,s84,2")
    A("s_mul_hi_u32 s87,s86,0x55555556\ns_mul_i32 s88,s87,3\ns_sub_u32 s86,s86,s88")
    A("s_mul_hi_u32 s88,s87,0x2aaaaaab\ns_mul_i32 s89,s88,6\ns_sub_u32 s87,s87,s89")
    A("s_mul_i32 s89,s86,221184\ns_mul_i32 s90,s87,12288\ns_add_u32 s89,s89,s90\ns_mul_i32 s90,s85,3072\ns_add_u32 s89,s89,s90")
    A("s_lshl_b32 s90,s88,7\ns_add_u32 s89,s89,s90\ns_add_u32 s90,s89,73728\ns_add_u32 s91,s90,73728")
    A(f"v_lshlrev_b32 v149,1,v{ln}")
    for s in range(3):
        for e in range(8):
            A(f"buffer_load_short_d16_hi v{68 + s * 8 + e},v149,s[36:39],s{89 + s} offen offset:{e * 384}")
    A(f"v_lshrrev_b32 v150,4,v{ln}\nv_mul_u32_u24 v150,{UWAVE},v150\nv_and_b32 v148,15,v{ln}\nv_lshl_add_u32 v150,v148,4,v150")
    A(f"s_mul_i32 s87,s87,{18 * 3072}\ns_mul_i32 s88,s88,3072\ns_add_u32 s87,s87,s88\ns_lshl_b32 s86,s86,10\ns_add_u32 s87,s87,s86")
    A("s_lshl_b32 s85,s85,8\ns_add_u32 s87,s87,s85")
    A(f"s_mov_b32 s85,{fbits(-1 / 6):#x}\ns_mov_b32 s86,{fbits(1 / 24):#x}\ns_mov_b32 s88,{fbits(1 / 6):#x}\ns_mov_b32 s92,{fbits(1 / 12):#x}")
    A("s_waitcnt vmcnt(0)")
    for e in range(8):
        g0, g1, g2 = 68 + e, 76 + e, 84 + e
        A(f"v_add_f32 v148,v{g0},v{g2}\nv_add_f32 v{92 + e},v148,v{g1}\nv_sub_f32 v{100 + e},v148,v{g1}")
        A(f"v_mul_f32 v{92 + e},s85,v{92 + e}\nv_mul_f32 v{100 + e},s85,v{100 + e}")
        A(f"v_mul_f32 v148,s86,v{g0}\nv_fmac_f32 v148,s88,v{g2}\nv_fma_f32 v{108 + e},s92,v{g1},v148\nv_fma_f32 v{116 + e},-s92,v{g1},v148")
    for p, src in ((0, 68), (5, 84), (1, 92), (2, 100), (3, 108), (4, 116)):
        for e in range(4):
            A(f"v_cvt_pk_bf16_f32 v{124 + 4 * p + e},v{src + 2 * e},v{src + 2 * e + 1}")
        A(f"s_add_u32 s89,s87,{p * 9216}")
        A(f"buffer_store_dwordx4 v[{124 + 4 * p}:{127 + 4 * p}],v150,s[{sUs}:{sUs + 3}],s89 offen sc1")
    if loop:
        A(f"s_waitcnt vmcnt(0)\ns_add_u32 s84,s84,1\ns_cmp_lt_u32 s84,216\ns_cbranch_scc1 L_item{tag}")
    return "\n".join(L)


t0, t1, t2, t3, ln = 60, 61, 62, 63, 64
S("s_cmp_ge_u32 s2,256")
S("s_cbranch_scc0 L_go\ns_endpgm\nL_go:")
if CFG["dbg"]:
    S("s_memrealtime s[96:97]")
stamp()
if CFG["padus"]:
    S("s_memrealtime s[96:97]")


def pad():
    S(f"s_waitcnt vmcnt(0) lgkmcnt(0)\nL_pad:\ns_memrealtime s[94:95]\ns_waitcnt lgkmcnt(0)\ns_sub_u32 s94,s94,s96\ns_cmp_lt_u32 s94,{100 * CFG['padus']}\ns_cbranch_scc1 L_pad")


S("s_load_dwordx4 s[4:7],s[0:1],0")
S(f"s_load_dwordx4 s[{sO}:{sO + 3}],s[0:1],16")
S("s_load_dwordx2 s[52:53],s[0:1],32")
VV(f"v_lshrrev_b32 v{t0},6,v0", [0], [t0])
VV(f"v_and_b32 v{ln},63,v0", [0], [ln])
VV(f"v_readfirstlane_b32 s{sWv},v{t0}", [t0], [], [], [sWv])
VV(f"v_lshrrev_b32 v{t0},4,v{ln}", [ln], [t0])
VV(f"v_bfe_u32 v{t1},v{ln},3,1", [ln], [t1])
VV(f"v_lshl_add_u32 v{t1},v{t0},3,v{t1}", [t0, t1], [t1])
VV(f"v_and_b32 v{t2},7,v{ln}", [ln], [t2])
VV(f"v_mul_u32_u24 v{vRaw},{ROWB},v{t1}", [t1], [vRaw])
VV(f"v_lshl_add_u32 v{vRaw},v{t2},3,v{vRaw}", [t2, vRaw], [vRaw])
VV(f"v_lshlrev_b32 v{vU},4,v0", [0], [vU])
VV(f"v_bfe_u32 v{t3},v{ln},2,1", [ln], [t3])
VV(f"v_mul_u32_u24 v{t3},{384 if CFG['same'] >= 2 else 768},v{t3}", [t3], [t3])
VV(f"v_mul_u32_u24 v{vT},{ROWB},v{t1}", [t1], [vT])
VV(f"v_add_u32 v{vT},v{vT},v{t3}", [t3, vT], [vT])
if CFG["utouch"]:
    VV(f"v_lshrrev_b32 v{vTU},2,v{ln}", [ln], [vTU])
    VV(f"v_min_u32 v{vTU},13,v{vTU}", [vTU], [vTU])
    VV(f"v_lshlrev_b32 v{vTU},7,v{vTU}", [vTU], [vTU])
    S(f"s_lshr_b32 s{sUT},s2,3\ns_mul_i32 s{sUT},s{sUT},27\ns_lshr_b32 s{sUT},s{sUT},1\ns_lshl_b32 s{sUT},s{sUT},7")
    S(f"s_lshl_b32 s54,s{sWv},10\ns_add_u32 s{sUT},s{sUT},s54")
S("s_and_b32 s54,s2,7", [2], [54])
S("s_lshr_b32 s55,s2,3", [2], [55])
S(f"s_lshl_b32 s{sY0},s54,6", [54], [sY0])
S("s_lshl_b32 s55,s55,4", [55], [55])
S(f"s_lshl_b32 s56,s{sWv},2", [sWv], [56])
S("s_add_u32 s56,s56,s55", [55, 56], [56])
S(f"s_mul_i32 s{sCol},s56,384", [56], [sCol])
S(f"s_mul_i32 s57,s{sY0},{ROWB}", [sY0], [57])
S(f"s_add_u32 s{sRawB},s57,s{sCol}", [57, sCol], [sRawB])
S(f"s_mul_i32 s{sUW},s{sWv},{UWAVE - 1024}", [sWv], [sUW])
if CFG["par"]:
    S(f"s_bfe_u32 s58,s2,{0x10000 + (0 if CFG['par'] == 1 else 3)}")
else:
    S("s_mov_b32 s58,0")
for c in range(6):
    S(f"s_add_u32 s59,s58,{c}")
    if c == 5:
        S("s_cmp_eq_u32 s59,6\ns_cselect_b32 s59,0,s59")
    S(f"s_mul_i32 s60,s59,{18 * 3072}\ns_lshl_b32 s59,s59,6")
    S(f"s_add_u32 s{sRawC + c},s{sRawB},s59\ns_add_u32 s{sColC + c},s{sCol},s59\ns_add_u32 s{sUC + c},s{sUW},s60")
S("s_waitcnt lgkmcnt(0)")
S(f"s_mov_b32 s{sUs},s52"); S(f"s_and_b32 s{sUs + 1},s53,0xffff"); S(f"s_mov_b32 s{sUs + 2},{4 * UWAVE}"); S(f"s_mov_b32 s{sUs + 3},0x20000")
if CFG["fuse"]:
    S("s_mov_b32 s36,s6\ns_and_b32 s37,s7,0xffff\ns_mov_b32 s38,663552\ns_mov_b32 s39,0x20000")
    S(f"s_mov_b32 s60,s{sO + 2}\ns_and_b32 s61,s{sO + 3},0xffff\ns_mov_b32 s62,0\ns_mov_b32 s63,0x20000")
    S(f"s_mov_b32 s52,s{sO + 2}\ns_mov_b32 s53,s{sO + 3}")
    pstamp()
    if CFG["nprod"] == 54:
        S("v_mov_b32 v66,1\ns_cmp_lt_u32 s2,54\ns_cbranch_scc0 L_noitem")
        S(f"s_lshl_b32 s84,s2,2\ns_add_u32 s84,s84,s{sWv}\ns_mov_b32 s62,256\n" + u_item("P", False) + "\nL_noitem:")
        S(f"s_and_b32 s94,s{sWv},1")
    else:
        S(f"v_mov_b32 v66,1\ns_cmp_lt_u32 s2,216\ns_cselect_b32 s84,s{sWv},0\ns_cmp_eq_u32 s84,3\ns_cbranch_scc0 L_noitem")
        S("s_mov_b32 s84,s2\ns_mov_b32 s62,256\n" + u_item("P", False) + "\nL_noitem:")
        S("s_and_b32 s94,s2,1")


def u_signal():
    S(f"s_waitcnt vmcnt({len(em.vm)})")
    pstamp()
    S("s_lshl_b32 s85,s94,6\ns_lshl_b32 s84,s94,2\ns_mov_b64 exec,1")
    em.put(Op("buffer_atomic_add v66,off,s[60:63],s85 sc0 sc1", "vld", [("v", 66)], [("v", 66)], cost=0))
    S("s_mov_b64 exec,-1")


if CFG["fuse"] and CFG["ak"] == 0:
    u_signal()
S(f"s_mov_b32 s{sX},s4"); S(f"s_and_b32 s{sX + 1},s5,0xffff"); S(f"s_mov_b32 s{sX + 2},{XB}"); S(f"s_mov_b32 s{sX + 3},0x20000")
S(f"s_sub_u32 s{sXL},s4,384"); S(f"s_subb_u32 s{sXL + 1},s{sX + 1},0")
S("s_cmp_eq_u32 s56,0"); S(f"s_cselect_b32 s{sXL + 2},0,{XB + 384}"); S(f"s_mov_b32 s{sXL + 3},0x20000")
S(f"s_mov_b32 s{sXR},s4"); S(f"s_mov_b32 s{sXR + 1},s{sX + 1}")
S("s_cmp_eq_u32 s56,508"); S(f"s_cselect_b32 s{sXR + 2},0,{XB}"); S(f"s_mov_b32 s{sXR + 3},0x20000")
for op in halo_addr(0):
    em.put(op)
bstart = [i for i, op in enumerate(pro_loads[:NPRO0]) if op.kind == "salu" and f"s{sRaw}," in op.text] + [NPRO0 - 6, NPRO0]
nb0 = bstart[min(CFG["ak"] + CFG["aw"], 5)]
for i, op in enumerate(pro_loads[:NPRO0]):
    em.put(op)
    if CFG["fuse"] and CFG["ak"] and i + 1 == bstart[CFG["ak"]]:
        u_signal()
    if i + 1 == nb0 and CFG["fuse"]:
        S("s_mov_b64 exec,1")
        VV("v_cmp_eq_u32 vcc,107,v66", [66], [])
        VV("v_mov_b32 v65,1", [], [65])
        S("s_nop 2\ns_and_b64 exec,exec,vcc\ns_cselect_b32 s62,s62,0\ns_mov_b64 exec,1")
        em.put(Op("buffer_store_dword v65,off,s[60:63],s84 offset:128 sc1", "vst", [("v", 65)], [], cost=0))
        S("s_mov_b64 exec,-1")
        pstamp()
if CFG["ctouch"]:
    S("s_getpc_b64 s[82:83]\nL_pc:")
    S(f"s_lshr_b32 s84,s2,3\ns_lshl_b32 s84,s84,2\ns_add_u32 s84,s84,s{sWv}\ns_lshl_b32 s84,s84,10")
    VV(f"v_and_b32 v65,7,v{ln}", [ln], [65])
    VV(f"v_lshl_add_u32 v65,v65,7,s84", [65], [65])
    VV(f"v_min_u32 v65,L_code_end-L_pc-4,v65", [65], [65])
    em.put(Op("global_load_dword v67,v65,s[82:83]", "vld", [("v", 65)], [("v", 67)]))
    if CFG["cref"]:
        VV(f"v_mov_b32 v{vC},v65", [65], [vC])
if not CFG["fuse"]:
    for op in pro_U:
        em.put(op)
S(f"s_and_b32 s{sO + 1},s{sO + 1},0xffff"); S(f"s_mov_b32 s{sO + 2},{XB}"); S(f"s_mov_b32 s{sO + 3},0x20000")
S(f"s_mov_b32 s{sM5},{fbits(-5.0):#x}"); S(f"s_mov_b32 s{s8},{fbits(8.0):#x}"); S(f"s_mov_b32 s{sMask},0xffff0000")
S(f"s_mov_b32 s{sM125},{fbits(-1.25):#x}"); S(f"s_mov_b32 s{s025},{fbits(0.25):#x}")
S("s_mul_i32 s58,s55,384", [55], [58])
S("s_add_u32 s58,s57,s58", [57, 58], [58])
S(f"s_lshr_b32 s59,s{sWv},1", [sWv], [59])
S(f"s_mul_i32 s{sStA},s59,384", [59], [sStA])
S(f"s_mul_i32 s{sStY},s59,{ROWB}", [59], [sStY])
S(f"s_add_u32 s{sStA},s{sStA},s58", [58, sStA], [sStA])
S(f"s_add_u32 s{sStY},s{sStY},s58", [58, sStY], [sStY])
S(f"s_lshl_b32 s59,s{sWv},6", [sWv], [59])
VV(f"v_lshlrev_b32 v{vW},8,v{t1}", [t1], [vW])
VV(f"v_and_b32 v{t3},1,v{t0}", [t0], [t3])
VV(f"v_xor_b32 v{t3},1,v{t3}", [t3], [t3])
VV(f"v_lshlrev_b32 v{t3},2,v{t3}", [t3], [t3])
VV(f"v_xor_b32 v{t3},v{t3},v{t2}", [t3, t2], [t3])
VV(f"v_lshl_add_u32 v{vW},v{t3},3,v{vW}", [t3, vW], [vW])
VV(f"v_add_u32 v{vW},s59,v{vW}", [vW], [vW], [59])
VV(f"v_add_u32 v{vW},256,v{vW}", [vW], [vW])
VV(f"v_lshrrev_b32 v{t0},5,v{ln}", [ln], [t0])
VV(f"v_mul_u32_u24 v{vHW},{33 * 256},v{t0}", [t0], [vHW])
VV(f"v_lshlrev_b32 v{t0},5,v{t0}", [t0], [t0])
VV(f"v_bfe_u32 v{t1},v{vU},3,6", [vU], [t1])
VV(f"v_xor_b32 v{t1},v{t1},v{t0}", [t0, t1], [t1])
VV(f"v_add3_u32 v{vHW},v{vHW},v{t1},s59", [vHW, t1], [vHW], [59])
VV(f"v_bfe_u32 v{t0},v{ln},2,2", [ln], [t0])
VV(f"v_and_b32 v{t1},3,v{ln}", [ln], [t1])
VV(f"v_lshrrev_b32 v{t2},4,v{ln}", [ln], [t2])
VV(f"v_lshlrev_b32 v{vRA},11,v{t0}", [t0], [vRA])
VV(f"v_lshl_add_u32 v{vRA},v{t1},6,v{vRA}", [t1, vRA], [vRA])
VV(f"v_and_b32 v{t3},1,v{t0}", [t0], [t3])
VV(f"v_lshlrev_b32 v{t3},1,v{t3}", [t3], [t3])
VV(f"v_xor_b32 v{t3},v{t3},v{t2}", [t3, t2], [t3])
VV(f"v_lshl_add_u32 v{vRA},v{t3},4,v{vRA}", [t3, vRA], [vRA])
VV(f"v_xor_b32 v{vRB},32,v{vRA}", [vRA], [vRB])
VV(f"v_lshrrev_b32 v{t0},1,v{t2}", [t2], [t0])
VV(f"v_lshl_add_u32 v{t0},s{sWv},1,v{t0}", [t0], [t0], [sWv])
VV(f"v_and_b32 v{t1},7,v{ln}", [ln], [t1])
VV(f"v_xor_b32 v{t0},v{t0},v{t1}", [t0, t1], [t0])
VV(f"v_and_b32 v{t3},15,v{ln}", [ln], [t3])
VV(f"v_lshlrev_b32 v{vXw},7,v{t3}", [t3], [vXw])
VV(f"v_lshl_add_u32 v{vXw},v{t0},4,v{vXw}", [t0, vXw], [vXw])
VV(f"v_and_b32 v{t3},1,v{t2}", [t2], [t3])
VV(f"v_lshl_add_u32 v{vXw},v{t3},3,v{vXw}", [t3, vXw], [vXw])
VV(f"v_bfe_u32 v{t0},v{vU},7,4", [vU], [t0])
VV(f"v_lshrrev_b32 v{t2},2,v{t0}", [t0], [t2])
VV(f"v_mul_u32_u24 v{vSt},{8 * ROWB},v{t2}", [t2], [vSt])
VV(f"v_and_b32 v{t2},3,v{t0}", [t0], [t2])
VV(f"v_mul_u32_u24 v{t2},1536,v{t2}", [t2], [t2])
VV(f"v_and_b32 v{t0},7,v{t0}", [t0], [t0])
VV(f"v_xor_b32 v{t0},v{t0},v{t1}", [t0, t1], [t0])
VV(f"v_lshl_add_u32 v{t0},v{t0},4,v{t2}", [t0, t2], [t0])
VV(f"v_add_u32 v{vSt},v{vSt},v{t0}", [t0, vSt], [vSt])
stamp()
rest = pro_loads[NPRO0:]


for j in range(4):
    for k, op in enumerate(main_compute(0, 0, j, PB[j])):
        em.put(op)
        if j == 0 and k == 17:
            stamp()
    for op in main_writes(0, 0, j, PB[j], -BIG, -BIG)[0]:
        em.put(op)
    if j == CFG["pollj"]:
        for op in rest:
            em.put(op)
for op in halo_compute(0, 0, PH, -BIG, -BIG)[0]:
    em.put(op)
stamp()
em.put(Op("s_barrier", "bar"))
for op in pro_V:
    em.put(op)
if CFG["fuse"]:
    VV(f"v_and_b32 v65,1,v{ln}", [ln], [65])
    VV("v_lshlrev_b32 v65,2,v65", [65], [65])
    pstamp()
    S("s_mov_b32 s84,0\nL_poll:\nglobal_load_dword v66,v65,s[52:53] offset:128 sc1\ns_add_u32 s84,s84,1\ns_waitcnt vmcnt(0)")
    S("v_cmp_eq_u32 vcc,0,v66\ns_cmp_gt_u32 s84,0x4000\ns_cbranch_scc1 L_fallback\ns_cbranch_vccnz L_poll\nL_uready:")
    em.vm_done = len(em.vm)
    stamp()
    for op in pro_U:
        em.put(op)
em.wait_for([mf[0]])
stamp()
nfree = 0
stamp_gaps = set(P * NP + 288 * k - 1 for P in range(NPASS) for k in range(1, 10))
probe = set()
if CFG["dbg"] == 5:
    stamp_gaps = set(CFG["sg0"] - 1 + CFG["sgs"] * k for k in range(18))
if CFG["dbg"] == 3:
    stamp_gaps = set()
    probe = set(id(ld_ops[k]) for k in [(0, 2, 1), (0, 2, 3), (0, 3, 1), (0, 3, 3), (0, 4, 2), (1, 0, 3), (1, 2, 2), (1, 3, 2), (1, 4, 1)])
if CFG["padus"] and CFG["padat"] == -1:
    pad()
for g in range(NM):
    em.put(mf[g])
    if CFG["padus"] and g == CFG["padat"]:
        pad()
    if g in stamp_gaps and g < NM - 1:
        stamp()
    cur = gaps[g]
    body = cur["sc"] + cur["mem"] + cur["valu"]
    if g < NM - 1:
        w = em.wait_for(body + [mf[g + 1]])
        if w and cur["sc"] and cur["sc"][0].kind != "bar":
            nfree += 1
    for op in body:
        em.put(op)
        if CFG["nowait"] and op.kind == "vld" and op.wr and op.wr[0][0] == "v" and (192 <= op.wr[0][1] < 216 or HAL <= op.wr[0][1] < HAL + 6):
            for r in op.wr:
                em.pend.pop(r, None)
        if id(op) in probe:
            S("s_waitcnt lgkmcnt(0)")
            stamp()
            S("s_waitcnt vmcnt(0) lgkmcnt(0)")
            stamp()
            S("s_waitcnt lgkmcnt(0)")
if CFG["padus"] and CFG["padat"] == -2:
    pad()
if CFG["dbg"]:
    stamp()
    S("s_waitcnt vmcnt(0) lgkmcnt(0)")
    stamp()
    S("s_memrealtime s[94:95]")
    S("s_waitcnt lgkmcnt(0)")
    S(f"v_writelane_b32 v{vDBG},s98,{nst[0] - 1}")
    S(f"s_sub_u32 s94,s94,s96\nv_writelane_b32 v{vDBG},s94,{nst[0]}\nv_writelane_b32 v{vDBG},s96,{nst[0] + 1}")
    S(f"s_getreg_b32 s95,hwreg(HW_REG_XCC_ID)\nv_writelane_b32 v{vDBG},s95,{nst[0] + 2}")
    S(f"s_mov_b32 s{sUs + 2},0x1000000")
    S(f"s_lshl_b32 s54,s2,2\ns_add_u32 s54,s54,s{sWv}\ns_lshl_b32 s54,s54,7\ns_add_u32 s54,s54,0x400000")
    S(f"v_bfe_u32 v1,v{vU},4,6\nv_lshlrev_b32 v1,2,v1\ns_mov_b64 exec,0xffffffff\ns_mov_b32 exec_hi,0")
    S(f"buffer_store_dword v{vDBG},v1,s[{sUs}:{sUs + 3}],s54 offen")
    if CFG["dbg"] == 2:
        S("s_load_dwordx2 s[4:5],s[0:1],24\ns_waitcnt lgkmcnt(0)")
        S(f"s_lshl_b32 s54,s2,2\ns_add_u32 s54,s54,s{sWv}\ns_cmp_eq_u32 s54,400\ns_cbranch_scc0 L_nodbg")
        S(f"v_mov_b32 v2,v{vDBG}\ns_nop 1\nv_sub_u32_dpp v2,v{vDBG},v{vDBG} row_shl:1 row_mask:0xf bank_mask:0xf\ns_nop 1\nv_writelane_b32 v2,s94,15\ns_mov_b64 exec,0xffff")
        S("global_store_dword v1,v2,s[4:5]")
        S("L_nodbg:")
    print("; stamps", nst[0], file=sys.stderr)
print(f"; waits {em.nwait} nops {em.nnop} wait+scalar clashes {nfree} instrs {len(em.out)}", file=sys.stderr)
main_lines = em.lines()

U = []
A = U.append
A("s_cmp_ge_u32 s2,216\ns_cbranch_scc1 L_uend")
A("s_load_dwordx2 s[4:5],s[0:1],8\ns_load_dwordx2 s[6:7],s[0:1],32")
A("s_mul_hi_u32 s20,s2,0x55555556\ns_mul_i32 s21,s20,3\ns_sub_u32 s21,s2,s21")
A("s_mul_hi_u32 s22,s20,0x55555556\ns_mul_i32 s23,s22,3\ns_sub_u32 s23,s20,s23")
A("s_mul_hi_u32 s24,s22,0x2aaaaaab\ns_mul_i32 s25,s24,6\ns_sub_u32 s25,s22,s25")
A("v_and_b32 v1,15,v0\nv_lshrrev_b32 v2,4,v0")
A("s_lshl_b32 s26,s23,6\ns_lshl_b32 s27,s24,4\ns_add_u32 s26,s26,s27\nv_add_u32 v3,s26,v1\nv_lshlrev_b32 v3,1,v3")
A("v_mul_u32_u24 v4,3072,v2\nv_add_u32 v3,v3,v4")
A("s_mul_i32 s26,s21,221184\ns_mul_i32 s27,s25,12288\ns_add_u32 s26,s26,s27\ns_add_u32 s27,s26,73728\ns_add_u32 s28,s27,73728")
A("s_waitcnt lgkmcnt(0)")
A("s_mov_b32 s8,s4\ns_and_b32 s9,s5,0xffff\ns_mov_b32 s10,663552\ns_mov_b32 s11,0x20000")
A(f"s_mov_b32 s12,s6\ns_and_b32 s13,s7,0xffff\ns_mov_b32 s14,{4 * UWAVE}\ns_mov_b32 s15,0x20000")
for s in range(3):
    for e in range(8):
        A(f"buffer_load_short_d16_hi v{8 + s * 8 + e},v3,s[8:11],s{26 + s} offen offset:{e * 384}")
A(f"s_mul_i32 s30,s24,{UWAVE}\ns_mul_i32 s31,s25,{18 * 3072}\ns_add_u32 s30,s30,s31\ns_mul_i32 s31,s23,3072\ns_add_u32 s30,s30,s31\n"
  "s_lshl_b32 s31,s21,10\ns_add_u32 s30,s30,s31")
A("v_lshlrev_b32 v5,4,v0")
A(f"s_mov_b32 s33,{fbits(-1 / 6):#x}\ns_mov_b32 s34,{fbits(1 / 24):#x}\ns_mov_b32 s35,{fbits(1 / 6):#x}\ns_mov_b32 s36,{fbits(1 / 12):#x}")
A("s_waitcnt vmcnt(0)")
for e in range(8):
    g0, g1, g2 = 8 + e, 16 + e, 24 + e
    A(f"v_add_f32 v6,v{g0},v{g2}\nv_add_f32 v{32 + e},v6,v{g1}\nv_sub_f32 v{40 + e},v6,v{g1}")
    A(f"v_mul_f32 v{32 + e},s33,v{32 + e}\nv_mul_f32 v{40 + e},s33,v{40 + e}")
    A(f"v_mul_f32 v6,s34,v{g0}\nv_fmac_f32 v6,s35,v{g2}\nv_fma_f32 v{48 + e},s36,v{g1},v6\nv_fma_f32 v{56 + e},-s36,v{g1},v6")
for p, src in ((0, 8), (1, 32), (2, 40), (3, 48), (4, 56), (5, 24)):
    for e in range(4):
        A(f"v_cvt_pk_bf16_f32 v{64 + 4 * p + e},v{src + 2 * e},v{src + 2 * e + 1}")
    A(f"s_add_u32 s31,s30,{p * 9216}")
    A(f"buffer_store_dwordx4 v[{64 + 4 * p}:{67 + 4 * p}],v5,s[12:15],s31 offen")
A("L_uend:\ns_endpgm")

KD = """.amdhsa_kernel {n}
  .amdhsa_next_free_vgpr {v}
  .amdhsa_next_free_sgpr {s}
  .amdhsa_accum_offset {a}
  .amdhsa_group_segment_fixed_size 0
  .amdhsa_kernarg_size 40
  .amdhsa_user_sgpr_count 2
  .amdhsa_user_sgpr_kernarg_segment_ptr 1
  .amdhsa_system_sgpr_workgroup_id_x 1
  .amdhsa_float_denorm_mode_32 3
.end_amdhsa_kernel"""
out = []
if CFG["fuse"]:
    out.append(f"; @launch grid=(256,1,1) block=(256,1,1) lds={18 * UNIT}")
else:
    out.append("; @launch kernel=wtrans_kernel grid=(216,1,1) block=(64,1,1) lds=0")
    out.append(f"; @launch kernel=standalone__winograd__vision_kernel grid=(256,1,1) block=(256,1,1) lds={18 * UNIT}")
out.append('.amdgcn_target "amdgcn-amd-amdhsa--gfx950"')
out.append(".macro M d,a,b,c\nv_mfma_f32_16x16x32_bf16 \\d,\\a,\\b,\\c\n.endm")
out.append(".text")
if not CFG["fuse"]:
    out.append(".globl wtrans_kernel\n.p2align 8\n.type wtrans_kernel,@function\nwtrans_kernel:")
    out += U
out.append(".globl standalone__winograd__vision_kernel\n.p2align 8\n.type standalone__winograd__vision_kernel,@function")
out.append("standalone__winograd__vision_kernel:")
out += main_lines
out.append("s_endpgm\nL_code_end:")
if CFG["fuse"]:
    out.append("L_fallback:\ns_mov_b32 s84,0\n" + u_item("F", True) + "\ns_branch L_uready")
out.append('.section .rodata,"a"\n.p2align 6')
if not CFG["fuse"]:
    out.append(KD.format(n="wtrans_kernel", v=96, s=48, a=96))
    out.append(".p2align 6")
out.append(KD.format(n="standalone__winograd__vision_kernel", v=512, s=102 if CFG["dbg"] or CFG["padus"] else 96, a=256))
print("\n".join(out))
```
